```python
import torch

def _softmax(x, axis=-1):
    return torch.softmax(x, dim=axis)
def _gelu(x):
    return torch.nn.functional.gelu(x, approximate="tanh")
def _silu(x):
    return torch.nn.functional.silu(x)
def _sigmoid(x):
    return torch.sigmoid(x)
def _layernorm(x, axis=-1, eps=1e-5):
    m = x.mean(dim=axis, keepdim=True)
    v = x.var(dim=axis, keepdim=True, unbiased=False)
    return (x - m) / torch.sqrt(v + eps)
def _scatter_add(tgt, idx, src, axis=0):
    return tgt.clone().index_add_(axis, idx, src)
def _segment_sum(src, seg, n):
    out = torch.zeros((n,) + src.shape[1:], dtype=src.dtype)
    return out.index_add_(0, seg, src)
def _pad(x, pw):
    flat = tuple(v for pair in reversed(pw) for v in pair)
    return torch.nn.functional.pad(x, flat)

kernel_name = 'concat_heads__spectral_fnet__sliding_local_dilated__prompt'

def setup_inputs():

    _w = (lambda a: (lambda t: t.to(torch.bfloat16) if t.is_floating_point() else t)(torch.as_tensor(a)))
    def _A_setup():
        B, S, D = 1, 2048, 512
        ns = torch.arange(S)[:, None] * torch.arange(S)[None, :]
        nd = torch.arange(D)[:, None] * torch.arange(D)[None, :]
        Ws_re = torch.cos(-2.0 * torch.pi * ns / S).to(float)
        Ws_im = torch.sin(-2.0 * torch.pi * ns / S).to(float)
        Wd_re = torch.cos(-2.0 * torch.pi * nd / D).to(float)
        Wd_im = torch.sin(-2.0 * torch.pi * nd / D).to(float)
        return {
            "x": _w((lambda *s: torch.randn(*s, dtype=torch.bfloat16) * 0.05)(B, S, D)),
            "dft_seq_re": _w(Ws_re),
            "dft_seq_im": _w(Ws_im),
            "dft_hid_re": _w(Wd_re),
            "dft_hid_im": _w(Wd_im),
        }
    _A_in = _A_setup()

    def _B_setup():
        B, S, D = 1, 2048, 512
        return {
            "x": _w((lambda *s: torch.randn(*s, dtype=torch.bfloat16) * 0.2)(B, S, D)),
            "wqkv": _w((lambda *s: torch.randn(*s, dtype=torch.bfloat16) * 0.8)(D, 3 * D)),
            "wo": _w((lambda *s: torch.randn(*s, dtype=torch.bfloat16) * 0.2)(D, D)),
        }
    _B_in = _B_setup()

    return {
        "A_x": _A_in["x"],
        "A_dft_seq_re": _A_in["dft_seq_re"],
        "A_dft_seq_im": _A_in["dft_seq_im"],
        "A_dft_hid_re": _A_in["dft_hid_re"],
        "A_dft_hid_im": _A_in["dft_hid_im"],
        "B_x": _B_in["x"],
        "B_wqkv": _B_in["wqkv"],
        "B_wo": _B_in["wo"],
    }

def reference(A_x, A_dft_seq_re, A_dft_seq_im, A_dft_hid_re, A_dft_hid_im, B_x, B_wqkv, B_wo):
    def _A_ref(x, dft_seq_re, dft_seq_im, dft_hid_re, dft_hid_im):
        a = torch.einsum("bsd,ed->bse", x, dft_hid_re)
        b = torch.einsum("bsd,ed->bse", x, dft_hid_im)
        y = torch.einsum("ts,bse->bte", dft_seq_re, a) - torch.einsum("ts,bse->bte", dft_seq_im, b)
        return y

    def _B_ref(x, wqkv, wo):
        B, S, D = x.shape
        H = 32; Dh = D // H
        W, dil = 8, 2
        qkv = (lambda x, *d: x.permute(*d))((x @ wqkv).reshape(B, S, 3, H, Dh), 2, 0, 3, 1, 4)
        q, k, v = qkv[0], qkv[1], qkv[2]
        scale = Dh ** -0.5
        pos = torch.arange(S)
        off = torch.arange(W) * dil
        idx = pos[:, None] - off[None, :]
        mask = idx >= 0
        idx_c = torch.where(mask, idx, 0).reshape(-1)
        kg = k[:, :, idx_c, :].reshape(B, H, S, W, Dh)
        vg = v[:, :, idx_c, :].reshape(B, H, S, W, Dh)
        logits = torch.einsum("bhsd,bhswd->bhsw", q, kg) * scale
        logits = torch.where(mask[None, None, :, :], logits, -1e9)
        attn = _softmax(logits, axis=-1)
        o = torch.einsum("bhsw,bhswd->bhsd", attn, vg)
        return (lambda x, *d: x.permute(*d))(o, 0, 2, 1, 3).reshape(B, S, D) @ wo

    a = _A_ref(A_x, A_dft_seq_re, A_dft_seq_im, A_dft_hid_re, A_dft_hid_im)
    b = _B_ref(B_x, B_wqkv, B_wo)
    return torch.concatenate([a, b], axis=-1)
```

```python
class Asm:
    def __init__(self):
        self.lines = []
        self._lab = 0
    def e(self, s):
        self.lines.append("  " + s)
    def c(self, s):
        self.lines.append("  ; " + s)
    def label(self, name):
        self.lines.append(name + ":")
    def newlabel(self, base="L"):
        self._lab += 1
        return f"{base}_{self._lab}"
    def raw(self, s):
        self.lines.append(s)
    def text(self):
        return "\n".join(self.lines) + "\n"

def vr(b, n):
    return f"v[{b}:{b+n-1}]" if n > 1 else f"v{b}"
def sr(b, n):
    return f"s[{b}:{b+n-1}]" if n > 1 else f"s{b}"

def srd(a, d, lo, hi, nbytes):
    a.e(f"s_mov_b32 s{d}, s{lo}")
    a.e(f"s_mov_b32 s{d+1}, s{hi}")
    a.e(f"s_mov_b32 s{d+2}, {nbytes}")
    a.e(f"s_mov_b32 s{d+3}, 0x00020000")

def kdesc(name, vgpr, sgpr=102):
    acc = (vgpr + 3)//4*4
    return [".p2align 6", f".amdhsa_kernel {name}", f"  .amdhsa_next_free_vgpr {vgpr}", f"  .amdhsa_next_free_sgpr {sgpr}",
      f"  .amdhsa_accum_offset {acc}", "  .amdhsa_group_segment_fixed_size 0", "  .amdhsa_kernarg_size 88",
      "  .amdhsa_user_sgpr_count 2", "  .amdhsa_user_sgpr_kernarg_segment_ptr 1",
      "  .amdhsa_system_sgpr_workgroup_id_x 1", ".end_amdhsa_kernel"]
```

```python
import sys
from asmlib import *
NAME = "concat_heads__spectral_fnet__sliding_local_dilated__prompt"
HDR = open("cdna_kernels/%s.s.ref" % NAME).read().split("; Override launch")[0]

WS_CD = 0
WS_O = 4 << 20
WS_BYTES = 8 << 20

class Cfg:
    S1 = 4
    S2 = 8
    SB = 3
    stamps = False

def wave_ids(a):
    a.e("v_lshrrev_b32 v1, 6, v0")
    a.e("s_nop 0")
    a.e("v_readfirstlane_b32 s3, v1")
    a.e("v_and_b32 v1, 63, v0")

def stamp_begin(a, cfg):
    if cfg.stamps: a.e("s_memrealtime s[96:97]")
def stamp_end(a, cfg, slot, ws_lo=None):
    if not cfg.stamps: return
    L = a.newlabel("L_st")
    a.e("s_memrealtime s[98:99]")
    a.e("s_load_dwordx2 s[90:91], s[0:1], 80")
    a.e("s_waitcnt lgkmcnt(0)")
    a.e("s_add_u32 s92, s90, 0x2000000")
    a.e("s_addc_u32 s93, s91, 0")
    a.e("s_mov_b32 s94, 0x100000")
    a.e("s_mov_b32 s95, 0x00020000")
    a.e("v_mov_b32 v250, s96"); a.e("v_mov_b32 v251, s97"); a.e("v_mov_b32 v252, s98"); a.e("v_mov_b32 v253, s99")
    a.e("s_lshl_b32 s90, s2, 4")
    a.e(f"s_add_u32 s90, s90, {slot*4096}")
    a.e("v_mov_b32 v254, s90")
    a.e("v_cmp_eq_u32 vcc, 0, v0")
    a.e("s_and_saveexec_b64 s[90:91], vcc")
    a.e(f"s_cbranch_execz {L}")
    a.e("buffer_store_dwordx4 v[250:253], v254, s[92:95], 0 offen")
    a.label(L)
    a.e("s_mov_b64 exec, -1")

def loader_loop(a, nsteps, S, issue, per_stage, advance):
    P = S - 1
    for i in range(min(P, nsteps)):
        issue(); advance()
    main = nsteps - P
    if main > 0:
        L = a.newlabel("L_ld")
        a.e(f"s_mov_b32 s21, {main}")
        a.label(L)
        a.e(f"s_waitcnt vmcnt({per_stage*(P-1)})")
        a.e("s_barrier")
        issue(); advance()
        a.e("s_sub_u32 s21, s21, 1")
        a.e("s_cmp_lg_u32 s21, 0")
        a.e(f"s_cbranch_scc1 {L}")
    for i in range(max(main,0), nsteps):
        rem = nsteps - 1 - i
        a.e(f"s_waitcnt vmcnt({per_stage*rem})")
        a.e("s_barrier")

def store_tile32(a, acc, tmp, voff, srdreg, imm, xorreg=None):
    for g in range(4):
        a.e(f"v_cvt_pk_bf16_f32 v{tmp+2*g}, v{acc+4*g}, v{acc+4*g+1}")
        a.e(f"v_cvt_pk_bf16_f32 v{tmp+2*g+1}, v{acc+4*g+2}, v{acc+4*g+3}")
    if xorreg is not None:
        for i in range(8):
            a.e(f"v_xor_b32 v{tmp+i}, s{xorreg}, v{tmp+i}")
    a.e("s_nop 1")
    for g in (0, 2):
        a.e(f"v_permlane32_swap_b32 v{tmp+2*g}, v{tmp+2*g+2}")
        a.e(f"v_permlane32_swap_b32 v{tmp+2*g+1}, v{tmp+2*g+3}")
    a.e("s_nop 1")
    for g in (0, 2):
        a.e(f"buffer_store_dwordx4 v[{tmp+2*g}:{tmp+2*g+3}], v{voff}, s[{srdreg}:{srdreg+3}], 0 offen offset:{imm + g*16}")

def k1_big(a, cfg):
    S = cfg.S1; STG = 32768; NST = 32
    a.c("---- big GEMM role: xcd=s2&7, i=s2>>3 (0..15)")
    a.e("s_and_b32 s12, s2, 7")
    a.e("s_lshr_b32 s13, s2, 3")
    a.e("s_lshr_b32 s14, s13, 3")
    a.e("s_bfe_u32 s15, s13, 0x10002")
    a.e("s_lshl_b32 s12, s12, 1")
    a.e("s_add_u32 s15, s15, s12")
    a.e("s_and_b32 s16, s13, 3")
    a.e("s_lshr_b32 s17, s13, 2")
    a.e("s_add_u32 s17, s17, s16")
    a.e("s_and_b32 s17, s17, 3")
    a.e("s_lshl_b32 s17, s17, 3")
    a.e("s_waitcnt lgkmcnt(0)")
    a.e("s_cmp_ge_u32 s3, 4")
    a.e("s_cbranch_scc0 L_big_cons")
    a.c("loader waves")
    srd(a, 24, 4, 5, 2048*512*2)
    a.e("s_cmp_eq_u32 s14, 0")
    a.e("s_cselect_b32 s28, s6, s8")
    a.e("s_cselect_b32 s29, s7, s9")
    a.e(f"s_mov_b32 s30, {2048*2048*2}")
    a.e("s_mov_b32 s31, 0x00020000")
    a.e("s_sub_u32 s18, s3, 4")
    a.e("v_lshrrev_b32 v2, 4, v1")
    a.e("v_and_b32 v3, 15, v1")
    a.e("v_lshlrev_b32 v4, 2, v2")
    a.e("v_xor_b32 v3, v3, v4")
    a.e("s_lshl_b32 s19, s18, 4")
    a.e("v_add_u32 v4, s19, v2")
    a.e("v_lshlrev_b32 v4, 10, v4")
    a.e("v_lshl_add_u32 v4, v3, 4, v4")
    a.e("s_lshl_b32 s19, s16, 8")
    a.e("v_add_u32 v4, s19, v4")
    for j in range(4):
        a.e(f"v_add_u32 v{10+j}, {j*4096 - j*1024}, v4")
    a.e("v_lshrrev_b32 v4, 3, v1")
    a.e("v_and_b32 v3, 7, v1")
    a.e("v_xor_b32 v3, v3, v2")
    a.e("v_xor_b32 v5, 4, v3")
    a.e("s_lshl_b32 s19, s18, 5")
    a.e("s_lshl_b32 s22, s15, 7")
    a.e("s_add_u32 s19, s19, s22")
    a.e("v_add_u32 v4, s19, v4")
    a.e("v_lshlrev_b32 v4, 12, v4")
    a.e("v_lshl_add_u32 v6, v3, 4, v4")
    a.e("v_lshl_add_u32 v7, v5, 4, v4")
    for j in range(4):
        a.e(f"v_add_u32 v{14+j}, {j*8*4096 - j*1024}, v{6 if j%2==0 else 7}")
    a.e("s_lshl_b32 s32, s17, 16")
    a.e("s_lshl_b32 s33, s17, 7")
    a.e("s_lshl_b32 s34, s18, 12")
    a.e("s_mov_b32 s20, 0")
    def issue():
        a.e("s_add_u32 m0, s20, s34")
        a.e("s_add_u32 s35, s34, 16384")
        for j in range(4):
            a.e(f"buffer_load_dwordx4 v{10+j}, s[24:27], s32 offen offset:{j*1024} lds")
        a.e("s_add_u32 m0, s20, s35")
        a.e("s_nop 0")
        for j in range(4):
            a.e(f"buffer_load_dwordx4 v{14+j}, s[28:31], s33 offen offset:{j*1024} lds")
    def advance():
        a.e("s_add_u32 s32, s32, 0x10000")
        a.e("s_and_b32 s32, s32, 0x1fffff")
        a.e("s_add_u32 s33, s33, 128")
        a.e("s_and_b32 s33, s33, 0xfff")
        a.e(f"s_add_u32 s20, s20, {STG}")
        a.e(f"s_cmp_ge_u32 s20, {STG*S}")
        a.e("s_cselect_b32 s20, 0, s20")
    loader_loop(a, NST, S, issue, 8, advance)
    a.e("s_branch L_k1_end")
    a.label("L_big_cons")
    ACC = 64
    FX, FY = 32, 48
    BA, BB = 10, 12
    CA, CB = 16, 18
    a.e("s_and_b32 s18, s3, 1")
    a.e("s_lshr_b32 s19, s3, 1")
    a.e("v_bfe_u32 v2, v1, 2, 2")
    a.e("v_and_b32 v3, 3, v1")
    a.e("v_bfe_u32 v4, v1, 4, 1")
    a.e("v_lshrrev_b32 v5, 5, v1")
    a.e("v_lshlrev_b32 v6, 8, v2")
    a.e("v_lshl_add_u32 v6, v5, 11, v6")
    a.e("v_lshl_add_u32 v6, v4, 5, v6")
    a.e("v_lshl_add_u32 v6, v3, 3, v6")
    a.e("s_lshl_b32 s22, s18, 1")
    for j in range(2):
        a.e(f"s_add_u32 s23, s22, {j}")
        a.e("v_xor_b32 v7, s23, v2")
        a.e(f"v_lshl_add_u32 v{BA+j}, v7, 6, v6")
    a.e("v_and_b32 v2, 31, v1")
    a.e("s_lshl_b32 s22, s19, 6")
    a.e("v_add_u32 v2, s22, v2")
    a.e("v_bfe_u32 v3, v2, 1, 3")
    a.e("v_xor_b32 v3, v3, v5")
    a.e("v_lshlrev_b32 v4, 7, v2")
    a.e("v_add_u32 v4, 16384, v4")
    for ks in range(4):
        a.e(f"v_xor_b32 v6, {ks*2}, v3")
        a.e(f"v_lshl_add_u32 v{BB+ks}, v6, 4, v4")
    for i in range(64):
        a.e(f"v_mov_b32 v{ACC+i}, 0")
    a.e("s_mov_b32 s20, 0")
    def setaddr():
        for j in range(2): a.e(f"v_add_u32 v{CA+j}, s20, v{BA+j}")
        for k in range(4): a.e(f"v_add_u32 v{CB+k}, s20, v{BB+k}")
        a.e(f"s_add_u32 s20, s20, {STG}")
        a.e(f"s_cmp_ge_u32 s20, {STG*S}")
        a.e("s_cselect_b32 s20, 0, s20")
    def reads(F, ks):
        r = []
        r.append(f"ds_read_b128 v[{F+8}:{F+11}], v{CB+ks}")
        for u in range(2):
            r.append(f"ds_read_b64_tr_b16 v[{F+2*u}:{F+2*u+1}], v{CA} offset:{(ks*16+u*4)*256}")
        r.append(f"ds_read_b128 v[{F+12}:{F+15}], v{CB+ks} offset:4096")
        for u in range(2):
            r.append(f"ds_read_b64_tr_b16 v[{F+4+2*u}:{F+4+2*u+1}], v{CA+1} offset:{(ks*16+u*4)*256}")
        return r
    def mfmas(F):
        m = []
        for (jm, jn) in ((0,0),(0,1),(1,0),(1,1)):
            d = ACC + (jm*2+jn)*16
            m.append(f"v_mfma_f32_32x32x16_bf16 v[{d}:{d+15}], v[{F+4*jm}:{F+4*jm+3}], v[{F+8+4*jn}:{F+8+4*jn+3}], v[{d}:{d+15}]")
        return m
    def interleave(m, r):
        out = []
        for i in range(4):
            out.append(m[i])
            out += r[2*i:2*i+2]
        return out
    a.e("s_barrier")
    setaddr()
    for x in reads(FX, 0): a.e(x)
    a.e(f"s_mov_b32 s21, {NST}")
    a.label("L_big_loop")
    sets = [FX, FY, FX, FY]
    for ks in range(3):
        a.e("s_waitcnt lgkmcnt(0)")
        for x in interleave(mfmas(sets[ks]), reads(sets[ks+1], ks+1)): a.e(x)
    a.e("s_waitcnt lgkmcnt(0)")
    a.e("s_sub_u32 s21, s21, 1")
    a.e("s_cmp_eq_u32 s21, 0")
    a.e("s_cbranch_scc1 L_big_last")
    a.e("s_barrier")
    setaddr()
    for x in interleave(mfmas(FY), reads(FX, 0)): a.e(x)
    a.e("s_branch L_big_loop")
    a.label("L_big_last")
    for x in mfmas(FY): a.e(x)
    srd(a, 24, 10, 11, WS_BYTES)
    a.e("s_cmp_eq_u32 s14, 0")
    a.e("s_cselect_b32 s22, 0, 0x80008000")
    a.e("v_and_b32 v2, 31, v1")
    a.e("s_lshl_b32 s23, s15, 7")
    a.e("s_lshl_b32 s28, s19, 6")
    a.e("s_add_u32 s23, s23, s28")
    a.e("v_add_u32 v2, s23, v2")
    a.e("v_lshlrev_b32 v2, 11, v2")
    a.e("v_lshrrev_b32 v3, 5, v1")
    a.e("v_lshl_add_u32 v2, v3, 4, v2")
    a.e("s_lshl_b32 s23, s14, 10")
    a.e("s_lshl_b32 s28, s16, 8")
    a.e("s_add_u32 s23, s23, s28")
    a.e("s_lshl_b32 s28, s18, 7")
    a.e("s_add_u32 s23, s23, s28")
    a.e("v_add_u32 v2, s23, v2")
    a.e("v_add_u32 v3, 0x10000, v2")
    a.e("s_nop 7")
    a.e("s_nop 7")
    t = 0
    for jm in range(2):
        for jn in range(2):
            store_tile32(a, ACC+(jm*2+jn)*16, 32 + 8*(t%4), 2+jn, 24, jm*64, xorreg=22)
            t += 1
    a.e("s_branch L_k1_end")

def k1_attn(a, cfg):
    S = cfg.SB; NST = 8
    AREG = 24576
    STG = AREG + 20*1024
    PITCH = 400
    a.c("---- part B role: xcd=s2&7, i=(s2>>3)-16")
    a.e("s_load_dwordx4 s[4:7], s[0:1], 40")
    a.e("s_and_b32 s12, s2, 7")
    a.e("s_lshr_b32 s13, s2, 3")
    a.e("s_sub_u32 s13, s13, 16")
    a.e("s_lshr_b32 s14, s13, 3")
    a.e("s_lshl_b32 s12, s12, 1")
    a.e("s_add_u32 s15, s12, s14")
    a.e("s_and_b32 s16, s13, 7")
    a.e("s_lshl_b32 s17, s14, 2")
    a.e("s_add_u32 s17, s17, s16")
    a.e("s_and_b32 s17, s17, 7")
    a.e("s_waitcnt lgkmcnt(0)")
    a.e("s_cmp_ge_u32 s3, 4")
    a.e("s_cbranch_scc0 L_att_cons")
    srd(a, 24, 6, 7, 512*1536*2)
    srd(a, 28, 4, 5, 2048*512*2)
    a.e("s_sub_u32 s18, s3, 4")
    a.e("v_lshrrev_b32 v2, 3, v1")
    a.e("v_and_b32 v3, 7, v1")
    a.e("v_bfe_u32 v4, v1, 4, 1")
    a.e("v_lshlrev_b32 v4, 1, v4")
    a.e("v_xor_b32 v3, v3, v4")
    a.e("v_xor_b32 v5, 4, v3")
    a.e("s_lshl_b32 s19, s18, 4")
    a.e("v_add_u32 v2, s19, v2")
    a.e("s_mov_b32 s22, 3072")
    a.e("v_mul_lo_u32 v2, v2, s22")
    a.e("s_lshl_b32 s19, s16, 7")
    a.e("v_add_u32 v2, s19, v2")
    a.e("v_lshl_add_u32 v6, v3, 4, v2")
    a.e("v_lshl_add_u32 v7, v5, 4, v2")
    a.e(f"v_add_u32 v7, {8*3072 - 1024}, v7")
    for seg in range(3):
        a.e(f"v_add_u32 v{10+2*seg}, {seg*1024}, v6")
        a.e(f"v_add_u32 v{11+2*seg}, {seg*1024}, v7")
    a.e("v_lshrrev_b32 v2, 3, v1")
    a.e("v_and_b32 v3, 7, v1")
    a.e("v_lshrrev_b32 v4, 4, v1")
    a.e("v_xor_b32 v3, v3, v4")
    a.e("s_and_b32 s19, s18, 1")
    a.e("s_lshl_b32 s19, s19, 2")
    a.e("v_xor_b32 v3, s19, v3")
    a.e("s_lshl_b32 s19, s15, 7")
    a.e("s_sub_u32 s19, s19, 16")
    a.e("s_lshl_b32 s22, s18, 3")
    a.e("s_add_u32 s19, s19, s22")
    a.e("v_add_u32 v2, s19, v2")
    a.e("v_lshlrev_b32 v2, 10, v2")
    a.e("v_lshl_add_u32 v2, v3, 4, v2")
    for j in range(4):
        a.e(f"v_add_u32 v{20+j}, {j*32*1024}, v2")
    a.e("s_cmp_lt_u32 s18, 2")
    a.e("s_cselect_b32 s36, 16, 14")
    a.e("s_lshl_b32 s22, s36, 13")
    a.e("v_add_u32 v24, s22, v2")
    a.e("s_lshl_b32 s36, s36, 10")
    a.e("s_mul_i32 s32, s17, 196608")
    a.e("s_lshl_b32 s33, s17, 7")
    a.e("s_lshl_b32 s34, s18, 11")
    a.e("s_lshl_b32 s35, s18, 10")
    a.e(f"s_add_u32 s35, s35, {AREG}")
    a.e("s_add_u32 s36, s36, s35")
    a.e("s_mov_b32 s20, 0")
    def issue():
        a.e("s_add_u32 s37, s20, s34")
        for seg in range(3):
            a.e(f"s_add_u32 m0, s37, {seg*8192}")
            a.e("s_nop 0")
            a.e(f"buffer_load_dwordx4 v{10+2*seg}, s[24:27], s32 offen lds")
            a.e(f"buffer_load_dwordx4 v{11+2*seg}, s[24:27], s32 offen offset:1024 lds")
        a.e("s_add_u32 s37, s20, s35")
        for j in range(4):
            a.e(f"s_add_u32 m0, s37, {j*4096}")
            a.e("s_nop 0")
            a.e(f"buffer_load_dwordx4 v{20+j}, s[28:31], s33 offen lds")
        a.e("s_add_u32 m0, s20, s36")
        a.e("s_nop 0")
        a.e("buffer_load_dwordx4 v24, s[28:31], s33 offen lds")
    def advance():
        a.e("s_add_u32 s32, s32, 196608")
        a.e(f"s_cmp_ge_u32 s32, {512*3072}")
        a.e("s_cselect_b32 s32, 0, s32")
        a.e("s_add_u32 s33, s33, 128")
        a.e("s_and_b32 s33, s33, 0x3ff")
        a.e(f"s_add_u32 s20, s20, {STG}")
        a.e(f"s_cmp_ge_u32 s20, {STG*S}")
        a.e("s_cselect_b32 s20, 0, s20")
    loader_loop(a, NST, S, issue, 11, advance)
    a.e("s_barrier")
    a.e("s_barrier")
    a.e("s_branch L_att_attn")
    a.label("L_att_cons")
    ACC = 128
    F0, F1 = 32, 80
    BA, BB = 10, 12
    CA, CB = 16, 18
    a.e("v_bfe_u32 v2, v1, 2, 2")
    a.e("v_and_b32 v3, 3, v1")
    a.e("v_lshrrev_b32 v4, 4, v1")
    a.e("v_lshrrev_b32 v5, 1, v2")
    a.e("v_and_b32 v6, 1, v4")
    a.e("v_lshl_or_b32 v5, v6, 1, v5")
    a.e("v_xor_b32 v5, s3, v5")
    a.e("v_lshlrev_b32 v6, 7, v2")
    a.e("v_lshl_add_u32 v6, v4, 10, v6")
    a.e("v_lshl_add_u32 v6, v5, 5, v6")
    a.e(f"v_lshl_add_u32 v{BA}, v3, 3, v6")
    a.e("v_and_b32 v2, 15, v1")
    a.e("v_lshrrev_b32 v3, 1, v2")
    a.e("v_xor_b32 v3, v3, v4")
    a.e("v_lshlrev_b32 v5, 7, v2")
    a.e(f"v_add_u32 v5, {AREG}, v5")
    for ks in range(2):
        a.e(f"v_xor_b32 v6, {ks*4}, v3")
        a.e(f"v_lshl_add_u32 v{BB+ks}, v6, 4, v5")
    for i in range(108):
        a.e(f"v_mov_b32 v{ACC+i}, 0")
    a.e("s_mov_b32 s20, 0")
    def setaddr():
        a.e(f"v_add_u32 v{CA}, s20, v{BA}")
        for k in range(2): a.e(f"v_add_u32 v{CB+k}, s20, v{BB+k}")
        a.e(f"s_add_u32 s20, s20, {STG}")
        a.e(f"s_cmp_ge_u32 s20, {STG*S}")
        a.e("s_cselect_b32 s20, 0, s20")
    def reads(F, ks):
        r = []
        for seg in range(3):
            for u in range(2):
                r.append(f"ds_read_b64_tr_b16 v[{F+4*seg+2*u}:{F+4*seg+2*u+1}], v{CA} offset:{seg*8192 + (ks*32+u*4)*128}")
        for nt in range(9):
            r.append(f"ds_read_b128 v[{F+12+4*nt}:{F+12+4*nt+3}], v{CB+ks} offset:{nt*2048}")
        return r
    def mfmas(F):
        m = []
        for nt in range(9):
            for seg in range(3):
                if seg == 0 and nt == 0: continue
                d = ACC + (seg*9+nt)*4
                m.append(f"v_mfma_f32_16x16x32_bf16 v[{d}:{d+3}], v[{F+4*seg}:{F+4*seg+3}], v[{F+12+4*nt}:{F+12+4*nt+3}], v[{d}:{d+3}]")
        return m
    def interleave(m, r):
        out = []
        for i, x in enumerate(m):
            out.append(x)
            if i < len(r): out.append(r[i])
        return out
    a.e("s_barrier")
    setaddr()
    for x in reads(F0, 0): a.e(x)
    a.e(f"s_mov_b32 s21, {NST}")
    a.label("L_att_loop")
    a.e("s_waitcnt lgkmcnt(0)")
    for x in interleave(mfmas(F0), reads(F1, 1)): a.e(x)
    a.e("s_waitcnt lgkmcnt(0)")
    a.e("s_sub_u32 s21, s21, 1")
    a.e("s_cmp_eq_u32 s21, 0")
    a.e("s_cbranch_scc1 L_att_last")
    a.e("s_barrier")
    setaddr()
    for x in interleave(mfmas(F1), reads(F0, 0)): a.e(x)
    a.e("s_branch L_att_loop")
    a.label("L_att_last")
    a.e("s_barrier")
    for x in mfmas(F1): a.e(x)
    a.e("v_and_b32 v2, 15, v1")
    a.e(f"s_mov_b32 s22, {PITCH}")
    a.e("v_mul_lo_u32 v2, v2, s22")
    a.e("v_lshrrev_b32 v3, 4, v1")
    a.e("v_lshl_add_u32 v2, v3, 3, v2")
    a.e("s_lshl_b32 s22, s3, 5")
    a.e("v_add_u32 v2, s22, v2")
    a.e("s_nop 7")
    t = 0
    for nt in range(9):
        for seg in range(3):
            if seg == 0 and nt == 0: continue
            d = ACC + (seg*9+nt)*4
            tmp = 32 + 2*(t % 16); t += 1
            a.e(f"v_cvt_pk_bf16_f32 v{tmp}, v{d}, v{d+1}")
            a.e(f"v_cvt_pk_bf16_f32 v{tmp+1}, v{d+2}, v{d+3}")
            a.e(f"ds_write_b64 v2, v[{tmp}:{tmp+1}] offset:{nt*16*PITCH + seg*128}")
    a.e("s_waitcnt lgkmcnt(0)")
    a.e("s_barrier")
    a.label("L_att_attn")
    a.e("s_and_b32 s18, s3, 3")
    a.e("s_lshr_b32 s19, s3, 2")
    a.e("s_lshl_b32 s19, s19, 6")
    a.e("v_add_u32 v2, s19, v1")
    a.e(f"s_mov_b32 s22, {PITCH}")
    a.e("v_mul_lo_u32 v3, v2, s22")
    a.e("s_lshl_b32 s22, s18, 5")
    a.e(f"s_add_u32 s22, s22, {2*PITCH}")
    a.e("v_add_u32 v3, s22, v3")
    Q = 8; KK = 16; VV = 80; LG = 144; O = 160; T = 180
    a.e(f"ds_read_b128 v[{Q}:{Q+3}], v3 offset:{14*PITCH}")
    a.e(f"ds_read_b128 v[{Q+4}:{Q+7}], v3 offset:{14*PITCH+16}")
    for w in range(8):
        a.e(f"ds_read_b128 v[{KK+8*w}:{KK+8*w+3}], v3 offset:{(14-2*w)*PITCH+128}")
        a.e(f"ds_read_b128 v[{KK+8*w+4}:{KK+8*w+7}], v3 offset:{(14-2*w)*PITCH+144}")
    a.e("s_lshl_b32 s22, s15, 7")
    a.e("v_add_u32 v4, s22, v2")
    for w in range(8):
        a.e(f"s_waitcnt lgkmcnt({min(15, 14-2*w)})")
        a.e(f"v_mov_b32 v{LG+w}, 0")
        for i in range(8):
            a.e(f"v_dot2_f32_bf16 v{LG+w}, v{Q+i}, v{KK+8*w+i}, v{LG+w}")
    for w in range(8):
        a.e(f"ds_read_b128 v[{VV+8*w}:{VV+8*w+3}], v3 offset:{(14-2*w)*PITCH+256}")
        a.e(f"ds_read_b128 v[{VV+8*w+4}:{VV+8*w+7}], v3 offset:{(14-2*w)*PITCH+272}")
    a.e("s_nop 3")
    for w in range(0, 8, 2):
        a.e(f"v_cvt_pk_bf16_f32 v{T+w//2}, v{LG+w}, v{LG+w+1}")
    for w in range(0, 8, 2):
        a.e(f"v_lshlrev_b32 v{LG+w}, 16, v{T+w//2}")
        a.e(f"v_and_b32 v{LG+w+1}, 0xffff0000, v{T+w//2}")
    for w in range(8):
        a.e(f"v_mul_f32 v{LG+w}, 0.25, v{LG+w}") if False else a.e(f"v_mul_f32 v{LG+w}, 0x3e800000, v{LG+w}")
    a.e("v_mov_b32 v5, 0xce6e6b28")
    for w in range(1, 8):
        a.e(f"v_cmp_gt_u32 vcc, {2*w}, v4")
        a.e("s_nop 1")
        a.e(f"v_cndmask_b32 v{LG+w}, v{LG+w}, v5, vcc")
    a.e(f"v_max3_f32 v6, v{LG}, v{LG+1}, v{LG+2}")
    a.e(f"v_max3_f32 v6, v6, v{LG+3}, v{LG+4}")
    a.e(f"v_max3_f32 v6, v6, v{LG+5}, v{LG+6}")
    a.e(f"v_max_f32 v6, v6, v{LG+7}")
    a.e("s_mov_b32 s22, 0x3fb8aa3b")
    for w in range(8):
        a.e(f"v_sub_f32 v{LG+w}, v{LG+w}, v6")
    for w in range(8):
        a.e(f"v_mul_f32 v{LG+w}, s22, v{LG+w}")
    for w in range(8):
        a.e(f"v_exp_f32 v{LG+w}, v{LG+w}")
    a.e("s_nop 0")
    a.e(f"v_add_f32 v6, v{LG}, v{LG+1}")
    for w in range(2, 8):
        a.e(f"v_add_f32 v6, v6, v{LG+w}")
    a.e("v_rcp_f32 v6, v6")
    a.e("s_nop 0")
    for w in range(8):
        a.e(f"v_mul_f32 v{LG+w}, v{LG+w}, v6")
    for w in range(0, 8, 2):
        a.e(f"v_cvt_pk_bf16_f32 v{T+w//2}, v{LG+w}, v{LG+w+1}")
    for w in range(0, 8, 2):
        a.e(f"v_lshlrev_b32 v{LG+w}, 16, v{T+w//2}")
        a.e(f"v_and_b32 v{LG+w+1}, 0xffff0000, v{T+w//2}")
    for w in range(8):
        a.e(f"s_waitcnt lgkmcnt({14-2*w})")
        for i in range(8):
            src = VV+8*w+i
            a.e(f"v_lshlrev_b32 v{T+8}, 16, v{src}")
            a.e(f"v_and_b32 v{T+9}, 0xffff0000, v{src}")
            if w == 0:
                a.e(f"v_mul_f32 v{O+2*i}, v{LG}, v{T+8}")
                a.e(f"v_mul_f32 v{O+2*i+1}, v{LG}, v{T+9}")
            else:
                a.e(f"v_fmac_f32 v{O+2*i}, v{LG+w}, v{T+8}")
                a.e(f"v_fmac_f32 v{O+2*i+1}, v{LG+w}, v{T+9}")
    for i in range(8):
        a.e(f"v_cvt_pk_bf16_f32 v{T+i}, v{O+2*i}, v{O+2*i+1}")
    srd(a, 24, 10, 11, WS_BYTES)
    a.e("v_lshlrev_b32 v4, 10, v4")
    a.e("s_lshl_b32 s22, s16, 7")
    a.e("s_lshl_b32 s23, s18, 5")
    a.e("s_add_u32 s22, s22, s23")
    a.e(f"s_add_u32 s22, s22, {WS_O}")
    a.e("v_add_u32 v4, s22, v4")
    a.e(f"buffer_store_dwordx4 v[{T}:{T+3}], v4, s[24:27], 0 offen")
    a.e(f"buffer_store_dwordx4 v[{T+4}:{T+7}], v4, s[24:27], 0 offen offset:16")

def k1(a, cfg):
    a.raw(".globl k1_kernel"); a.raw(".p2align 8"); a.raw(".type k1_kernel,@function"); a.label("k1_kernel")
    a.e("s_cmp_ge_u32 s2, 256")
    a.e("s_cbranch_scc1 L_k1_exit")
    stamp_begin(a, cfg)
    a.e("s_load_dwordx2 s[4:5], s[0:1], 0")
    a.e("s_load_dwordx4 s[6:9], s[0:1], 8") if False else None
    a.e("s_load_dwordx2 s[6:7], s[0:1], 8")
    a.e("s_load_dwordx2 s[8:9], s[0:1], 16")
    a.e("s_load_dwordx2 s[10:11], s[0:1], 80")
    wave_ids(a)
    a.e("s_cmp_ge_u32 s2, 128")
    a.e("s_cbranch_scc1 L_k1_b")
    k1_big(a, cfg)
    a.label("L_k1_b")
    a.e("s_waitcnt lgkmcnt(0)")
    k1_attn(a, cfg)
    a.label("L_k1_end")
    stamp_end(a, cfg, 0)
    a.label("L_k1_exit")
    a.e("s_endpgm")

def k2(a, cfg):
    S = cfg.S2; STG = 16384
    a.raw(".globl k2_kernel"); a.raw(".p2align 8"); a.raw(".type k2_kernel,@function"); a.label("k2_kernel")
    a.e("s_cmp_ge_u32 s2, 256")
    a.e("s_cbranch_scc1 L_k2_exit")
    stamp_begin(a, cfg)
    a.e("s_load_dwordx4 s[4:7], s[0:1], 24")
    a.e("s_load_dwordx4 s[8:11], s[0:1], 56")
    a.e("s_load_dwordx2 s[12:13], s[0:1], 80")
    wave_ids(a)
    a.e("s_and_b32 s14, s2, 7")
    a.e("s_lshr_b32 s15, s2, 3")
    a.e("s_lshr_b32 s16, s15, 3")
    a.e("s_lshl_b32 s14, s14, 2")
    a.e("s_add_u32 s16, s16, s14")
    a.e("s_and_b32 s17, s15, 7")
    a.e("s_waitcnt lgkmcnt(0)")
    a.e("s_cmp_ge_u32 s3, 4")
    a.e("s_cbranch_scc0 L_k2_cons")
    srd(a, 24, 4, 5, 512*512*2)
    srd(a, 28, 6, 7, 512*512*2)
    srd(a, 36, 8, 9, 512*512*2)
    srd(a, 40, 12, 13, WS_BYTES)
    a.e("s_sub_u32 s18, s3, 4")
    a.e("v_lshrrev_b32 v2, 3, v1")
    a.e("v_and_b32 v3, 7, v1")
    a.e("v_lshrrev_b32 v4, 4, v1")
    a.e("v_xor_b32 v3, v3, v4")
    a.e("v_xor_b32 v5, 4, v3")
    a.e("s_lshl_b32 s19, s18, 4")
    a.e("v_add_u32 v2, s19, v2")
    a.e("s_lshl_b32 s19, s17, 6")
    a.e("v_add_u32 v6, s19, v2")
    a.e("v_lshlrev_b32 v6, 10, v6")
    a.e("v_lshl_add_u32 v10, v3, 4, v6")
    a.e("v_lshl_add_u32 v11, v5, 4, v6")
    a.e(f"v_add_u32 v11, {8*1024-1024}, v11")
    a.e("s_lshl_b32 s19, s16, 6")
    a.e("v_add_u32 v6, s19, v2")
    a.e("v_lshlrev_b32 v7, 11, v6")
    a.e("v_lshl_add_u32 v12, v3, 4, v7")
    a.e("v_lshl_add_u32 v13, v5, 4, v7")
    a.e(f"v_add_u32 v13, {8*2048-1024}, v13")
    a.e("v_lshlrev_b32 v7, 10, v6")
    a.e(f"v_add_u32 v7, {WS_O}, v7")
    a.e("v_lshl_add_u32 v14, v3, 4, v7")
    a.e("v_lshl_add_u32 v15, v5, 4, v7")
    a.e(f"v_add_u32 v15, {8*1024-1024}, v15")
    a.e("v_and_b32 v3, 7, v1")
    a.e("v_bfe_u32 v4, v1, 4, 1")
    a.e("v_lshlrev_b32 v4, 2, v4")
    a.e("v_xor_b32 v3, v3, v4")
    a.e("v_lshlrev_b32 v6, 10, v2")
    a.e("v_lshl_add_u32 v6, v3, 4, v6")
    a.e("s_lshl_b32 s19, s17, 7")
    a.e("v_add_u32 v16, s19, v6")
    a.e(f"v_add_u32 v17, {8*1024-1024}, v16")
    a.e("s_lshl_b32 s34, s18, 11")
    a.e("s_add_u32 s35, s34, 8192")
    NST = 24
    P = S - 1
    def issue(i):
        slot = (i % S) * STG
        a.e(f"s_add_u32 m0, s34, {slot}")
        if i < 16:
            sA = 24 if i < 8 else 28
            a.e(f"s_mov_b32 s32, {(i%8)*128}")
            a.e(f"buffer_load_dwordx4 v10, s[{sA}:{sA+3}], s32 offen lds")
            a.e(f"buffer_load_dwordx4 v11, s[{sA}:{sA+3}], s32 offen offset:1024 lds")
            a.e(f"s_add_u32 m0, s35, {slot}")
            a.e(f"s_mov_b32 s33, {i*128}")
            a.e("buffer_load_dwordx4 v12, s[40:43], s33 offen lds")
            a.e("buffer_load_dwordx4 v13, s[40:43], s33 offen offset:1024 lds")
        else:
            k = i - 16
            a.e(f"s_mov_b32 s32, {k*64*1024}")
            a.e("buffer_load_dwordx4 v16, s[36:39], s32 offen lds")
            a.e("buffer_load_dwordx4 v17, s[36:39], s32 offen offset:1024 lds")
            a.e(f"s_add_u32 m0, s35, {slot}")
            a.e(f"s_mov_b32 s33, {k*128}")
            a.e("buffer_load_dwordx4 v14, s[40:43], s33 offen lds")
            a.e("buffer_load_dwordx4 v15, s[40:43], s33 offen offset:1024 lds")
    for i in range(P): issue(i)
    for i in range(NST):
        out_after = min(P-1, NST-1-i)
        a.e(f"s_waitcnt vmcnt({4*out_after})")
        a.e("s_barrier")
        if i + P < NST: issue(i + P)
    a.e("s_branch L_k2_end")
    a.label("L_k2_cons")
    ACC1, ACC2 = 64, 80
    a.e("s_and_b32 s18, s3, 1")
    a.e("s_lshr_b32 s19, s3, 1")
    a.e("v_and_b32 v2, 31, v1")
    a.e("v_bfe_u32 v3, v2, 1, 3")
    a.e("v_lshrrev_b32 v5, 5, v1")
    a.e("v_xor_b32 v3, v3, v5")
    a.e("v_lshlrev_b32 v4, 7, v2")
    a.e("s_lshl_b32 s22, s18, 12")
    a.e("s_lshl_b32 s23, s19, 12")
    a.e("s_add_u32 s23, s23, 8192")
    for ks in range(4):
        a.e(f"v_xor_b32 v6, {ks*2}, v3")
        a.e("v_lshl_add_u32 v6, v6, 4, v4")
        a.e(f"v_add_u32 v{10+ks}, s22, v6")
        a.e(f"v_add_u32 v{14+ks}, s23, v6")
    a.e("v_bfe_u32 v2, v1, 2, 2")
    a.e("v_and_b32 v3, 3, v1")
    a.e("v_bfe_u32 v4, v1, 4, 1")
    a.e("v_lshlrev_b32 v6, 7, v2")
    a.e("v_lshl_add_u32 v6, v5, 10, v6")
    a.e("v_lshl_add_u32 v6, v4, 5, v6")
    a.e("v_lshl_add_u32 v6, v3, 3, v6")
    a.e("v_lshrrev_b32 v7, 1, v2")
    a.e("v_xor_b32 v7, s18, v7")
    a.e("v_lshl_add_u32 v18, v7, 6, v6")
    for i in range(32): a.e(f"v_mov_b32 v{ACC1+i}, 0")
    FS = [96, 128]
    def reads(i):
        F = FS[i % 2]; slot = (i % S) * STG
        r = []
        hi = slot // 65536; lo = slot % 65536
        for ks in range(4):
            if i < 16:
                r.append(f"ds_read_b128 v[{F+8*ks}:{F+8*ks+3}], v{10+ks + 10*hi} offset:{lo}")
            else:
                for u in range(2):
                    r.append(f"ds_read_b64_tr_b16 v[{F+8*ks+2*u}:{F+8*ks+2*u+1}], v{18+10*hi} offset:{lo + (ks*16+u*4)*128}")
            r.append(f"ds_read_b128 v[{F+8*ks+4}:{F+8*ks+7}], v{14+ks+10*hi} offset:{lo}")
        return r
    nhi = (S*STG + 65535)//65536
    for h in range(1, nhi):
        for j in range(9):
            a.e(f"v_add_u32 v{10+j+10*h}, {65536*h}, v{10+j}")
    def mf(i):
        F = FS[i % 2]; acc = ACC1 if i < 16 else ACC2
        return [f"v_mfma_f32_32x32x16_bf16 v[{acc}:{acc+15}], v[{F+8*ks}:{F+8*ks+3}], v[{F+8*ks+4}:{F+8*ks+7}], v[{acc}:{acc+15}]" for ks in range(4)]
    a.e("s_barrier")
    for x in reads(0): a.e(x)
    for i in range(NST):
        a.e("s_waitcnt lgkmcnt(0)")
        if i + 1 < NST:
            a.e("s_barrier")
            r = reads(i+1)
        else:
            r = []
        m = mf(i)
        per = (len(r) + 3)//4
        for k in range(4):
            for x in r[k*per:(k+1)*per]: a.e(x)
            a.e(m[k])
    srd(a, 24, 10, 11, 2048*1024*2)
    a.e("v_and_b32 v2, 31, v1")
    a.e("s_lshl_b32 s22, s16, 6")
    a.e("s_lshl_b32 s23, s19, 5")
    a.e("s_add_u32 s22, s22, s23")
    a.e("v_add_u32 v2, s22, v2")
    a.e("v_lshlrev_b32 v2, 11, v2")
    a.e("v_lshl_add_u32 v2, v5, 4, v2")
    a.e("s_lshl_b32 s22, s17, 7")
    a.e("s_lshl_b32 s23, s18, 6")
    a.e("s_add_u32 s22, s22, s23")
    a.e("v_add_u32 v2, s22, v2")
    store_tile32(a, ACC1, 32, 2, 24, 0)
    a.e("s_nop 7"); a.e("s_nop 7")
    store_tile32(a, ACC2, 40, 2, 24, 1024)
    a.label("L_k2_end")
    stamp_end(a, cfg, 1)
    a.label("L_k2_exit")
    a.e("s_endpgm")

def gen(cfg):
    a = Asm()
    lds1 = max(cfg.S1*32768, cfg.SB*(24576+20480))
    lds2 = cfg.S2*16384
    a.raw(HDR.rstrip("\n"))
    a.raw(f"; @launch kernel=k1_kernel grid=(256,1,1) block=(512,1,1) lds={lds1}")
    a.raw(f"; @launch kernel=k2_kernel grid=(256,1,1) block=(512,1,1) lds={lds2}")
    a.raw('.amdgcn_target "amdgcn-amd-amdhsa--gfx950"')
    a.raw(".text")
    k1(a, cfg)
    k2(a, cfg)
    a.raw('.section .rodata,"a"')
    for l in kdesc("k1_kernel", 256): a.raw(l)
    for l in kdesc("k2_kernel", 256): a.raw(l)
    return a.text()

if __name__ == "__main__":
    cfg = Cfg()
    open("v1.s", "w").write(gen(cfg))
    cfg.stamps = True
    open("v1_st.s", "w").write(gen(cfg))
```

```python
import sys
from asmlib import *
NAME = "concat_heads__spectral_fnet__sliding_local_dilated__prompt"
HDR = open("cdna_kernels/%s.s.ref" % NAME).read().split("; Override launch")[0]

WS_CD = 0
WS_O = 4 << 20
WS_BYTES = 8 << 20

class Cfg:
    S1 = 4
    S2 = 8
    SB = 3
    stamps = False
    no_mfma = False
    no_reads = False
    no_partb = False
    steps = False

def wave_ids(a):
    a.e("v_lshrrev_b32 v1, 6, v0")
    a.e("s_nop 0")
    a.e("v_readfirstlane_b32 s3, v1")
    a.e("v_and_b32 v1, 63, v0")

def stamp_begin(a, cfg):
    if cfg.stamps: a.e("s_memrealtime s[96:97]")
def stamp_end(a, cfg, slot, ws_lo=None):
    if not cfg.stamps: return
    L = a.newlabel("L_st")
    a.e("s_memrealtime s[98:99]")
    a.e("s_load_dwordx2 s[90:91], s[0:1], 80")
    a.e("s_waitcnt lgkmcnt(0)")
    a.e("s_add_u32 s92, s90, 0x2000000")
    a.e("s_addc_u32 s93, s91, 0")
    a.e("s_mov_b32 s94, 0x100000")
    a.e("s_mov_b32 s95, 0x00020000")
    a.e("v_mov_b32 v250, s96"); a.e("v_mov_b32 v251, s97"); a.e("v_mov_b32 v252, s98"); a.e("v_mov_b32 v253, s99")
    a.e("s_lshl_b32 s90, s2, 4")
    a.e(f"s_add_u32 s90, s90, {slot*4096}")
    a.e("v_mov_b32 v254, s90")
    a.e("v_cmp_eq_u32 vcc, 0, v0")
    a.e("s_and_saveexec_b64 s[90:91], vcc")
    a.e(f"s_cbranch_execz {L}")
    a.e("buffer_store_dwordx4 v[250:253], v254, s[92:95], 0 offen")
    a.label(L)
    a.e("s_mov_b64 exec, -1")

def step_stamp(a, cfg):
    if not cfg.steps: return
    a.e("s_memtime s[80:81]")
    a.e("s_waitcnt lgkmcnt(0)")
    a.e("v_mov_b32 v202, s80")
    a.e("v_cmp_eq_u32 vcc, s82, v1")
    a.e("s_nop 1")
    a.e("v_cndmask_b32 v200, v200, v202, vcc")
    a.e("s_add_u32 s82, s82, 1")
def step_dump(a, cfg):
    if not cfg.steps: return
    L = a.newlabel("L_sd")
    a.e("s_cmp_lg_u32 s3, 4")
    a.e(f"s_cbranch_scc1 {L}")
    a.e("s_memrealtime s[80:81]")
    a.e("s_memtime s[84:85]")
    a.e("s_waitcnt lgkmcnt(0)")
    a.e("v_writelane_b32 v200, s80, 62")
    a.e("v_writelane_b32 v200, s84, 63")
    a.e("s_add_u32 s92, s10, 0x3000000")
    a.e("s_addc_u32 s93, s11, 0")
    a.e("s_mov_b32 s94, 0x100000")
    a.e("s_mov_b32 s95, 0x00020000")
    a.e("s_lshl_b32 s90, s2, 8")
    a.e("v_lshl_add_u32 v201, v1, 2, s90")
    a.e("buffer_store_dword v200, v201, s[92:95], 0 offen")
    a.label(L)
CFG = None
def loader_loop(a, nsteps, S, issue, per_stage, advance):
    cfg = CFG
    if cfg.steps:
        a.e("v_mov_b32 v200, 0")
        a.e("s_memrealtime s[80:81]")
        a.e("s_memtime s[84:85]")
        a.e("s_waitcnt lgkmcnt(0)")
        a.e("v_writelane_b32 v200, s80, 60")
        a.e("v_writelane_b32 v200, s84, 61")
        a.e("s_mov_b32 s82, 0")
    P = S - 1
    for i in range(min(P, nsteps)):
        issue(); advance()
    main = nsteps - P
    if main > 0:
        L = a.newlabel("L_ld")
        a.e(f"s_mov_b32 s21, {main}")
        a.label(L)
        a.e(f"s_waitcnt vmcnt({per_stage*(P-1)})")
        a.e("s_barrier")
        issue(); advance()
        step_stamp(a, cfg)
        a.e("s_sub_u32 s21, s21, 1")
        a.e("s_cmp_lg_u32 s21, 0")
        a.e(f"s_cbranch_scc1 {L}")
    for i in range(max(main,0), nsteps):
        rem = nsteps - 1 - i
        a.e(f"s_waitcnt vmcnt({per_stage*rem})")
        a.e("s_barrier")
        step_stamp(a, cfg)
    step_dump(a, cfg)

def store_tile32(a, acc, tmp, voff, srdreg, imm, xorreg=None):
    for g in range(4):
        a.e(f"v_cvt_pk_bf16_f32 v{tmp+2*g}, v{acc+4*g}, v{acc+4*g+1}")
        a.e(f"v_cvt_pk_bf16_f32 v{tmp+2*g+1}, v{acc+4*g+2}, v{acc+4*g+3}")
    if xorreg is not None:
        for i in range(8):
            a.e(f"v_xor_b32 v{tmp+i}, s{xorreg}, v{tmp+i}")
    a.e("s_nop 1")
    for g in (0, 2):
        a.e(f"v_permlane32_swap_b32 v{tmp+2*g}, v{tmp+2*g+2}")
        a.e(f"v_permlane32_swap_b32 v{tmp+2*g+1}, v{tmp+2*g+3}")
    a.e("s_nop 1")
    for g in (0, 2):
        a.e(f"buffer_store_dwordx4 v[{tmp+2*g}:{tmp+2*g+3}], v{voff}, s[{srdreg}:{srdreg+3}], 0 offen offset:{imm + g*16}")

def k1_big(a, cfg):
    S = cfg.S1; STG = 32768; NST = 32
    a.c("---- big GEMM role: xcd=s2&7, i=s2>>3 (0..15)")
    a.e("s_and_b32 s12, s2, 7")
    a.e("s_lshr_b32 s13, s2, 3")
    a.e("s_lshr_b32 s14, s13, 3")
    a.e("s_bfe_u32 s15, s13, 0x10002")
    a.e("s_lshl_b32 s12, s12, 1")
    a.e("s_add_u32 s15, s15, s12")
    a.e("s_and_b32 s16, s13, 3")
    a.e("s_lshr_b32 s17, s13, 2")
    a.e("s_add_u32 s17, s17, s16")
    a.e("s_and_b32 s17, s17, 3")
    a.e("s_lshl_b32 s17, s17, 3")
    a.e("s_waitcnt lgkmcnt(0)")
    a.e("s_cmp_ge_u32 s3, 4")
    a.e("s_cbranch_scc0 L_big_cons")
    a.c("loader waves")
    srd(a, 24, 4, 5, 2048*512*2)
    a.e("s_cmp_eq_u32 s14, 0")
    a.e("s_cselect_b32 s28, s6, s8")
    a.e("s_cselect_b32 s29, s7, s9")
    a.e(f"s_mov_b32 s30, {2048*2048*2}")
    a.e("s_mov_b32 s31, 0x00020000")
    a.e("s_sub_u32 s18, s3, 4")
    a.e("v_lshrrev_b32 v2, 4, v1")
    a.e("v_and_b32 v3, 15, v1")
    a.e("v_lshlrev_b32 v4, 2, v2")
    a.e("v_xor_b32 v3, v3, v4")
    a.e("s_lshl_b32 s19, s18, 4")
    a.e("v_add_u32 v4, s19, v2")
    a.e("v_lshlrev_b32 v4, 10, v4")
    a.e("v_lshl_add_u32 v4, v3, 4, v4")
    a.e("s_lshl_b32 s19, s16, 8")
    a.e("v_add_u32 v4, s19, v4")
    for j in range(4):
        a.e(f"v_add_u32 v{10+j}, {j*4096 - j*1024}, v4")
    a.e("v_lshrrev_b32 v4, 3, v1")
    a.e("v_and_b32 v3, 7, v1")
    a.e("v_xor_b32 v3, v3, v2")
    a.e("v_xor_b32 v5, 4, v3")
    a.e("s_lshl_b32 s19, s18, 5")
    a.e("s_lshl_b32 s22, s15, 7")
    a.e("s_add_u32 s19, s19, s22")
    a.e("v_add_u32 v4, s19, v4")
    a.e("v_lshlrev_b32 v4, 12, v4")
    a.e("v_lshl_add_u32 v6, v3, 4, v4")
    a.e("v_lshl_add_u32 v7, v5, 4, v4")
    for j in range(4):
        a.e(f"v_add_u32 v{14+j}, {j*8*4096 - j*1024}, v{6 if j%2==0 else 7}")
    a.e("s_lshl_b32 s32, s17, 16")
    a.e("s_lshl_b32 s33, s17, 7")
    a.e("s_lshl_b32 s34, s18, 12")
    a.e("s_mov_b32 s20, 0")
    def issue():
        a.e("s_add_u32 m0, s20, s34")
        a.e("s_add_u32 s35, s34, 16384")
        for j in range(4):
            a.e(f"buffer_load_dwordx4 v{10+j}, s[24:27], s32 offen offset:{j*1024} lds")
        a.e("s_add_u32 m0, s20, s35")
        a.e("s_nop 0")
        for j in range(4):
            a.e(f"buffer_load_dwordx4 v{14+j}, s[28:31], s33 offen offset:{j*1024} lds")
    def advance():
        a.e("s_add_u32 s32, s32, 0x10000")
        a.e("s_and_b32 s32, s32, 0x1fffff")
        a.e("s_add_u32 s33, s33, 128")
        a.e("s_and_b32 s33, s33, 0xfff")
        a.e(f"s_add_u32 s20, s20, {STG}")
        a.e(f"s_cmp_ge_u32 s20, {STG*S}")
        a.e("s_cselect_b32 s20, 0, s20")
    loader_loop(a, NST, S, issue, 8, advance)
    a.e("s_branch L_k1_end")
    a.label("L_big_cons")
    ACC = 64
    FX, FY = 32, 48
    BA, BB = 10, 12
    CA, CB = 16, 18
    a.e("s_and_b32 s18, s3, 1")
    a.e("s_lshr_b32 s19, s3, 1")
    a.e("v_bfe_u32 v2, v1, 2, 2")
    a.e("v_and_b32 v3, 3, v1")
    a.e("v_bfe_u32 v4, v1, 4, 1")
    a.e("v_lshrrev_b32 v5, 5, v1")
    a.e("v_lshlrev_b32 v6, 8, v2")
    a.e("v_lshl_add_u32 v6, v5, 11, v6")
    a.e("v_lshl_add_u32 v6, v4, 5, v6")
    a.e("v_lshl_add_u32 v6, v3, 3, v6")
    a.e("s_lshl_b32 s22, s18, 1")
    for j in range(2):
        a.e(f"s_add_u32 s23, s22, {j}")
        a.e("v_xor_b32 v7, s23, v2")
        a.e(f"v_lshl_add_u32 v{BA+j}, v7, 6, v6")
    a.e("v_and_b32 v2, 31, v1")
    a.e("s_lshl_b32 s22, s19, 6")
    a.e("v_add_u32 v2, s22, v2")
    a.e("v_bfe_u32 v3, v2, 1, 3")
    a.e("v_xor_b32 v3, v3, v5")
    a.e("v_lshlrev_b32 v4, 7, v2")
    a.e("v_add_u32 v4, 16384, v4")
    for ks in range(4):
        a.e(f"v_xor_b32 v6, {ks*2}, v3")
        a.e(f"v_lshl_add_u32 v{BB+ks}, v6, 4, v4")
    for i in range(64):
        a.e(f"v_mov_b32 v{ACC+i}, 0")
    a.e("s_mov_b32 s20, 0")
    def setaddr():
        for j in range(2): a.e(f"v_add_u32 v{CA+j}, s20, v{BA+j}")
        for k in range(4): a.e(f"v_add_u32 v{CB+k}, s20, v{BB+k}")
        a.e(f"s_add_u32 s20, s20, {STG}")
        a.e(f"s_cmp_ge_u32 s20, {STG*S}")
        a.e("s_cselect_b32 s20, 0, s20")
    def reads(F, ks):
        r = []
        r.append(f"ds_read_b128 v[{F+8}:{F+11}], v{CB+ks}")
        for u in range(2):
            r.append(f"ds_read_b64_tr_b16 v[{F+2*u}:{F+2*u+1}], v{CA} offset:{(ks*16+u*4)*256}")
        r.append(f"ds_read_b128 v[{F+12}:{F+15}], v{CB+ks} offset:4096")
        for u in range(2):
            r.append(f"ds_read_b64_tr_b16 v[{F+4+2*u}:{F+4+2*u+1}], v{CA+1} offset:{(ks*16+u*4)*256}")
        return r
    def mfmas(F):
        m = []
        for (jm, jn) in ((0,0),(0,1),(1,0),(1,1)):
            d = ACC + (jm*2+jn)*16
            m.append(f"v_mfma_f32_32x32x16_bf16 v[{d}:{d+15}], v[{F+4*jm}:{F+4*jm+3}], v[{F+8+4*jn}:{F+8+4*jn+3}], v[{d}:{d+15}]")
        return m
    def interleave(m, r):
        if cfg.no_mfma: m = ["s_nop 0"]*4
        if cfg.no_reads: r = []
        out = []
        for i in range(4):
            out.append(m[i])
            out += r[2*i:2*i+2]
        return out
    a.e("s_barrier")
    setaddr()
    for x in reads(FX, 0): a.e(x)
    a.e(f"s_mov_b32 s21, {NST}")
    a.label("L_big_loop")
    sets = [FX, FY, FX, FY]
    for ks in range(3):
        a.e("s_waitcnt lgkmcnt(0)")
        for x in interleave(mfmas(sets[ks]), reads(sets[ks+1], ks+1)): a.e(x)
    a.e("s_waitcnt lgkmcnt(0)")
    a.e("s_sub_u32 s21, s21, 1")
    a.e("s_cmp_eq_u32 s21, 0")
    a.e("s_cbranch_scc1 L_big_last")
    a.e("s_barrier")
    setaddr()
    for x in interleave(mfmas(FY), reads(FX, 0)): a.e(x)
    a.e("s_branch L_big_loop")
    a.label("L_big_last")
    for x in mfmas(FY): a.e(x)
    srd(a, 24, 10, 11, WS_BYTES)
    a.e("s_cmp_eq_u32 s14, 0")
    a.e("s_cselect_b32 s22, 0, 0x80008000")
    a.e("v_and_b32 v2, 31, v1")
    a.e("s_lshl_b32 s23, s15, 7")
    a.e("s_lshl_b32 s28, s19, 6")
    a.e("s_add_u32 s23, s23, s28")
    a.e("v_add_u32 v2, s23, v2")
    a.e("v_lshlrev_b32 v2, 11, v2")
    a.e("v_lshrrev_b32 v3, 5, v1")
    a.e("v_lshl_add_u32 v2, v3, 4, v2")
    a.e("s_lshl_b32 s23, s14, 10")
    a.e("s_lshl_b32 s28, s16, 8")
    a.e("s_add_u32 s23, s23, s28")
    a.e("s_lshl_b32 s28, s18, 7")
    a.e("s_add_u32 s23, s23, s28")
    a.e("v_add_u32 v2, s23, v2")
    a.e("v_add_u32 v3, 0x10000, v2")
    a.e("s_nop 7")
    a.e("s_nop 7")
    t = 0
    for jm in range(2):
        for jn in range(2):
            store_tile32(a, ACC+(jm*2+jn)*16, 32 + 8*(t%4), 2+jn, 24, jm*64, xorreg=22)
            t += 1
    a.e("s_branch L_k1_end")

def k1_attn(a, cfg):
    S = cfg.SB; NST = 8
    AREG = 24576
    STG = AREG + 20*1024
    PITCH = 400
    a.c("---- part B role: xcd=s2&7, i=(s2>>3)-16")
    a.e("s_load_dwordx4 s[4:7], s[0:1], 40")
    a.e("s_and_b32 s12, s2, 7")
    a.e("s_lshr_b32 s13, s2, 3")
    a.e("s_sub_u32 s13, s13, 16")
    a.e("s_lshr_b32 s14, s13, 3")
    a.e("s_lshl_b32 s12, s12, 1")
    a.e("s_add_u32 s15, s12, s14")
    a.e("s_and_b32 s16, s13, 7")
    a.e("s_lshl_b32 s17, s14, 2")
    a.e("s_add_u32 s17, s17, s16")
    a.e("s_and_b32 s17, s17, 7")
    a.e("s_waitcnt lgkmcnt(0)")
    a.e("s_cmp_ge_u32 s3, 4")
    a.e("s_cbranch_scc0 L_att_cons")
    srd(a, 24, 6, 7, 512*1536*2)
    srd(a, 28, 4, 5, 2048*512*2)
    a.e("s_sub_u32 s18, s3, 4")
    a.e("v_lshrrev_b32 v2, 3, v1")
    a.e("v_and_b32 v3, 7, v1")
    a.e("v_bfe_u32 v4, v1, 4, 1")
    a.e("v_lshlrev_b32 v4, 1, v4")
    a.e("v_xor_b32 v3, v3, v4")
    a.e("v_xor_b32 v5, 4, v3")
    a.e("s_lshl_b32 s19, s18, 4")
    a.e("v_add_u32 v2, s19, v2")
    a.e("s_mov_b32 s22, 3072")
    a.e("v_mul_lo_u32 v2, v2, s22")
    a.e("s_lshl_b32 s19, s16, 7")
    a.e("v_add_u32 v2, s19, v2")
    a.e("v_lshl_add_u32 v6, v3, 4, v2")
    a.e("v_lshl_add_u32 v7, v5, 4, v2")
    a.e(f"v_add_u32 v7, {8*3072 - 1024}, v7")
    for seg in range(3):
        a.e(f"v_add_u32 v{10+2*seg}, {seg*1024}, v6")
        a.e(f"v_add_u32 v{11+2*seg}, {seg*1024}, v7")
    a.e("v_lshrrev_b32 v2, 3, v1")
    a.e("v_and_b32 v3, 7, v1")
    a.e("v_lshrrev_b32 v4, 4, v1")
    a.e("v_xor_b32 v3, v3, v4")
    a.e("s_and_b32 s19, s18, 1")
    a.e("s_lshl_b32 s19, s19, 2")
    a.e("v_xor_b32 v3, s19, v3")
    a.e("s_lshl_b32 s19, s15, 7")
    a.e("s_sub_u32 s19, s19, 16")
    a.e("s_lshl_b32 s22, s18, 3")
    a.e("s_add_u32 s19, s19, s22")
    a.e("v_add_u32 v2, s19, v2")
    a.e("v_lshlrev_b32 v2, 10, v2")
    a.e("v_lshl_add_u32 v2, v3, 4, v2")
    for j in range(4):
        a.e(f"v_add_u32 v{20+j}, {j*32*1024}, v2")
    a.e("s_cmp_lt_u32 s18, 2")
    a.e("s_cselect_b32 s36, 16, 14")
    a.e("s_lshl_b32 s22, s36, 13")
    a.e("v_add_u32 v24, s22, v2")
    a.e("s_lshl_b32 s36, s36, 10")
    a.e("s_mul_i32 s32, s17, 196608")
    a.e("s_lshl_b32 s33, s17, 7")
    a.e("s_lshl_b32 s34, s18, 11")
    a.e("s_lshl_b32 s35, s18, 10")
    a.e(f"s_add_u32 s35, s35, {AREG}")
    a.e("s_add_u32 s36, s36, s35")
    a.e("s_mov_b32 s20, 0")
    def issue():
        a.e("s_add_u32 s37, s20, s34")
        for seg in range(3):
            a.e(f"s_add_u32 m0, s37, {seg*8192}")
            a.e("s_nop 0")
            a.e(f"buffer_load_dwordx4 v{10+2*seg}, s[24:27], s32 offen lds")
            a.e(f"buffer_load_dwordx4 v{11+2*seg}, s[24:27], s32 offen offset:1024 lds")
        a.e("s_add_u32 s37, s20, s35")
        for j in range(4):
            a.e(f"s_add_u32 m0, s37, {j*4096}")
            a.e("s_nop 0")
            a.e(f"buffer_load_dwordx4 v{20+j}, s[28:31], s33 offen lds")
        a.e("s_add_u32 m0, s20, s36")
        a.e("s_nop 0")
        a.e("buffer_load_dwordx4 v24, s[28:31], s33 offen lds")
    def advance():
        a.e("s_add_u32 s32, s32, 196608")
        a.e(f"s_cmp_ge_u32 s32, {512*3072}")
        a.e("s_cselect_b32 s32, 0, s32")
        a.e("s_add_u32 s33, s33, 128")
        a.e("s_and_b32 s33, s33, 0x3ff")
        a.e(f"s_add_u32 s20, s20, {STG}")
        a.e(f"s_cmp_ge_u32 s20, {STG*S}")
        a.e("s_cselect_b32 s20, 0, s20")
    loader_loop(a, NST, S, issue, 11, advance)
    a.e("s_barrier")
    a.e("s_barrier")
    a.e("s_branch L_att_attn")
    a.label("L_att_cons")
    ACC = 128
    F0, F1 = 32, 80
    BA, BB = 10, 12
    CA, CB = 16, 18
    a.e("v_bfe_u32 v2, v1, 2, 2")
    a.e("v_and_b32 v3, 3, v1")
    a.e("v_lshrrev_b32 v4, 4, v1")
    a.e("v_lshrrev_b32 v5, 1, v2")
    a.e("v_and_b32 v6, 1, v4")
    a.e("v_lshl_or_b32 v5, v6, 1, v5")
    a.e("v_xor_b32 v5, s3, v5")
    a.e("v_lshlrev_b32 v6, 7, v2")
    a.e("v_lshl_add_u32 v6, v4, 10, v6")
    a.e("v_lshl_add_u32 v6, v5, 5, v6")
    a.e(f"v_lshl_add_u32 v{BA}, v3, 3, v6")
    a.e("v_and_b32 v2, 15, v1")
    a.e("v_lshrrev_b32 v3, 1, v2")
    a.e("v_xor_b32 v3, v3, v4")
    a.e("v_lshlrev_b32 v5, 7, v2")
    a.e(f"v_add_u32 v5, {AREG}, v5")
    for ks in range(2):
        a.e(f"v_xor_b32 v6, {ks*4}, v3")
        a.e(f"v_lshl_add_u32 v{BB+ks}, v6, 4, v5")
    for i in range(108):
        a.e(f"v_mov_b32 v{ACC+i}, 0")
    a.e("s_mov_b32 s20, 0")
    def setaddr():
        a.e(f"v_add_u32 v{CA}, s20, v{BA}")
        for k in range(2): a.e(f"v_add_u32 v{CB+k}, s20, v{BB+k}")
        a.e(f"s_add_u32 s20, s20, {STG}")
        a.e(f"s_cmp_ge_u32 s20, {STG*S}")
        a.e("s_cselect_b32 s20, 0, s20")
    def reads(F, ks):
        r = []
        for seg in range(3):
            for u in range(2):
                r.append(f"ds_read_b64_tr_b16 v[{F+4*seg+2*u}:{F+4*seg+2*u+1}], v{CA} offset:{seg*8192 + (ks*32+u*4)*128}")
        for nt in range(9):
            r.append(f"ds_read_b128 v[{F+12+4*nt}:{F+12+4*nt+3}], v{CB+ks} offset:{nt*2048}")
        return r
    def mfmas(F):
        m = []
        for nt in range(9):
            for seg in range(3):
                if seg == 0 and nt == 0: continue
                d = ACC + (seg*9+nt)*4
                m.append(f"v_mfma_f32_16x16x32_bf16 v[{d}:{d+3}], v[{F+4*seg}:{F+4*seg+3}], v[{F+12+4*nt}:{F+12+4*nt+3}], v[{d}:{d+3}]")
        return m
    def interleave(m, r):
        out = []
        for i, x in enumerate(m):
            out.append(x)
            if i < len(r): out.append(r[i])
        return out
    a.e("s_barrier")
    setaddr()
    for x in reads(F0, 0): a.e(x)
    a.e(f"s_mov_b32 s21, {NST}")
    a.label("L_att_loop")
    a.e("s_waitcnt lgkmcnt(0)")
    for x in interleave(mfmas(F0), reads(F1, 1)): a.e(x)
    a.e("s_waitcnt lgkmcnt(0)")
    a.e("s_sub_u32 s21, s21, 1")
    a.e("s_cmp_eq_u32 s21, 0")
    a.e("s_cbranch_scc1 L_att_last")
    a.e("s_barrier")
    setaddr()
    for x in interleave(mfmas(F1), reads(F0, 0)): a.e(x)
    a.e("s_branch L_att_loop")
    a.label("L_att_last")
    a.e("s_barrier")
    for x in mfmas(F1): a.e(x)
    a.e("v_and_b32 v2, 15, v1")
    a.e(f"s_mov_b32 s22, {PITCH}")
    a.e("v_mul_lo_u32 v2, v2, s22")
    a.e("v_lshrrev_b32 v3, 4, v1")
    a.e("v_lshl_add_u32 v2, v3, 3, v2")
    a.e("s_lshl_b32 s22, s3, 5")
    a.e("v_add_u32 v2, s22, v2")
    a.e("s_nop 7")
    t = 0
    for nt in range(9):
        for seg in range(3):
            if seg == 0 and nt == 0: continue
            d = ACC + (seg*9+nt)*4
            tmp = 32 + 2*(t % 16); t += 1
            a.e(f"v_cvt_pk_bf16_f32 v{tmp}, v{d}, v{d+1}")
            a.e(f"v_cvt_pk_bf16_f32 v{tmp+1}, v{d+2}, v{d+3}")
            a.e(f"ds_write_b64 v2, v[{tmp}:{tmp+1}] offset:{nt*16*PITCH + seg*128}")
    a.e("s_waitcnt lgkmcnt(0)")
    a.e("s_barrier")
    a.label("L_att_attn")
    a.e("s_and_b32 s18, s3, 3")
    a.e("s_lshr_b32 s19, s3, 2")
    a.e("s_lshl_b32 s19, s19, 6")
    a.e("v_add_u32 v2, s19, v1")
    a.e(f"s_mov_b32 s22, {PITCH}")
    a.e("v_mul_lo_u32 v3, v2, s22")
    a.e("s_lshl_b32 s22, s18, 5")
    a.e(f"s_add_u32 s22, s22, {2*PITCH}")
    a.e("v_add_u32 v3, s22, v3")
    Q = 8; KK = 16; VV = 80; LG = 144; O = 160; T = 180
    a.e(f"ds_read_b128 v[{Q}:{Q+3}], v3 offset:{14*PITCH}")
    a.e(f"ds_read_b128 v[{Q+4}:{Q+7}], v3 offset:{14*PITCH+16}")
    for w in range(8):
        a.e(f"ds_read_b128 v[{KK+8*w}:{KK+8*w+3}], v3 offset:{(14-2*w)*PITCH+128}")
        a.e(f"ds_read_b128 v[{KK+8*w+4}:{KK+8*w+7}], v3 offset:{(14-2*w)*PITCH+144}")
    a.e("s_lshl_b32 s22, s15, 7")
    a.e("v_add_u32 v4, s22, v2")
    for w in range(8):
        a.e(f"s_waitcnt lgkmcnt({min(15, 14-2*w)})")
        a.e(f"v_mov_b32 v{LG+w}, 0")
        for i in range(8):
            a.e(f"v_dot2_f32_bf16 v{LG+w}, v{Q+i}, v{KK+8*w+i}, v{LG+w}")
    for w in range(8):
        a.e(f"ds_read_b128 v[{VV+8*w}:{VV+8*w+3}], v3 offset:{(14-2*w)*PITCH+256}")
        a.e(f"ds_read_b128 v[{VV+8*w+4}:{VV+8*w+7}], v3 offset:{(14-2*w)*PITCH+272}")
    a.e("s_nop 3")
    for w in range(0, 8, 2):
        a.e(f"v_cvt_pk_bf16_f32 v{T+w//2}, v{LG+w}, v{LG+w+1}")
    for w in range(0, 8, 2):
        a.e(f"v_lshlrev_b32 v{LG+w}, 16, v{T+w//2}")
        a.e(f"v_and_b32 v{LG+w+1}, 0xffff0000, v{T+w//2}")
    for w in range(8):
        a.e(f"v_mul_f32 v{LG+w}, 0.25, v{LG+w}") if False else a.e(f"v_mul_f32 v{LG+w}, 0x3e800000, v{LG+w}")
    a.e("v_mov_b32 v5, 0xce6e6b28")
    for w in range(1, 8):
        a.e(f"v_cmp_gt_u32 vcc, {2*w}, v4")
        a.e("s_nop 1")
        a.e(f"v_cndmask_b32 v{LG+w}, v{LG+w}, v5, vcc")
    a.e(f"v_max3_f32 v6, v{LG}, v{LG+1}, v{LG+2}")
    a.e(f"v_max3_f32 v6, v6, v{LG+3}, v{LG+4}")
    a.e(f"v_max3_f32 v6, v6, v{LG+5}, v{LG+6}")
    a.e(f"v_max_f32 v6, v6, v{LG+7}")
    a.e("s_mov_b32 s22, 0x3fb8aa3b")
    for w in range(8):
        a.e(f"v_sub_f32 v{LG+w}, v{LG+w}, v6")
    for w in range(8):
        a.e(f"v_mul_f32 v{LG+w}, s22, v{LG+w}")
    for w in range(8):
        a.e(f"v_exp_f32 v{LG+w}, v{LG+w}")
    a.e("s_nop 0")
    a.e(f"v_add_f32 v6, v{LG}, v{LG+1}")
    for w in range(2, 8):
        a.e(f"v_add_f32 v6, v6, v{LG+w}")
    a.e("v_rcp_f32 v6, v6")
    a.e("s_nop 0")
    for w in range(8):
        a.e(f"v_mul_f32 v{LG+w}, v{LG+w}, v6")
    for w in range(0, 8, 2):
        a.e(f"v_cvt_pk_bf16_f32 v{T+w//2}, v{LG+w}, v{LG+w+1}")
    for w in range(0, 8, 2):
        a.e(f"v_lshlrev_b32 v{LG+w}, 16, v{T+w//2}")
        a.e(f"v_and_b32 v{LG+w+1}, 0xffff0000, v{T+w//2}")
    for w in range(8):
        a.e(f"s_waitcnt lgkmcnt({14-2*w})")
        for i in range(8):
            src = VV+8*w+i
            a.e(f"v_lshlrev_b32 v{T+8}, 16, v{src}")
            a.e(f"v_and_b32 v{T+9}, 0xffff0000, v{src}")
            if w == 0:
                a.e(f"v_mul_f32 v{O+2*i}, v{LG}, v{T+8}")
                a.e(f"v_mul_f32 v{O+2*i+1}, v{LG}, v{T+9}")
            else:
                a.e(f"v_fmac_f32 v{O+2*i}, v{LG+w}, v{T+8}")
                a.e(f"v_fmac_f32 v{O+2*i+1}, v{LG+w}, v{T+9}")
    for i in range(8):
        a.e(f"v_cvt_pk_bf16_f32 v{T+i}, v{O+2*i}, v{O+2*i+1}")
    srd(a, 24, 10, 11, WS_BYTES)
    a.e("v_lshlrev_b32 v4, 10, v4")
    a.e("s_lshl_b32 s22, s16, 7")
    a.e("s_lshl_b32 s23, s18, 5")
    a.e("s_add_u32 s22, s22, s23")
    a.e(f"s_add_u32 s22, s22, {WS_O}")
    a.e("v_add_u32 v4, s22, v4")
    a.e(f"buffer_store_dwordx4 v[{T}:{T+3}], v4, s[24:27], 0 offen")
    a.e(f"buffer_store_dwordx4 v[{T+4}:{T+7}], v4, s[24:27], 0 offen offset:16")

def k1(a, cfg):
    a.raw(".globl k1_kernel"); a.raw(".p2align 8"); a.raw(".type k1_kernel,@function"); a.label("k1_kernel")
    a.e("s_cmp_ge_u32 s2, 256")
    a.e("s_cbranch_scc1 L_k1_exit")
    stamp_begin(a, cfg)
    a.e("s_load_dwordx2 s[4:5], s[0:1], 0")
    a.e("s_load_dwordx4 s[6:9], s[0:1], 8") if False else None
    a.e("s_load_dwordx2 s[6:7], s[0:1], 8")
    a.e("s_load_dwordx2 s[8:9], s[0:1], 16")
    a.e("s_load_dwordx2 s[10:11], s[0:1], 80")
    wave_ids(a)
    a.e("s_cmp_ge_u32 s2, 128")
    a.e("s_cbranch_scc1 L_k1_b")
    k1_big(a, cfg)
    a.label("L_k1_b")
    a.e("s_waitcnt lgkmcnt(0)")
    if cfg.no_partb: a.e("s_branch L_k1_end")
    k1_attn(a, cfg)
    a.label("L_k1_end")
    stamp_end(a, cfg, 0)
    a.label("L_k1_exit")
    a.e("s_endpgm")

def k2(a, cfg):
    S = cfg.S2; STG = 16384
    a.raw(".globl k2_kernel"); a.raw(".p2align 8"); a.raw(".type k2_kernel,@function"); a.label("k2_kernel")
    a.e("s_cmp_ge_u32 s2, 256")
    a.e("s_cbranch_scc1 L_k2_exit")
    stamp_begin(a, cfg)
    a.e("s_load_dwordx4 s[4:7], s[0:1], 24")
    a.e("s_load_dwordx4 s[8:11], s[0:1], 56")
    a.e("s_load_dwordx2 s[12:13], s[0:1], 80")
    wave_ids(a)
    a.e("s_and_b32 s14, s2, 7")
    a.e("s_lshr_b32 s15, s2, 3")
    a.e("s_lshr_b32 s16, s15, 3")
    a.e("s_lshl_b32 s14, s14, 2")
    a.e("s_add_u32 s16, s16, s14")
    a.e("s_and_b32 s17, s15, 7")
    a.e("s_waitcnt lgkmcnt(0)")
    a.e("s_cmp_ge_u32 s3, 4")
    a.e("s_cbranch_scc0 L_k2_cons")
    srd(a, 24, 4, 5, 512*512*2)
    srd(a, 28, 6, 7, 512*512*2)
    srd(a, 36, 8, 9, 512*512*2)
    srd(a, 40, 12, 13, WS_BYTES)
    a.e("s_sub_u32 s18, s3, 4")
    a.e("v_lshrrev_b32 v2, 3, v1")
    a.e("v_and_b32 v3, 7, v1")
    a.e("v_lshrrev_b32 v4, 4, v1")
    a.e("v_xor_b32 v3, v3, v4")
    a.e("v_xor_b32 v5, 4, v3")
    a.e("s_lshl_b32 s19, s18, 4")
    a.e("v_add_u32 v2, s19, v2")
    a.e("s_lshl_b32 s19, s17, 6")
    a.e("v_add_u32 v6, s19, v2")
    a.e("v_lshlrev_b32 v6, 10, v6")
    a.e("v_lshl_add_u32 v10, v3, 4, v6")
    a.e("v_lshl_add_u32 v11, v5, 4, v6")
    a.e(f"v_add_u32 v11, {8*1024-1024}, v11")
    a.e("s_lshl_b32 s19, s16, 6")
    a.e("v_add_u32 v6, s19, v2")
    a.e("v_lshlrev_b32 v7, 11, v6")
    a.e("v_lshl_add_u32 v12, v3, 4, v7")
    a.e("v_lshl_add_u32 v13, v5, 4, v7")
    a.e(f"v_add_u32 v13, {8*2048-1024}, v13")
    a.e("v_lshlrev_b32 v7, 10, v6")
    a.e(f"v_add_u32 v7, {WS_O}, v7")
    a.e("v_lshl_add_u32 v14, v3, 4, v7")
    a.e("v_lshl_add_u32 v15, v5, 4, v7")
    a.e(f"v_add_u32 v15, {8*1024-1024}, v15")
    a.e("v_and_b32 v3, 7, v1")
    a.e("v_bfe_u32 v4, v1, 4, 1")
    a.e("v_lshlrev_b32 v4, 2, v4")
    a.e("v_xor_b32 v3, v3, v4")
    a.e("v_lshlrev_b32 v6, 10, v2")
    a.e("v_lshl_add_u32 v6, v3, 4, v6")
    a.e("s_lshl_b32 s19, s17, 7")
    a.e("v_add_u32 v16, s19, v6")
    a.e(f"v_add_u32 v17, {8*1024-1024}, v16")
    a.e("s_lshl_b32 s34, s18, 11")
    a.e("s_add_u32 s35, s34, 8192")
    NST = 24
    P = S - 1
    def issue(i):
        slot = (i % S) * STG
        a.e(f"s_add_u32 m0, s34, {slot}")
        if i < 16:
            sA = 24 if i < 8 else 28
            a.e(f"s_mov_b32 s32, {(i%8)*128}")
            a.e(f"buffer_load_dwordx4 v10, s[{sA}:{sA+3}], s32 offen lds")
            a.e(f"buffer_load_dwordx4 v11, s[{sA}:{sA+3}], s32 offen offset:1024 lds")
            a.e(f"s_add_u32 m0, s35, {slot}")
            a.e(f"s_mov_b32 s33, {i*128}")
            a.e("buffer_load_dwordx4 v12, s[40:43], s33 offen lds")
            a.e("buffer_load_dwordx4 v13, s[40:43], s33 offen offset:1024 lds")
        else:
            k = i - 16
            a.e(f"s_mov_b32 s32, {k*64*1024}")
            a.e("buffer_load_dwordx4 v16, s[36:39], s32 offen lds")
            a.e("buffer_load_dwordx4 v17, s[36:39], s32 offen offset:1024 lds")
            a.e(f"s_add_u32 m0, s35, {slot}")
            a.e(f"s_mov_b32 s33, {k*128}")
            a.e("buffer_load_dwordx4 v14, s[40:43], s33 offen lds")
            a.e("buffer_load_dwordx4 v15, s[40:43], s33 offen offset:1024 lds")
    for i in range(P): issue(i)
    for i in range(NST):
        out_after = min(P-1, NST-1-i)
        a.e(f"s_waitcnt vmcnt({4*out_after})")
        a.e("s_barrier")
        if i + P < NST: issue(i + P)
    a.e("s_branch L_k2_end")
    a.label("L_k2_cons")
    ACC1, ACC2 = 64, 80
    a.e("s_and_b32 s18, s3, 1")
    a.e("s_lshr_b32 s19, s3, 1")
    a.e("v_and_b32 v2, 31, v1")
    a.e("v_bfe_u32 v3, v2, 1, 3")
    a.e("v_lshrrev_b32 v5, 5, v1")
    a.e("v_xor_b32 v3, v3, v5")
    a.e("v_lshlrev_b32 v4, 7, v2")
    a.e("s_lshl_b32 s22, s18, 12")
    a.e("s_lshl_b32 s23, s19, 12")
    a.e("s_add_u32 s23, s23, 8192")
    for ks in range(4):
        a.e(f"v_xor_b32 v6, {ks*2}, v3")
        a.e("v_lshl_add_u32 v6, v6, 4, v4")
        a.e(f"v_add_u32 v{10+ks}, s22, v6")
        a.e(f"v_add_u32 v{14+ks}, s23, v6")
    a.e("v_bfe_u32 v2, v1, 2, 2")
    a.e("v_and_b32 v3, 3, v1")
    a.e("v_bfe_u32 v4, v1, 4, 1")
    a.e("v_lshlrev_b32 v6, 7, v2")
    a.e("v_lshl_add_u32 v6, v5, 10, v6")
    a.e("v_lshl_add_u32 v6, v4, 5, v6")
    a.e("v_lshl_add_u32 v6, v3, 3, v6")
    a.e("v_lshrrev_b32 v7, 1, v2")
    a.e("v_xor_b32 v7, s18, v7")
    a.e("v_lshl_add_u32 v18, v7, 6, v6")
    for i in range(32): a.e(f"v_mov_b32 v{ACC1+i}, 0")
    FS = [96, 128]
    def reads(i):
        F = FS[i % 2]; slot = (i % S) * STG
        r = []
        hi = slot // 65536; lo = slot % 65536
        for ks in range(4):
            if i < 16:
                r.append(f"ds_read_b128 v[{F+8*ks}:{F+8*ks+3}], v{10+ks + 10*hi} offset:{lo}")
            else:
                for u in range(2):
                    r.append(f"ds_read_b64_tr_b16 v[{F+8*ks+2*u}:{F+8*ks+2*u+1}], v{18+10*hi} offset:{lo + (ks*16+u*4)*128}")
            r.append(f"ds_read_b128 v[{F+8*ks+4}:{F+8*ks+7}], v{14+ks+10*hi} offset:{lo}")
        return r
    nhi = (S*STG + 65535)//65536
    for h in range(1, nhi):
        for j in range(9):
            a.e(f"v_add_u32 v{10+j+10*h}, {65536*h}, v{10+j}")
    def mf(i):
        F = FS[i % 2]; acc = ACC1 if i < 16 else ACC2
        return [f"v_mfma_f32_32x32x16_bf16 v[{acc}:{acc+15}], v[{F+8*ks}:{F+8*ks+3}], v[{F+8*ks+4}:{F+8*ks+7}], v[{acc}:{acc+15}]" for ks in range(4)]
    a.e("s_barrier")
    for x in reads(0): a.e(x)
    for i in range(NST):
        a.e("s_waitcnt lgkmcnt(0)")
        if i + 1 < NST:
            a.e("s_barrier")
            r = reads(i+1)
        else:
            r = []
        m = mf(i)
        per = (len(r) + 3)//4
        for k in range(4):
            for x in r[k*per:(k+1)*per]: a.e(x)
            a.e(m[k])
    srd(a, 24, 10, 11, 2048*1024*2)
    a.e("v_and_b32 v2, 31, v1")
    a.e("s_lshl_b32 s22, s16, 6")
    a.e("s_lshl_b32 s23, s19, 5")
    a.e("s_add_u32 s22, s22, s23")
    a.e("v_add_u32 v2, s22, v2")
    a.e("v_lshlrev_b32 v2, 11, v2")
    a.e("v_lshl_add_u32 v2, v5, 4, v2")
    a.e("s_lshl_b32 s22, s17, 7")
    a.e("s_lshl_b32 s23, s18, 6")
    a.e("s_add_u32 s22, s22, s23")
    a.e("v_add_u32 v2, s22, v2")
    store_tile32(a, ACC1, 32, 2, 24, 0)
    a.e("s_nop 7"); a.e("s_nop 7")
    store_tile32(a, ACC2, 40, 2, 24, 1024)
    a.label("L_k2_end")
    stamp_end(a, cfg, 1)
    a.label("L_k2_exit")
    a.e("s_endpgm")

def gen(cfg):
    global CFG
    CFG = cfg
    a = Asm()
    lds1 = max(cfg.S1*32768, cfg.SB*(24576+20480))
    lds2 = cfg.S2*16384
    a.raw(HDR.rstrip("\n"))
    a.raw(f"; @launch kernel=k1_kernel grid=(256,1,1) block=(512,1,1) lds={lds1}")
    a.raw(f"; @launch kernel=k2_kernel grid=(256,1,1) block=(512,1,1) lds={lds2}")
    a.raw('.amdgcn_target "amdgcn-amd-amdhsa--gfx950"')
    a.raw(".text")
    k1(a, cfg)
    k2(a, cfg)
    a.raw('.section .rodata,"a"')
    for l in kdesc("k1_kernel", 256): a.raw(l)
    for l in kdesc("k2_kernel", 256): a.raw(l)
    return a.text()

if __name__ == "__main__":
    cfg = Cfg()
    open("v1.s", "w").write(gen(cfg))
    cfg.stamps = True; cfg.steps = True
    open("v1_steps.s", "w").write(gen(cfg))
    cfg.no_partb = True
    open("v1_steps_nopb.s", "w").write(gen(cfg))
    cfg.no_mfma = True; cfg.no_reads = True
    open("v1_steps_nopb_dma.s", "w").write(gen(cfg))
```

```python
import sys
from asmlib import *
NAME = "concat_heads__spectral_fnet__sliding_local_dilated__prompt"
HDR = open("cdna_kernels/%s.s.ref" % NAME).read().split("; Override launch")[0]

WS_CD = 0
WS_O = 4 << 20
WS_BYTES = 8 << 20

class Cfg:
    S1 = 5
    S2 = 8
    SB = 3
    stamps = False
    no_mfma = False
    no_reads = False
    no_partb = False
    steps = False
    phases = False
    nt_ws = False
    nt_xb = False
    order = 'stag'
    look = 2
    prefetch = True

def wave_ids(a):
    a.e("v_lshrrev_b32 v1, 6, v0")
    a.e("s_nop 0")
    a.e("v_readfirstlane_b32 s3, v1")
    a.e("v_and_b32 v1, 63, v0")

def stamp_begin(a, cfg):
    if cfg.stamps: a.e("s_memrealtime s[96:97]")
def stamp_end(a, cfg, slot, ws_lo=None):
    if not cfg.stamps: return
    L = a.newlabel("L_st")
    a.e("s_memrealtime s[98:99]")
    a.e("s_load_dwordx2 s[90:91], s[0:1], 80")
    a.e("s_waitcnt lgkmcnt(0)")
    a.e("s_add_u32 s92, s90, 0x2000000")
    a.e("s_addc_u32 s93, s91, 0")
    a.e("s_mov_b32 s94, 0x100000")
    a.e("s_mov_b32 s95, 0x00020000")
    a.e("v_mov_b32 v250, s96"); a.e("v_mov_b32 v251, s97"); a.e("v_mov_b32 v252, s98"); a.e("v_mov_b32 v253, s99")
    a.e("s_lshl_b32 s90, s2, 4")
    a.e(f"s_add_u32 s90, s90, {slot*4096}")
    a.e("v_mov_b32 v254, s90")
    a.e("v_cmp_eq_u32 vcc, 0, v0")
    a.e("s_and_saveexec_b64 s[90:91], vcc")
    a.e(f"s_cbranch_execz {L}")
    a.e("buffer_store_dwordx4 v[250:253], v254, s[92:95], 0 offen")
    a.label(L)
    a.e("s_mov_b64 exec, -1")

def step_stamp(a, cfg):
    if not cfg.steps: return
    a.e("s_memtime s[80:81]")
    a.e("s_waitcnt lgkmcnt(0)")
    a.e("v_mov_b32 v202, s80")
    a.e("v_cmp_eq_u32 vcc, s82, v1")
    a.e("s_nop 1")
    a.e("v_cndmask_b32 v200, v200, v202, vcc")
    a.e("s_add_u32 s82, s82, 1")
def step_dump(a, cfg):
    if not cfg.steps: return
    L = a.newlabel("L_sd")
    a.e("s_cmp_lg_u32 s3, 4")
    a.e(f"s_cbranch_scc1 {L}")
    a.e("s_memrealtime s[80:81]")
    a.e("s_memtime s[84:85]")
    a.e("s_waitcnt lgkmcnt(0)")
    a.e("v_writelane_b32 v200, s80, 62")
    a.e("v_writelane_b32 v200, s84, 63")
    a.e("s_add_u32 s92, s10, 0x3000000")
    a.e("s_addc_u32 s93, s11, 0")
    a.e("s_mov_b32 s94, 0x100000")
    a.e("s_mov_b32 s95, 0x00020000")
    a.e("s_lshl_b32 s90, s2, 8")
    a.e("v_lshl_add_u32 v201, v1, 2, s90")
    a.e("buffer_store_dword v200, v201, s[92:95], 0 offen")
    a.label(L)
def ph_init(a, cfg):
    if not cfg.phases: return
    a.e("v_mov_b32 v240, 0")
    a.e("s_memrealtime s[80:81]")
    a.e("s_memtime s[84:85]")
    a.e("s_waitcnt lgkmcnt(0)")
    a.e("v_writelane_b32 v240, s80, 60")
    a.e("v_writelane_b32 v240, s84, 61")
def ph_stamp(a, cfg, idx):
    if not cfg.phases: return
    a.e("s_memtime s[80:81]")
    a.e("s_waitcnt lgkmcnt(0)")
    a.e(f"v_writelane_b32 v240, s80, {idx}")
def ph_dump(a, cfg, wave, off):
    if not cfg.phases: return
    L = a.newlabel("L_pd")
    a.e(f"s_cmp_lg_u32 s3, {wave}")
    a.e(f"s_cbranch_scc1 {L}")
    a.e("s_memrealtime s[80:81]")
    a.e("s_memtime s[84:85]")
    a.e("s_load_dwordx2 s[86:87], s[0:1], 80")
    a.e("s_waitcnt lgkmcnt(0)")
    a.e("v_writelane_b32 v240, s80, 62")
    a.e("v_writelane_b32 v240, s84, 63")
    a.e(f"s_add_u32 s92, s86, {0x3000000 + off}")
    a.e("s_addc_u32 s93, s87, 0")
    a.e("s_mov_b32 s94, 0x100000")
    a.e("s_mov_b32 s95, 0x00020000")
    a.e("s_lshl_b32 s90, s2, 8")
    a.e("v_lshl_add_u32 v241, v1, 2, s90")
    a.e("buffer_store_dword v240, v241, s[92:95], 0 offen")
    a.label(L)
CFG = None
def loader_loop(a, nsteps, S, issue, per_stage, advance):
    cfg = CFG
    if cfg.steps:
        a.e("v_mov_b32 v200, 0")
        a.e("s_memrealtime s[80:81]")
        a.e("s_memtime s[84:85]")
        a.e("s_waitcnt lgkmcnt(0)")
        a.e("v_writelane_b32 v200, s80, 60")
        a.e("v_writelane_b32 v200, s84, 61")
        a.e("s_mov_b32 s82, 0")
    P = S - 1
    for i in range(min(P, nsteps)):
        issue(); advance()
    main = nsteps - P
    if main > 0:
        L = a.newlabel("L_ld")
        a.e(f"s_mov_b32 s21, {main}")
        a.label(L)
        a.e(f"s_waitcnt vmcnt({per_stage*(P-1)})")
        a.e("s_barrier")
        issue(); advance()
        step_stamp(a, cfg)
        a.e("s_sub_u32 s21, s21, 1")
        a.e("s_cmp_lg_u32 s21, 0")
        a.e(f"s_cbranch_scc1 {L}")
    for i in range(max(main,0), nsteps):
        rem = nsteps - 1 - i
        a.e(f"s_waitcnt vmcnt({per_stage*rem})")
        a.e("s_barrier")
        step_stamp(a, cfg)
    step_dump(a, cfg)

def store_tile32(a, acc, tmp, voff, srdreg, imm, xorreg=None):
    for g in range(4):
        a.e(f"v_cvt_pk_bf16_f32 v{tmp+2*g}, v{acc+4*g}, v{acc+4*g+1}")
        a.e(f"v_cvt_pk_bf16_f32 v{tmp+2*g+1}, v{acc+4*g+2}, v{acc+4*g+3}")
    if xorreg is not None:
        for i in range(8):
            a.e(f"v_xor_b32 v{tmp+i}, s{xorreg}, v{tmp+i}")
    a.e("s_nop 1")
    for g in (0, 2):
        a.e(f"v_permlane32_swap_b32 v{tmp+2*g}, v{tmp+2*g+2}")
        a.e(f"v_permlane32_swap_b32 v{tmp+2*g+1}, v{tmp+2*g+3}")
    a.e("s_nop 1")
    for g in (0, 2):
        a.e(f"buffer_store_dwordx4 v[{tmp+2*g}:{tmp+2*g+3}], v{voff}, s[{srdreg}:{srdreg+3}], 0 offen offset:{imm + g*16}")

def k1_big(a, cfg):
    S = cfg.S1; STG = 32768; NST = 32
    a.c("---- big GEMM role: xcd=s2&7, i=s2>>3 (0..15)")
    a.e("s_and_b32 s12, s2, 7")
    a.e("s_lshr_b32 s13, s2, 3")
    a.e("s_lshr_b32 s14, s13, 3")
    a.e("s_bfe_u32 s15, s13, 0x10002")
    a.e("s_lshl_b32 s12, s12, 1")
    a.e("s_add_u32 s15, s15, s12")
    a.e("s_and_b32 s16, s13, 3")
    a.e("s_lshr_b32 s17, s13, 2")
    a.e("s_add_u32 s17, s17, s16")
    a.e("s_and_b32 s17, s17, 3")
    a.e("s_waitcnt lgkmcnt(0)")
    a.e("s_cmp_ge_u32 s3, 4")
    a.e("s_cbranch_scc0 L_big_cons")
    a.c("loader waves")
    srd(a, 24, 4, 5, 2048*512*2)
    a.e("s_cmp_eq_u32 s14, 0")
    a.e("s_cselect_b32 s28, s6, s8")
    a.e("s_cselect_b32 s29, s7, s9")
    a.e(f"s_mov_b32 s30, {2048*2048*2}")
    a.e("s_mov_b32 s31, 0x00020000")
    a.e("s_sub_u32 s18, s3, 4")
    a.e("v_lshrrev_b32 v2, 4, v1")
    a.e("v_and_b32 v3, 15, v1")
    a.e("v_lshlrev_b32 v4, 2, v2")
    a.e("v_xor_b32 v3, v3, v4")
    a.e("s_lshl_b32 s19, s18, 4")
    a.e("v_add_u32 v4, s19, v2")
    a.e("v_lshlrev_b32 v4, 10, v4")
    a.e("v_lshl_add_u32 v4, v3, 4, v4")
    a.e("s_lshl_b32 s19, s16, 8")
    a.e("v_add_u32 v4, s19, v4")
    for j in range(4):
        a.e(f"v_add_u32 v{10+j}, {j*4096 - j*1024}, v4")
    a.e("v_lshrrev_b32 v4, 3, v1")
    a.e("v_and_b32 v3, 7, v1")
    a.e("v_xor_b32 v3, v3, v2")
    a.e("v_xor_b32 v5, 4, v3")
    a.e("s_lshl_b32 s19, s18, 5")
    a.e("s_lshl_b32 s22, s15, 7")
    a.e("s_add_u32 s19, s19, s22")
    a.e("v_add_u32 v4, s19, v4")
    a.e("v_lshlrev_b32 v4, 12, v4")
    a.e("v_lshl_add_u32 v6, v3, 4, v4")
    a.e("v_lshl_add_u32 v7, v5, 4, v4")
    for j in range(4):
        a.e(f"v_add_u32 v{14+j}, {j*8*4096 - j*1024}, v{6 if j%2==0 else 7}")
    if cfg.order == 'spread':
        a.e("v_add_u32 v20, -1, v1")
        a.e("v_cmp_lt_u32 vcc, 28, v1")
        a.e("s_nop 1")
        a.e("v_cndmask_b32 v20, v20, v1, vcc")
        a.e("v_and_b32 v21, 3, v20")
        a.e("v_and_b32 v22, -4, v20")
        a.e("v_add_u32 v23, s17, v21")
        a.e("v_and_b32 v23, 3, v23")
        a.e("v_add_u32 v23, v22, v23")
        a.e("v_add_u32 v24, 4, v23")
        a.e("v_cmp_eq_u32 vcc, 0, v21")
        a.e("s_nop 1")
        a.e("v_cndmask_b32 v23, v23, v24, vcc")
        a.e("v_mov_b32 v24, s17")
        a.e("v_cmp_eq_u32 vcc, 0, v1")
        a.e("s_nop 1")
        a.e("v_cndmask_b32 v23, v23, v24, vcc")
    elif cfg.order == 'stag':
        L = cfg.look; NF = 4*(8-L)
        a.e(f"v_add_u32 v20, {-L}, v1")
        a.e("v_and_b32 v21, 3, v20")
        a.e("v_and_b32 v22, -4, v20")
        a.e("v_cmp_lt_u32 vcc, s17, v21")
        a.e("s_nop 1")
        a.e("v_subbrev_co_u32 v25, vcc, 0, v21, vcc")
        a.e(f"v_add_u32 v26, {-NF}, v20")
        a.e("v_mul_u32_u24 v27, 11, v26")
        a.e("v_lshrrev_b32 v27, 5, v27")
        a.e("v_mul_u32_u24 v28, 3, v27")
        a.e("v_sub_u32 v28, v26, v28")
        a.e(f"v_lshl_add_u32 v27, v27, 2, {NF}")
        a.e(f"v_cmp_le_u32 vcc, {NF+L}, v1")
        a.e("s_nop 1")
        a.e("v_cndmask_b32 v22, v22, v27, vcc")
        a.e("v_cndmask_b32 v25, v25, v28, vcc")
        a.e("v_cndmask_b32 v21, v21, -1, vcc") if False else None
        a.e("v_mov_b32 v29, -1")
        a.e("v_cndmask_b32 v21, v21, v29, vcc")
        a.e("s_add_u32 s36, s17, 1")
        a.e("v_add_u32 v23, s36, v25")
        a.e("v_and_b32 v23, 3, v23")
        a.e("v_add_u32 v23, v22, v23")
        a.e(f"s_add_u32 s36, s17, {4*L}")
        a.e("v_add_u32 v24, s36, v22")
        a.e("v_cmp_eq_u32 vcc, s17, v21")
        a.e("s_nop 1")
        a.e("v_cndmask_b32 v23, v23, v24, vcc")
        a.e("v_lshl_add_u32 v24, v1, 2, s17")
        a.e(f"v_cmp_gt_u32 vcc, {L}, v1")
        a.e("s_nop 1")
        a.e("v_cndmask_b32 v23, v23, v24, vcc")
    elif cfg.order == 'latin':
        a.e("s_lshl_b32 s36, s17, 3")
        a.e("v_add_u32 v23, s36, v1")
        a.e("v_and_b32 v23, 31, v23")
    else:
        a.e("v_mov_b32 v23, v1")
    a.e("s_mov_b32 s36, 0")
    a.e("s_lshl_b32 s34, s18, 12")
    a.e("s_add_u32 s35, s34, 16384")
    a.e("s_mov_b32 s20, 0")
    def nextk():
        a.e("v_readlane_b32 s37, v23, s36")
        a.e("s_add_u32 s36, s36, 1")
        a.e("s_and_b32 s36, s36, 31")
        a.e("s_lshl_b32 s32, s37, 16")
        a.e("s_lshl_b32 s33, s37, 7")
    nextk()
    ntw = " nt" if cfg.nt_ws else ""
    def issue():
        a.e("s_add_u32 m0, s20, s35")
        a.e("s_nop 0")
        for j in range(4):
            a.e(f"buffer_load_dwordx4 v{14+j}, s[28:31], s33 offen offset:{j*1024}{ntw} lds")
        a.e("s_add_u32 m0, s20, s34")
        a.e("s_nop 0")
        for j in range(4):
            a.e(f"buffer_load_dwordx4 v{10+j}, s[24:27], s32 offen offset:{j*1024} lds")
    def advance():
        nextk()
        a.e(f"s_add_u32 s20, s20, {STG}")
        a.e(f"s_cmp_ge_u32 s20, {STG*S}")
        a.e("s_cselect_b32 s20, 0, s20")
    loader_loop(a, NST, S, issue, 8, advance)
    a.e("s_branch L_k1_end")
    a.label("L_big_cons")
    ACC = 64
    FX, FY = 32, 48
    BA, BB = 10, 12
    CA, CB = 16, 18
    a.e("s_and_b32 s18, s3, 1")
    a.e("s_lshr_b32 s19, s3, 1")
    a.e("v_bfe_u32 v2, v1, 2, 2")
    a.e("v_and_b32 v3, 3, v1")
    a.e("v_bfe_u32 v4, v1, 4, 1")
    a.e("v_lshrrev_b32 v5, 5, v1")
    a.e("v_lshlrev_b32 v6, 8, v2")
    a.e("v_lshl_add_u32 v6, v5, 11, v6")
    a.e("v_lshl_add_u32 v6, v4, 5, v6")
    a.e("v_lshl_add_u32 v6, v3, 3, v6")
    a.e("s_lshl_b32 s22, s18, 1")
    for j in range(2):
        a.e(f"s_add_u32 s23, s22, {j}")
        a.e("v_xor_b32 v7, s23, v2")
        a.e(f"v_lshl_add_u32 v{BA+j}, v7, 6, v6")
    a.e("v_and_b32 v2, 31, v1")
    a.e("s_lshl_b32 s22, s19, 6")
    a.e("v_add_u32 v2, s22, v2")
    a.e("v_bfe_u32 v3, v2, 1, 3")
    a.e("v_xor_b32 v3, v3, v5")
    a.e("v_lshlrev_b32 v4, 7, v2")
    a.e("v_add_u32 v4, 16384, v4")
    for ks in range(4):
        a.e(f"v_xor_b32 v6, {ks*2}, v3")
        a.e(f"v_lshl_add_u32 v{BB+ks}, v6, 4, v4")
    for i in range(64):
        a.e(f"v_mov_b32 v{ACC+i}, 0")
    a.e("s_mov_b32 s20, 0")
    def setaddr():
        for j in range(2): a.e(f"v_add_u32 v{CA+j}, s20, v{BA+j}")
        for k in range(4): a.e(f"v_add_u32 v{CB+k}, s20, v{BB+k}")
        a.e(f"s_add_u32 s20, s20, {STG}")
        a.e(f"s_cmp_ge_u32 s20, {STG*S}")
        a.e("s_cselect_b32 s20, 0, s20")
    def reads(F, ks):
        r = []
        r.append(f"ds_read_b128 v[{F+8}:{F+11}], v{CB+ks}")
        for u in range(2):
            r.append(f"ds_read_b64_tr_b16 v[{F+2*u}:{F+2*u+1}], v{CA} offset:{(ks*16+u*4)*256}")
        r.append(f"ds_read_b128 v[{F+12}:{F+15}], v{CB+ks} offset:4096")
        for u in range(2):
            r.append(f"ds_read_b64_tr_b16 v[{F+4+2*u}:{F+4+2*u+1}], v{CA+1} offset:{(ks*16+u*4)*256}")
        return r
    def mfmas(F):
        m = []
        for (jm, jn) in ((0,0),(0,1),(1,0),(1,1)):
            d = ACC + (jm*2+jn)*16
            m.append(f"v_mfma_f32_32x32x16_bf16 v[{d}:{d+15}], v[{F+4*jm}:{F+4*jm+3}], v[{F+8+4*jn}:{F+8+4*jn+3}], v[{d}:{d+15}]")
        return m
    def interleave(m, r):
        if cfg.no_mfma: m = ["s_nop 0"]*4
        if cfg.no_reads: r = []
        out = []
        for i in range(4):
            out.append(m[i])
            out += r[2*i:2*i+2]
        return out
    FS = [128, 144, 160, 176]
    def mix(m, r, pre=()):
        if cfg.no_mfma: m = ["s_nop 0"]*4
        if cfg.no_reads: r = []
        out = [m[0]] + list(pre) + r[0:3] + [m[1]] + r[3:6] + [m[2], m[3]]
        return out
    def setaddr_l():
        l = [f"v_add_u32 v{CA+j}, s20, v{BA+j}" for j in range(2)] + [f"v_add_u32 v{CB+k}, s20, v{BB+k}" for k in range(4)]
        l += [f"s_add_u32 s20, s20, {STG}", f"s_cmp_ge_u32 s20, {STG*S}", "s_cselect_b32 s20, 0, s20"]
        return l
    ph_stamp(a, cfg, 0)
    a.e("s_barrier")
    ph_stamp(a, cfg, 1)
    setaddr()
    for x in reads(FS[0], 0): a.e(x)
    for x in reads(FS[1], 1): a.e(x)
    a.e(f"s_mov_b32 s21, {NST-1}")
    a.label("L_big_loop")
    a.e("s_waitcnt lgkmcnt(6)")
    for x in mix(mfmas(FS[0]), reads(FS[2], 2)): a.e(x)
    a.e("s_waitcnt lgkmcnt(6)")
    for x in mix(mfmas(FS[1]), reads(FS[3], 3)): a.e(x)
    a.e("s_waitcnt lgkmcnt(0)")
    for x in mix(mfmas(FS[2]), reads(FS[0], 0), pre=["s_barrier"] + setaddr_l()): a.e(x)
    for x in mix(mfmas(FS[3]), reads(FS[1], 1)): a.e(x)
    a.e("s_sub_u32 s21, s21, 1")
    a.e("s_cmp_lg_u32 s21, 0")
    a.e("s_cbranch_scc1 L_big_loop")
    a.e("s_waitcnt lgkmcnt(6)")
    for x in mix(mfmas(FS[0]), reads(FS[2], 2)): a.e(x)
    a.e("s_waitcnt lgkmcnt(6)")
    for x in mix(mfmas(FS[1]), reads(FS[3], 3)): a.e(x)
    a.e("s_waitcnt lgkmcnt(6)")
    for x in mfmas(FS[2]): a.e(x)
    a.e("s_waitcnt lgkmcnt(0)")
    for x in mfmas(FS[3]): a.e(x)
    ph_stamp(a, cfg, 2)
    srd(a, 24, 10, 11, WS_BYTES)
    a.e("s_cmp_eq_u32 s14, 0")
    a.e("s_cselect_b32 s22, 0, 0x80008000")
    a.e("v_and_b32 v2, 31, v1")
    a.e("s_lshl_b32 s23, s15, 7")
    a.e("s_lshl_b32 s28, s19, 6")
    a.e("s_add_u32 s23, s23, s28")
    a.e("v_add_u32 v2, s23, v2")
    a.e("v_lshlrev_b32 v2, 11, v2")
    a.e("v_lshrrev_b32 v3, 5, v1")
    a.e("v_lshl_add_u32 v2, v3, 4, v2")
    a.e("s_lshl_b32 s23, s14, 10")
    a.e("s_lshl_b32 s28, s16, 8")
    a.e("s_add_u32 s23, s23, s28")
    a.e("s_lshl_b32 s28, s18, 7")
    a.e("s_add_u32 s23, s23, s28")
    a.e("v_add_u32 v2, s23, v2")
    a.e("v_add_u32 v3, 0x10000, v2")
    a.e("s_nop 7")
    a.e("s_nop 7")
    t = 0
    for jm in range(2):
        for jn in range(2):
            store_tile32(a, ACC+(jm*2+jn)*16, 32 + 8*(t%4), 2+jn, 24, jm*64, xorreg=22)
            t += 1
    ph_stamp(a, cfg, 3)
    if cfg.phases: a.e("s_waitcnt vmcnt(0)")
    ph_stamp(a, cfg, 4)
    a.e("s_branch L_k1_end")

def k1_attn(a, cfg):
    S = cfg.SB; NST = 8
    AREG = 24576
    STG = AREG + 20*1024
    PITCH = 400
    ntx = " nt" if cfg.nt_xb else ""
    a.c("---- part B role: xcd=s2&7, i=(s2>>3)-16")
    a.e("s_load_dwordx4 s[4:7], s[0:1], 40")
    a.e("s_and_b32 s12, s2, 7")
    a.e("s_lshr_b32 s13, s2, 3")
    a.e("s_sub_u32 s13, s13, 16")
    a.e("s_lshr_b32 s14, s13, 3")
    a.e("s_lshl_b32 s12, s12, 1")
    a.e("s_add_u32 s15, s12, s14")
    a.e("s_and_b32 s16, s13, 7")
    a.e("s_lshl_b32 s17, s14, 2")
    a.e("s_add_u32 s17, s17, s16")
    a.e("s_and_b32 s17, s17, 7")
    a.e("s_waitcnt lgkmcnt(0)")
    a.e("s_cmp_ge_u32 s3, 4")
    a.e("s_cbranch_scc0 L_att_cons")
    srd(a, 24, 6, 7, 512*1536*2)
    srd(a, 28, 4, 5, 2048*512*2)
    a.e("s_sub_u32 s18, s3, 4")
    a.e("v_lshrrev_b32 v2, 3, v1")
    a.e("v_and_b32 v3, 7, v1")
    a.e("v_bfe_u32 v4, v1, 4, 1")
    a.e("v_lshlrev_b32 v4, 1, v4")
    a.e("v_xor_b32 v3, v3, v4")
    a.e("v_xor_b32 v5, 4, v3")
    a.e("s_lshl_b32 s19, s18, 4")
    a.e("v_add_u32 v2, s19, v2")
    a.e("s_mov_b32 s22, 3072")
    a.e("v_mul_lo_u32 v2, v2, s22")
    a.e("s_lshl_b32 s19, s16, 7")
    a.e("v_add_u32 v2, s19, v2")
    a.e("v_lshl_add_u32 v6, v3, 4, v2")
    a.e("v_lshl_add_u32 v7, v5, 4, v2")
    a.e(f"v_add_u32 v7, {8*3072 - 1024}, v7")
    for seg in range(3):
        a.e(f"v_add_u32 v{10+2*seg}, {seg*1024}, v6")
        a.e(f"v_add_u32 v{11+2*seg}, {seg*1024}, v7")
    a.e("v_lshrrev_b32 v2, 3, v1")
    a.e("v_and_b32 v3, 7, v1")
    a.e("v_lshrrev_b32 v4, 4, v1")
    a.e("v_xor_b32 v3, v3, v4")
    a.e("s_and_b32 s19, s18, 1")
    a.e("s_lshl_b32 s19, s19, 2")
    a.e("v_xor_b32 v3, s19, v3")
    a.e("s_lshl_b32 s19, s15, 7")
    a.e("s_sub_u32 s19, s19, 16")
    a.e("s_lshl_b32 s22, s18, 3")
    a.e("s_add_u32 s19, s19, s22")
    a.e("v_add_u32 v2, s19, v2")
    a.e("v_lshlrev_b32 v2, 10, v2")
    a.e("v_lshl_add_u32 v2, v3, 4, v2")
    for j in range(4):
        a.e(f"v_add_u32 v{20+j}, {j*32*1024}, v2")
    a.e("s_cmp_lt_u32 s18, 2")
    a.e("s_cselect_b32 s36, 16, 14")
    a.e("s_lshl_b32 s22, s36, 13")
    a.e("v_add_u32 v24, s22, v2")
    a.e("s_lshl_b32 s36, s36, 10")
    a.e("s_mul_i32 s32, s17, 196608")
    a.e("s_lshl_b32 s33, s17, 7")
    a.e("s_lshl_b32 s34, s18, 11")
    a.e("s_lshl_b32 s35, s18, 10")
    a.e(f"s_add_u32 s35, s35, {AREG}")
    a.e("s_add_u32 s36, s36, s35")
    a.e("s_mov_b32 s20, 0")
    def issue():
        a.e("s_add_u32 s37, s20, s34")
        for seg in range(3):
            a.e(f"s_add_u32 m0, s37, {seg*8192}")
            a.e("s_nop 0")
            a.e(f"buffer_load_dwordx4 v{10+2*seg}, s[24:27], s32 offen lds")
            a.e(f"buffer_load_dwordx4 v{11+2*seg}, s[24:27], s32 offen offset:1024 lds")
        a.e("s_add_u32 s37, s20, s35")
        for j in range(4):
            a.e(f"s_add_u32 m0, s37, {j*4096}")
            a.e("s_nop 0")
            a.e(f"buffer_load_dwordx4 v{20+j}, s[28:31], s33 offen{ntx} lds")
        a.e("s_add_u32 m0, s20, s36")
        a.e("s_nop 0")
        a.e(f"buffer_load_dwordx4 v24, s[28:31], s33 offen{ntx} lds")
    def advance():
        a.e("s_add_u32 s32, s32, 196608")
        a.e(f"s_cmp_ge_u32 s32, {512*3072}")
        a.e("s_cselect_b32 s32, 0, s32")
        a.e("s_add_u32 s33, s33, 128")
        a.e("s_and_b32 s33, s33, 0x3ff")
        a.e(f"s_add_u32 s20, s20, {STG}")
        a.e(f"s_cmp_ge_u32 s20, {STG*S}")
        a.e("s_cselect_b32 s20, 0, s20")
    loader_loop(a, NST, S, issue, 11, advance)
    if cfg.prefetch:
        a.e("s_load_dwordx4 s[40:43], s[0:1], 24")
        a.e("s_load_dwordx2 s[44:45], s[0:1], 56")
        a.e("s_lshl_b32 s19, s13, 2")
        a.e("s_add_u32 s19, s19, s18")
        a.e("s_lshl_b32 s19, s19, 13")
        a.e("v_lshl_add_u32 v2, v1, 4, s19")
        a.e("s_waitcnt lgkmcnt(0)")
        for m in range(3):
            srd(a, 48, 40+2*m, 41+2*m, 512*512*2)
            for j in range(4):
                a.e(f"buffer_load_dwordx4 v[{200+4*j}:{203+4*j}], v2, s[48:51], 0 offen offset:{j*1024}")
            a.e("s_movk_i32 s46, 0x1000")
            for j in range(4):
                a.e(f"buffer_load_dwordx4 v[{216+4*j}:{219+4*j}], v2, s[48:51], s46 offen offset:{j*1024}")
    a.e("s_barrier")
    a.e("s_barrier")
    a.e("s_branch L_att_attn")
    a.label("L_att_cons")
    ACC = 128
    F0, F1 = 32, 80
    BA, BB = 10, 12
    CA, CB = 16, 18
    a.e("v_bfe_u32 v2, v1, 2, 2")
    a.e("v_and_b32 v3, 3, v1")
    a.e("v_lshrrev_b32 v4, 4, v1")
    a.e("v_lshrrev_b32 v5, 1, v2")
    a.e("v_and_b32 v6, 1, v4")
    a.e("v_lshl_or_b32 v5, v6, 1, v5")
    a.e("v_xor_b32 v5, s3, v5")
    a.e("v_lshlrev_b32 v6, 7, v2")
    a.e("v_lshl_add_u32 v6, v4, 10, v6")
    a.e("v_lshl_add_u32 v6, v5, 5, v6")
    a.e(f"v_lshl_add_u32 v{BA}, v3, 3, v6")
    a.e("v_and_b32 v2, 15, v1")
    a.e("v_lshrrev_b32 v3, 1, v2")
    a.e("v_xor_b32 v3, v3, v4")
    a.e("v_lshlrev_b32 v5, 7, v2")
    a.e(f"v_add_u32 v5, {AREG}, v5")
    for ks in range(2):
        a.e(f"v_xor_b32 v6, {ks*4}, v3")
        a.e(f"v_lshl_add_u32 v{BB+ks}, v6, 4, v5")
    for i in range(108):
        a.e(f"v_mov_b32 v{ACC+i}, 0")
    a.e("s_mov_b32 s20, 0")
    def setaddr():
        a.e(f"v_add_u32 v{CA}, s20, v{BA}")
        for k in range(2): a.e(f"v_add_u32 v{CB+k}, s20, v{BB+k}")
        a.e(f"s_add_u32 s20, s20, {STG}")
        a.e(f"s_cmp_ge_u32 s20, {STG*S}")
        a.e("s_cselect_b32 s20, 0, s20")
    def reads(F, ks):
        r = []
        for seg in range(3):
            for u in range(2):
                r.append(f"ds_read_b64_tr_b16 v[{F+4*seg+2*u}:{F+4*seg+2*u+1}], v{CA} offset:{seg*8192 + (ks*32+u*4)*128}")
        for nt in range(9):
            r.append(f"ds_read_b128 v[{F+12+4*nt}:{F+12+4*nt+3}], v{CB+ks} offset:{nt*2048}")
        return r
    def mfmas(F):
        m = []
        for nt in range(9):
            for seg in range(3):
                if seg == 0 and nt == 0: continue
                d = ACC + (seg*9+nt)*4
                m.append(f"v_mfma_f32_16x16x32_bf16 v[{d}:{d+3}], v[{F+4*seg}:{F+4*seg+3}], v[{F+12+4*nt}:{F+12+4*nt+3}], v[{d}:{d+3}]")
        return m
    def interleave(m, r):
        out = []
        for i, x in enumerate(m):
            out.append(x)
            if i < len(r): out.append(r[i])
        return out
    ph_stamp(a, cfg, 0)
    a.e("s_barrier")
    ph_stamp(a, cfg, 1)
    setaddr()
    for x in reads(F0, 0): a.e(x)
    a.e(f"s_mov_b32 s21, {NST}")
    a.label("L_att_loop")
    a.e("s_waitcnt lgkmcnt(0)")
    for x in interleave(mfmas(F0), reads(F1, 1)): a.e(x)
    a.e("s_waitcnt lgkmcnt(0)")
    a.e("s_sub_u32 s21, s21, 1")
    a.e("s_cmp_eq_u32 s21, 0")
    a.e("s_cbranch_scc1 L_att_last")
    a.e("s_barrier")
    setaddr()
    for x in interleave(mfmas(F1), reads(F0, 0)): a.e(x)
    a.e("s_branch L_att_loop")
    a.label("L_att_last")
    a.e("s_barrier")
    ph_stamp(a, cfg, 2)
    for x in mfmas(F1): a.e(x)
    a.e("v_and_b32 v2, 15, v1")
    a.e(f"s_mov_b32 s22, {PITCH}")
    a.e("v_mul_lo_u32 v2, v2, s22")
    a.e("v_lshrrev_b32 v3, 4, v1")
    a.e("v_lshl_add_u32 v2, v3, 3, v2")
    a.e("s_lshl_b32 s22, s3, 5")
    a.e("v_add_u32 v2, s22, v2")
    a.e("s_nop 7")
    t = 0
    for nt in range(9):
        for seg in range(3):
            if seg == 0 and nt == 0: continue
            d = ACC + (seg*9+nt)*4
            tmp = 32 + 2*(t % 16); t += 1
            a.e(f"v_cvt_pk_bf16_f32 v{tmp}, v{d}, v{d+1}")
            a.e(f"v_cvt_pk_bf16_f32 v{tmp+1}, v{d+2}, v{d+3}")
            a.e(f"ds_write_b64 v2, v[{tmp}:{tmp+1}] offset:{nt*16*PITCH + seg*128}")
    a.e("s_waitcnt lgkmcnt(0)")
    a.e("s_barrier")
    a.label("L_att_attn")
    ph_stamp(a, cfg, 3)
    a.e("s_and_b32 s18, s3, 3")
    a.e("s_lshr_b32 s19, s3, 2")
    a.e("s_lshl_b32 s19, s19, 6")
    a.e("v_add_u32 v2, s19, v1")
    a.e(f"s_mov_b32 s22, {PITCH}")
    a.e("v_mul_lo_u32 v3, v2, s22")
    a.e("s_lshl_b32 s22, s18, 5")
    a.e(f"s_add_u32 s22, s22, {2*PITCH}")
    a.e("v_add_u32 v3, s22, v3")
    Q = 8; KK = 16; VV = 80; LG = 144; O = 160; T = 180
    a.e(f"ds_read_b128 v[{Q}:{Q+3}], v3 offset:{14*PITCH}")
    a.e(f"ds_read_b128 v[{Q+4}:{Q+7}], v3 offset:{14*PITCH+16}")
    for w in range(8):
        a.e(f"ds_read_b128 v[{KK+8*w}:{KK+8*w+3}], v3 offset:{(14-2*w)*PITCH+128}")
        a.e(f"ds_read_b128 v[{KK+8*w+4}:{KK+8*w+7}], v3 offset:{(14-2*w)*PITCH+144}")
    a.e("s_lshl_b32 s22, s15, 7")
    a.e("v_add_u32 v4, s22, v2")
    for w in range(8):
        a.e(f"s_waitcnt lgkmcnt({min(15, 14-2*w)})")
        a.e(f"v_mov_b32 v{LG+w}, 0")
        for i in range(8):
            a.e(f"v_dot2_f32_bf16 v{LG+w}, v{Q+i}, v{KK+8*w+i}, v{LG+w}")
    for w in range(8):
        a.e(f"ds_read_b128 v[{VV+8*w}:{VV+8*w+3}], v3 offset:{(14-2*w)*PITCH+256}")
        a.e(f"ds_read_b128 v[{VV+8*w+4}:{VV+8*w+7}], v3 offset:{(14-2*w)*PITCH+272}")
    a.e("s_nop 3")
    ph_stamp(a, cfg, 4)
    for w in range(0, 8, 2):
        a.e(f"v_cvt_pk_bf16_f32 v{T+w//2}, v{LG+w}, v{LG+w+1}")
    for w in range(0, 8, 2):
        a.e(f"v_lshlrev_b32 v{LG+w}, 16, v{T+w//2}")
        a.e(f"v_and_b32 v{LG+w+1}, 0xffff0000, v{T+w//2}")
    for w in range(8):
        a.e(f"v_mul_f32 v{LG+w}, 0.25, v{LG+w}") if False else a.e(f"v_mul_f32 v{LG+w}, 0x3e800000, v{LG+w}")
    a.e("v_mov_b32 v5, 0xce6e6b28")
    for w in range(1, 8):
        a.e(f"v_cmp_gt_u32 vcc, {2*w}, v4")
        a.e("s_nop 1")
        a.e(f"v_cndmask_b32 v{LG+w}, v{LG+w}, v5, vcc")
    a.e(f"v_max3_f32 v6, v{LG}, v{LG+1}, v{LG+2}")
    a.e(f"v_max3_f32 v6, v6, v{LG+3}, v{LG+4}")
    a.e(f"v_max3_f32 v6, v6, v{LG+5}, v{LG+6}")
    a.e(f"v_max_f32 v6, v6, v{LG+7}")
    a.e("s_mov_b32 s22, 0x3fb8aa3b")
    for w in range(8):
        a.e(f"v_sub_f32 v{LG+w}, v{LG+w}, v6")
    for w in range(8):
        a.e(f"v_mul_f32 v{LG+w}, s22, v{LG+w}")
    for w in range(8):
        a.e(f"v_exp_f32 v{LG+w}, v{LG+w}")
    a.e("s_nop 0")
    a.e(f"v_add_f32 v6, v{LG}, v{LG+1}")
    for w in range(2, 8):
        a.e(f"v_add_f32 v6, v6, v{LG+w}")
    a.e("v_rcp_f32 v6, v6")
    a.e("s_nop 0")
    for w in range(8):
        a.e(f"v_mul_f32 v{LG+w}, v{LG+w}, v6")
    for w in range(0, 8, 2):
        a.e(f"v_cvt_pk_bf16_f32 v{T+w//2}, v{LG+w}, v{LG+w+1}")
    for w in range(0, 8, 2):
        a.e(f"v_lshlrev_b32 v{LG+w}, 16, v{T+w//2}")
        a.e(f"v_and_b32 v{LG+w+1}, 0xffff0000, v{T+w//2}")
    ph_stamp(a, cfg, 5)
    for w in range(8):
        a.e(f"s_waitcnt lgkmcnt({14-2*w})")
        for i in range(8):
            src = VV+8*w+i
            a.e(f"v_lshlrev_b32 v{T+8}, 16, v{src}")
            a.e(f"v_and_b32 v{T+9}, 0xffff0000, v{src}")
            if w == 0:
                a.e(f"v_mul_f32 v{O+2*i}, v{LG}, v{T+8}")
                a.e(f"v_mul_f32 v{O+2*i+1}, v{LG}, v{T+9}")
            else:
                a.e(f"v_fmac_f32 v{O+2*i}, v{LG+w}, v{T+8}")
                a.e(f"v_fmac_f32 v{O+2*i+1}, v{LG+w}, v{T+9}")
    for i in range(8):
        a.e(f"v_cvt_pk_bf16_f32 v{T+i}, v{O+2*i}, v{O+2*i+1}")
    ph_stamp(a, cfg, 6)
    srd(a, 24, 10, 11, WS_BYTES)
    a.e("v_lshlrev_b32 v4, 10, v4")
    a.e("s_lshl_b32 s22, s16, 7")
    a.e("s_lshl_b32 s23, s18, 5")
    a.e("s_add_u32 s22, s22, s23")
    a.e(f"s_add_u32 s22, s22, {WS_O}")
    a.e("v_add_u32 v4, s22, v4")
    a.e(f"buffer_store_dwordx4 v[{T}:{T+3}], v4, s[24:27], 0 offen")
    a.e(f"buffer_store_dwordx4 v[{T+4}:{T+7}], v4, s[24:27], 0 offen offset:16")
    a.e("s_waitcnt vmcnt(0)")

def k1(a, cfg):
    a.raw(".globl k1_kernel"); a.raw(".p2align 8"); a.raw(".type k1_kernel,@function"); a.label("k1_kernel")
    a.e("s_cmp_ge_u32 s2, 256")
    a.e("s_cbranch_scc1 L_k1_exit")
    stamp_begin(a, cfg)
    a.e("s_load_dwordx2 s[4:5], s[0:1], 0")
    a.e("s_load_dwordx4 s[6:9], s[0:1], 8") if False else None
    a.e("s_load_dwordx2 s[6:7], s[0:1], 8")
    a.e("s_load_dwordx2 s[8:9], s[0:1], 16")
    a.e("s_load_dwordx2 s[10:11], s[0:1], 80")
    wave_ids(a)
    ph_init(a, cfg)
    a.e("s_cmp_ge_u32 s2, 128")
    a.e("s_cbranch_scc1 L_k1_b")
    k1_big(a, cfg)
    a.label("L_k1_b")
    a.e("s_waitcnt lgkmcnt(0)")
    if cfg.no_partb: a.e("s_branch L_k1_end")
    k1_attn(a, cfg)
    ph_stamp(a, cfg, 7)
    a.label("L_k1_end")
    ph_dump(a, cfg, 0, 0)
    stamp_end(a, cfg, 0)
    a.label("L_k1_exit")
    a.e("s_endpgm")

def k2(a, cfg):
    S = cfg.S2; STG = 16384
    a.raw(".globl k2_kernel"); a.raw(".p2align 8"); a.raw(".type k2_kernel,@function"); a.label("k2_kernel")
    a.e("s_cmp_ge_u32 s2, 256")
    a.e("s_cbranch_scc1 L_k2_exit")
    stamp_begin(a, cfg)
    a.e("s_load_dwordx4 s[4:7], s[0:1], 24")
    a.e("s_load_dwordx4 s[8:11], s[0:1], 56")
    a.e("s_load_dwordx2 s[12:13], s[0:1], 80")
    wave_ids(a)
    ph_init(a, cfg)
    a.e("s_and_b32 s14, s2, 7")
    a.e("s_lshr_b32 s15, s2, 3")
    a.e("s_lshr_b32 s16, s15, 3")
    a.e("s_lshl_b32 s14, s14, 2")
    a.e("s_add_u32 s16, s16, s14")
    a.e("s_and_b32 s17, s15, 7")
    a.e("s_waitcnt lgkmcnt(0)")
    a.e("s_cmp_ge_u32 s3, 4")
    a.e("s_cbranch_scc0 L_k2_cons")
    srd(a, 24, 4, 5, 512*512*2)
    srd(a, 28, 6, 7, 512*512*2)
    srd(a, 36, 8, 9, 512*512*2)
    srd(a, 40, 12, 13, WS_BYTES)
    a.e("s_sub_u32 s18, s3, 4")
    a.e("v_lshrrev_b32 v2, 3, v1")
    a.e("v_and_b32 v3, 7, v1")
    a.e("v_lshrrev_b32 v4, 4, v1")
    a.e("v_xor_b32 v3, v3, v4")
    a.e("v_xor_b32 v5, 4, v3")
    a.e("s_lshl_b32 s19, s18, 4")
    a.e("v_add_u32 v2, s19, v2")
    a.e("s_lshl_b32 s19, s17, 6")
    a.e("v_add_u32 v6, s19, v2")
    a.e("v_lshlrev_b32 v6, 10, v6")
    a.e("v_lshl_add_u32 v10, v3, 4, v6")
    a.e("v_lshl_add_u32 v11, v5, 4, v6")
    a.e(f"v_add_u32 v11, {8*1024-1024}, v11")
    a.e("s_lshl_b32 s19, s16, 6")
    a.e("v_add_u32 v6, s19, v2")
    a.e("v_lshlrev_b32 v7, 11, v6")
    a.e("v_lshl_add_u32 v12, v3, 4, v7")
    a.e("v_lshl_add_u32 v13, v5, 4, v7")
    a.e(f"v_add_u32 v13, {8*2048-1024}, v13")
    a.e("v_lshlrev_b32 v7, 10, v6")
    a.e(f"v_add_u32 v7, {WS_O}, v7")
    a.e("v_lshl_add_u32 v14, v3, 4, v7")
    a.e("v_lshl_add_u32 v15, v5, 4, v7")
    a.e(f"v_add_u32 v15, {8*1024-1024}, v15")
    a.e("v_and_b32 v3, 7, v1")
    a.e("v_bfe_u32 v4, v1, 4, 1")
    a.e("v_lshlrev_b32 v4, 2, v4")
    a.e("v_xor_b32 v3, v3, v4")
    a.e("v_lshlrev_b32 v6, 10, v2")
    a.e("v_lshl_add_u32 v6, v3, 4, v6")
    a.e("s_lshl_b32 s19, s17, 7")
    a.e("v_add_u32 v16, s19, v6")
    a.e(f"v_add_u32 v17, {8*1024-1024}, v16")
    a.e("s_lshl_b32 s34, s18, 11")
    a.e("s_add_u32 s35, s34, 8192")
    NST = 24
    P = S - 1
    def issue(i):
        slot = (i % S) * STG
        a.e(f"s_add_u32 m0, s34, {slot}")
        if i < 16:
            sA = 24 if i < 8 else 28
            a.e(f"s_mov_b32 s32, {(i%8)*128}")
            a.e(f"buffer_load_dwordx4 v10, s[{sA}:{sA+3}], s32 offen lds")
            a.e(f"buffer_load_dwordx4 v11, s[{sA}:{sA+3}], s32 offen offset:1024 lds")
            a.e(f"s_add_u32 m0, s35, {slot}")
            a.e(f"s_mov_b32 s33, {i*128}")
            a.e("buffer_load_dwordx4 v12, s[40:43], s33 offen lds")
            a.e("buffer_load_dwordx4 v13, s[40:43], s33 offen offset:1024 lds")
        else:
            k = i - 16
            a.e(f"s_mov_b32 s32, {k*64*1024}")
            a.e("buffer_load_dwordx4 v16, s[36:39], s32 offen lds")
            a.e("buffer_load_dwordx4 v17, s[36:39], s32 offen offset:1024 lds")
            a.e(f"s_add_u32 m0, s35, {slot}")
            a.e(f"s_mov_b32 s33, {k*128}")
            a.e("buffer_load_dwordx4 v14, s[40:43], s33 offen lds")
            a.e("buffer_load_dwordx4 v15, s[40:43], s33 offen offset:1024 lds")
    for i in range(P): issue(i)
    ph_stamp(a, cfg, 0)
    for i in range(NST):
        out_after = min(P-1, NST-1-i)
        a.e(f"s_waitcnt vmcnt({4*out_after})")
        a.e("s_barrier")
        if i + P < NST: issue(i + P)
        ph_stamp(a, cfg, i+1)
    a.e("s_branch L_k2_end")
    a.label("L_k2_cons")
    ACC1, ACC2 = 64, 80
    a.e("s_and_b32 s18, s3, 1")
    a.e("s_lshr_b32 s19, s3, 1")
    a.e("v_and_b32 v2, 31, v1")
    a.e("v_bfe_u32 v3, v2, 1, 3")
    a.e("v_lshrrev_b32 v5, 5, v1")
    a.e("v_xor_b32 v3, v3, v5")
    a.e("v_lshlrev_b32 v4, 7, v2")
    a.e("s_lshl_b32 s22, s18, 12")
    a.e("s_lshl_b32 s23, s19, 12")
    a.e("s_add_u32 s23, s23, 8192")
    for ks in range(4):
        a.e(f"v_xor_b32 v6, {ks*2}, v3")
        a.e("v_lshl_add_u32 v6, v6, 4, v4")
        a.e(f"v_add_u32 v{10+ks}, s22, v6")
        a.e(f"v_add_u32 v{14+ks}, s23, v6")
    a.e("v_bfe_u32 v2, v1, 2, 2")
    a.e("v_and_b32 v3, 3, v1")
    a.e("v_bfe_u32 v4, v1, 4, 1")
    a.e("v_lshlrev_b32 v6, 7, v2")
    a.e("v_lshl_add_u32 v6, v5, 10, v6")
    a.e("v_lshl_add_u32 v6, v4, 5, v6")
    a.e("v_lshl_add_u32 v6, v3, 3, v6")
    a.e("v_lshrrev_b32 v7, 1, v2")
    a.e("v_xor_b32 v7, s18, v7")
    a.e("v_lshl_add_u32 v18, v7, 6, v6")
    for i in range(32): a.e(f"v_mov_b32 v{ACC1+i}, 0")
    FS = [96, 128]
    def reads(i):
        F = FS[i % 2]; slot = (i % S) * STG
        r = []
        hi = slot // 65536; lo = slot % 65536
        for ks in range(4):
            if i < 16:
                r.append(f"ds_read_b128 v[{F+8*ks}:{F+8*ks+3}], v{10+ks + 10*hi} offset:{lo}")
            else:
                for u in range(2):
                    r.append(f"ds_read_b64_tr_b16 v[{F+8*ks+2*u}:{F+8*ks+2*u+1}], v{18+10*hi} offset:{lo + (ks*16+u*4)*128}")
            r.append(f"ds_read_b128 v[{F+8*ks+4}:{F+8*ks+7}], v{14+ks+10*hi} offset:{lo}")
        return r
    nhi = (S*STG + 65535)//65536
    for h in range(1, nhi):
        for j in range(9):
            a.e(f"v_add_u32 v{10+j+10*h}, {65536*h}, v{10+j}")
    def mf(i):
        F = FS[i % 2]; acc = ACC1 if i < 16 else ACC2
        return [f"v_mfma_f32_32x32x16_bf16 v[{acc}:{acc+15}], v[{F+8*ks}:{F+8*ks+3}], v[{F+8*ks+4}:{F+8*ks+7}], v[{acc}:{acc+15}]" for ks in range(4)]
    a.e("s_barrier")
    for x in reads(0): a.e(x)
    for i in range(NST):
        a.e("s_waitcnt lgkmcnt(0)")
        if i + 1 < NST:
            a.e("s_barrier")
            r = reads(i+1)
        else:
            r = []
        m = mf(i)
        per = (len(r) + 3)//4
        for k in range(4):
            for x in r[k*per:(k+1)*per]: a.e(x)
            a.e(m[k])
    srd(a, 24, 10, 11, 2048*1024*2)
    a.e("v_and_b32 v2, 31, v1")
    a.e("s_lshl_b32 s22, s16, 6")
    a.e("s_lshl_b32 s23, s19, 5")
    a.e("s_add_u32 s22, s22, s23")
    a.e("v_add_u32 v2, s22, v2")
    a.e("v_lshlrev_b32 v2, 11, v2")
    a.e("v_lshl_add_u32 v2, v5, 4, v2")
    a.e("s_lshl_b32 s22, s17, 7")
    a.e("s_lshl_b32 s23, s18, 6")
    a.e("s_add_u32 s22, s22, s23")
    a.e("v_add_u32 v2, s22, v2")
    store_tile32(a, ACC1, 32, 2, 24, 0)
    a.e("s_nop 7"); a.e("s_nop 7")
    store_tile32(a, ACC2, 40, 2, 24, 1024)
    a.label("L_k2_end")
    ph_dump(a, cfg, 4, 65536)
    stamp_end(a, cfg, 1)
    a.label("L_k2_exit")
    a.e("s_endpgm")

def gen(cfg):
    global CFG
    CFG = cfg
    a = Asm()
    lds1 = max(cfg.S1*32768, cfg.SB*(24576+20480))
    lds2 = cfg.S2*16384
    a.raw(HDR.rstrip("\n"))
    a.raw(f"; @launch kernel=k1_kernel grid=(256,1,1) block=(512,1,1) lds={lds1}")
    a.raw(f"; @launch kernel=k2_kernel grid=(256,1,1) block=(512,1,1) lds={lds2}")
    a.raw('.amdgcn_target "amdgcn-amd-amdhsa--gfx950"')
    a.raw(".text")
    k1(a, cfg)
    k2(a, cfg)
    a.raw('.section .rodata,"a"')
    for l in kdesc("k1_kernel", 256): a.raw(l)
    for l in kdesc("k2_kernel", 256): a.raw(l)
    return a.text()

if __name__ == "__main__":
    def mk(name, **kw):
        cfg = Cfg()
        for k, v in kw.items(): setattr(cfg, k, v)
        open(name, "w").write(gen(cfg))
    mk("v2.s")
    mk("v2_ph.s", phases=True)
    mk("v2_ph_nopf.s", phases=True, prefetch=False)
```

```python
import sys
from asmlib import *
NAME = "concat_heads__spectral_fnet__sliding_local_dilated__prompt"
HDR = open("cdna_kernels/%s.s.ref" % NAME).read().split("; Override launch")[0]

WS_CD = 0
WS_O = 4 << 20
FSTR = 4352
WS_FC = 8 << 20
WS_FO = WS_FC + 16*FSTR
WS_BYTES = (8 << 20) + 32*FSTR

U = 8192
WD_UNIT = [0,1,2,3, 8,9,10,11, 12,13,14,15, 0,1,2,3]
RING = [4*U, 6*U, 16*U, 18*U]

class Cfg:
    S1 = 5
    SB = 3
    phases = False
    look = 1
    pf_early = {0: [("w",2)], 1: [("x",2)], 2: [("w",3)], 3: [("x",3)], 4: [("w",4)], 5: [("x",4)]}
    pf_late = [("w",5),("x",5),("w",6),("x",6),("w",7),("x",7)]
    pf_nt_upto = 4
    pf_weights = False
    flag_at = 0
    poll_sleep = 2
    ld_sc1 = False
    wd_early = False
    st_mode = ' sc1'
    nt_lead_upto = -1

def wave_ids(a):
    a.e("v_lshrrev_b32 v1, 6, v0")
    a.e("s_nop 0")
    a.e("v_readfirstlane_b32 s3, v1")
    a.e("v_and_b32 v1, 63, v0")

def ph_init(a, cfg):
    if not cfg.phases: return
    a.e("v_mov_b32 v240, 0")
    a.e("s_memrealtime s[80:81]")
    a.e("s_memtime s[84:85]")
    a.e("s_waitcnt lgkmcnt(0)")
    a.e("v_writelane_b32 v240, s80, 60")
    a.e("v_writelane_b32 v240, s84, 61")
    a.e("s_mov_b32 s82, 0")
def ph_stamp(a, cfg, idx):
    if not cfg.phases: return
    a.e("s_memtime s[80:81]")
    a.e("s_waitcnt lgkmcnt(0)")
    a.e(f"v_writelane_b32 v240, s80, {idx}")
def ph_stamp_seq(a, cfg):
    if not cfg.phases: return
    a.e("s_memtime s[80:81]")
    a.e("s_waitcnt lgkmcnt(0)")
    a.e("v_mov_b32 v242, s80")
    a.e("v_cmp_eq_u32 vcc, s82, v1")
    a.e("s_nop 1")
    a.e("v_cndmask_b32 v240, v240, v242, vcc")
    a.e("s_add_u32 s82, s82, 1")
def ph_dump(a, cfg, waves_offs):
    if not cfg.phases: return
    for wave, off in waves_offs:
        L = a.newlabel("L_pd")
        a.e(f"s_cmp_lg_u32 s3, {wave}")
        a.e(f"s_cbranch_scc1 {L}")
        a.e("s_waitcnt vmcnt(0)")
        a.e("s_memrealtime s[80:81]")
        a.e("s_memtime s[84:85]")
        a.e("s_load_dwordx2 s[86:87], s[0:1], 80")
        a.e("s_waitcnt lgkmcnt(0)")
        a.e("v_writelane_b32 v240, s80, 62")
        a.e("v_writelane_b32 v240, s84, 63")
        a.e(f"s_add_u32 s92, s86, {0x3000000 + off}")
        a.e("s_addc_u32 s93, s87, 0")
        a.e("s_mov_b32 s94, 0x100000")
        a.e("s_mov_b32 s95, 0x00020000")
        a.e("s_lshl_b32 s90, s2, 8")
        a.e("v_lshl_add_u32 v241, v1, 2, s90")
        a.e("buffer_store_dword v240, v241, s[92:95], 0 offen")
        a.label(L)

def pack_tile32(a, acc, tmp, xorreg=None):
    for g in range(4):
        a.e(f"v_cvt_pk_bf16_f32 v{tmp+2*g}, v{acc+4*g}, v{acc+4*g+1}")
        a.e(f"v_cvt_pk_bf16_f32 v{tmp+2*g+1}, v{acc+4*g+2}, v{acc+4*g+3}")
    if xorreg is not None:
        for i in range(8):
            a.e(f"v_xor_b32 v{tmp+i}, s{xorreg}, v{tmp+i}")
    a.e("s_nop 1")
    for g in (0, 2):
        a.e(f"v_permlane32_swap_b32 v{tmp+2*g}, v{tmp+2*g+2}")
        a.e(f"v_permlane32_swap_b32 v{tmp+2*g+1}, v{tmp+2*g+3}")

NONCE_V = 232

def nonce_issue(a):
    a.e("v_mov_b32 v234, 0")
    a.e(f"buffer_load_dwordx2 v[{NONCE_V}:{NONCE_V+1}], v234, s[68:71], 0 offen sc1")
def nonce_get(a):
    L = a.newlabel("L_nn"); D = a.newlabel("L_nd")
    a.label(L)
    a.e("s_waitcnt vmcnt(0)")
    a.e(f"v_readfirstlane_b32 s74, v{NONCE_V}")
    a.e(f"v_readfirstlane_b32 s75, v{NONCE_V+1}")
    a.e("s_nop 0")
    a.e("s_cmp_lg_u32 s74, 0")
    a.e(f"s_cbranch_scc1 {D}")
    a.e(f"buffer_load_dwordx2 v[{NONCE_V}:{NONCE_V+1}], v234, s[68:71], 0 offen sc1")
    a.e(f"s_branch {L}")
    a.label(D)
def flag_store(a, soff_reg):
    a.e("v_mov_b32 v230, s74")
    a.e("v_mov_b32 v231, s75")
    a.e("v_mov_b32 v234, 0")
    a.e("s_mov_b64 exec, 1")
    a.e(f"buffer_store_dwordx2 v[230:231], v234, s[64:67], s{soff_reg} offen sc1")
    a.e("s_mov_b64 exec, -1")
def flag_poll(a, voff, cfg):
    L = a.newlabel("L_poll"); L0 = a.newlabel("L_poll0")
    a.e(f"s_branch {L0}")
    a.label(L)
    if cfg.poll_sleep: a.e(f"s_sleep {cfg.poll_sleep}")
    a.label(L0)
    a.e(f"buffer_load_dwordx2 v[228:229], v{voff}, s[64:67], 0 offen sc1")
    a.e("s_waitcnt vmcnt(0)")
    a.e("v_cmp_eq_u32 s[76:77], s74, v228")
    a.e("v_cmp_eq_u32 s[78:79], s75, v229")
    a.e("s_nop 1")
    a.e("s_and_b64 s[76:77], s[76:77], s[78:79]")
    a.e("s_cmp_eq_u64 s[76:77], -1")
    a.e(f"s_cbranch_scc0 {L}")

PA = 200
def pc_loader_setup(a):
    a.e("s_sub_u32 s18, s3, 4")
    a.e("v_lshrrev_b32 v2, 3, v1")
    a.e("v_and_b32 v3, 7, v1")
    a.e("v_lshrrev_b32 v4, 4, v1")
    a.e("v_xor_b32 v3, v3, v4")
    a.e("v_xor_b32 v5, 4, v3")
    a.e("s_lshl_b32 s19, s18, 4")
    a.e("v_add_u32 v2, s19, v2")
    a.e("s_lshl_b32 s19, s73, 6")
    a.e("v_add_u32 v6, s19, v2")
    a.e("v_lshlrev_b32 v6, 10, v6")
    a.e(f"v_lshl_add_u32 v{PA}, v3, 4, v6")
    a.e(f"v_lshl_add_u32 v{PA+1}, v5, 4, v6")
    a.e(f"v_add_u32 v{PA+1}, {8*1024-1024}, v{PA+1}")
    a.e("s_lshl_b32 s19, s72, 6")
    a.e("v_add_u32 v6, s19, v2")
    a.e("v_lshlrev_b32 v7, 11, v6")
    a.e(f"v_lshl_add_u32 v{PA+2}, v3, 4, v7")
    a.e(f"v_lshl_add_u32 v{PA+3}, v5, 4, v7")
    a.e(f"v_add_u32 v{PA+3}, {8*2048-1024}, v{PA+3}")
    a.e("s_lshr_b32 s19, s72, 1")
    a.e(f"s_mul_i32 s22, s19, {FSTR}")
    a.e(f"s_add_u32 s22, s22, {WS_FC}")
    a.e("v_and_b32 v3, 7, v1")
    a.e(f"v_lshl_add_u32 v{PA+8}, v3, 3, s22")
    a.e("s_lshl_b32 s52, s18, 11")

def op_loader_setup(a):
    a.e("s_sub_u32 s18, s3, 4")
    a.e("v_lshrrev_b32 v2, 3, v1")
    a.e("v_and_b32 v3, 7, v1")
    a.e("v_lshrrev_b32 v4, 4, v1")
    a.e("v_xor_b32 v3, v3, v4")
    a.e("v_xor_b32 v5, 4, v3")
    a.e("s_lshl_b32 s19, s18, 5")
    a.e("s_lshl_b32 s22, s15, 7")
    a.e("s_add_u32 s19, s19, s22")
    a.e("v_add_u32 v6, s19, v2")
    a.e("v_lshlrev_b32 v6, 10, v6")
    a.e(f"v_add_u32 v6, {WS_O}, v6")
    a.e("v_lshl_add_u32 v7, v5, 4, v6")
    a.e("v_lshl_add_u32 v6, v3, 4, v6")
    for j in range(4):
        a.e(f"v_add_u32 v{190+j}, {j*8*1024 - j*1024}, v{6 if j%2==0 else 7}")
    a.e("s_lshl_b32 s19, s18, 4")
    a.e("v_add_u32 v2, s19, v2")
    a.e("v_and_b32 v3, 7, v1")
    a.e("v_bfe_u32 v4, v1, 4, 1")
    a.e("v_lshlrev_b32 v4, 2, v4")
    a.e("v_xor_b32 v3, v3, v4")
    a.e("v_lshlrev_b32 v6, 10, v2")
    a.e("v_lshl_add_u32 v6, v3, 4, v6")
    a.e("s_lshl_b32 s19, s16, 7")
    a.e(f"v_add_u32 v{PA+6}, s19, v6")
    a.e(f"v_add_u32 v{PA+7}, {8*1024-1024}, v{PA+6}")
    a.e(f"s_mul_i32 s22, s15, {FSTR}")
    a.e(f"s_add_u32 s22, s22, {WS_FO}")
    a.e("v_and_b32 v3, 7, v1")
    a.e(f"v_lshl_add_u32 v{PA+9}, v3, 3, s22")
    srd(a, 36, 48, 49, 512*512*2)

def wo_issue(a, i):
    a.e(f"s_add_u32 s53, s16, {i}")
    a.e("s_and_b32 s53, s53, 7")
    a.e("s_lshl_b32 s53, s53, 16")
    a.e(f"s_add_u32 m0, s52, {(8+i)*U}")
    a.e("s_nop 0")
    a.e(f"buffer_load_dwordx4 v{PA+6}, s[36:39], s53 offen lds")
    a.e(f"buffer_load_dwordx4 v{PA+7}, s[36:39], s53 offen offset:1024 lds")

def wd_issue(a, pos):
    a.e("s_lshl_b32 s53, s73, 1")
    a.e(f"s_add_u32 s53, s53, {pos}")
    a.e("s_bitcmp1_b32 s53, 3")
    a.e("s_cselect_b32 s56, s46, s44")
    a.e("s_cselect_b32 s57, s47, s45")
    a.e("s_and_b32 s53, s53, 7")
    a.e("s_lshl_b32 s53, s53, 7")
    a.e(f"s_add_u32 m0, s52, {WD_UNIT[pos]*U}")
    a.e("s_nop 0")
    a.e(f"buffer_load_dwordx4 v{PA}, s[56:59], s53 offen lds")
    a.e(f"buffer_load_dwordx4 v{PA+1}, s[56:59], s53 offen offset:1024 lds")

def k_big(a, cfg):
    S = cfg.S1; STG = 32768; NST = 32
    assert S == 5
    a.c("---- big GEMM role: xcd=s2&7, i=s2>>3 (0..15)")
    a.e("s_and_b32 s12, s2, 7")
    a.e("s_lshr_b32 s13, s2, 3")
    a.e("s_lshr_b32 s14, s13, 3")
    a.e("s_bfe_u32 s15, s13, 0x10002")
    a.e("s_lshl_b32 s12, s12, 1")
    a.e("s_add_u32 s15, s15, s12")
    a.e("s_and_b32 s16, s13, 3")
    a.e("s_lshr_b32 s17, s13, 2")
    a.e("s_add_u32 s17, s17, s16")
    a.e("s_and_b32 s17, s17, 3")
    a.e("s_cmp_ge_u32 s3, 4")
    a.e("s_cbranch_scc0 L_big_cons")
    a.e("s_sub_u32 s18, s3, 4")
    a.e("v_lshrrev_b32 v2, 4, v1")
    a.e("v_and_b32 v3, 15, v1")
    a.e("v_lshlrev_b32 v4, 2, v2")
    a.e("v_xor_b32 v3, v3, v4")
    a.e("s_lshl_b32 s19, s18, 4")
    a.e("v_add_u32 v4, s19, v2")
    a.e("v_lshlrev_b32 v4, 10, v4")
    a.e("v_lshl_add_u32 v4, v3, 4, v4")
    a.e("s_lshl_b32 s19, s16, 8")
    a.e("v_add_u32 v4, s19, v4")
    for j in range(4):
        a.e(f"v_add_u32 v{10+j}, {j*4096 - j*1024}, v4")
    a.e("v_lshrrev_b32 v4, 3, v1")
    a.e("v_and_b32 v3, 7, v1")
    a.e("v_xor_b32 v3, v3, v2")
    a.e("v_xor_b32 v5, 4, v3")
    a.e("s_lshl_b32 s19, s18, 5")
    a.e("s_lshl_b32 s22, s15, 7")
    a.e("s_add_u32 s19, s19, s22")
    a.e("v_add_u32 v4, s19, v4")
    a.e("v_lshlrev_b32 v4, 12, v4")
    a.e("v_lshl_add_u32 v6, v3, 4, v4")
    a.e("v_lshl_add_u32 v7, v5, 4, v4")
    for j in range(4):
        a.e(f"v_add_u32 v{14+j}, {j*8*4096 - j*1024}, v{6 if j%2==0 else 7}")
    L = cfg.look; NF = 4*(8-L)
    a.e(f"v_add_u32 v20, {-L}, v1")
    a.e("v_and_b32 v21, 3, v20")
    a.e("v_and_b32 v22, -4, v20")
    a.e("v_cmp_lt_u32 vcc, s17, v21")
    a.e("s_nop 1")
    a.e("v_subbrev_co_u32 v25, vcc, 0, v21, vcc")
    a.e(f"v_add_u32 v26, {-NF}, v20")
    a.e("v_mul_u32_u24 v27, 11, v26")
    a.e("v_lshrrev_b32 v27, 5, v27")
    a.e("v_mul_u32_u24 v28, 3, v27")
    a.e("v_sub_u32 v28, v26, v28")
    a.e(f"v_lshl_add_u32 v27, v27, 2, {NF}")
    a.e(f"v_cmp_le_u32 vcc, {NF+L}, v1")
    a.e("v_mov_b32 v29, -1")
    a.e("s_nop 0")
    a.e("v_cndmask_b32 v22, v22, v27, vcc")
    a.e("v_cndmask_b32 v25, v25, v28, vcc")
    a.e("v_cndmask_b32 v21, v21, v29, vcc")
    a.e("s_add_u32 s36, s17, 1")
    a.e("v_add_u32 v23, s36, v25")
    a.e("v_and_b32 v23, 3, v23")
    a.e("v_add_u32 v23, v22, v23")
    a.e(f"s_add_u32 s36, s17, {4*L + 32}")
    a.e("v_add_u32 v24, s36, v22")
    a.e("v_cmp_eq_u32 vcc, s17, v21")
    a.e("s_nop 1")
    a.e("v_cndmask_b32 v23, v23, v24, vcc")
    a.e("s_add_u32 s36, s17, 32")
    a.e("v_lshl_add_u32 v24, v1, 2, s36")
    a.e(f"v_cmp_gt_u32 vcc, {L}, v1")
    a.e("s_nop 1")
    a.e("v_cndmask_b32 v23, v23, v24, vcc")
    if cfg.nt_lead_upto >= 0:
        a.e("v_and_b32 v24, 31, v23")
        a.e(f"v_cmp_lt_u32 vcc, {32 + 4*cfg.nt_lead_upto + 3}, v23")
        a.e("s_nop 1")
        a.e("v_cndmask_b32 v23, v23, v24, vcc")
    a.e("s_mov_b32 s36, 0")
    a.e("s_lshl_b32 s34, s18, 12")
    a.e("s_add_u32 s35, s34, 16384")
    a.e("s_mov_b32 s20, 0")
    def nextk():
        a.e("v_readlane_b32 s37, v23, s36")
        a.e("s_add_u32 s36, s36, 1")
        a.e("s_and_b32 s36, s36, 31")
        a.e("s_and_b32 s38, s37, 31")
        a.e("s_lshl_b32 s32, s38, 16")
        a.e("s_lshl_b32 s33, s38, 7")
    nextk()
    a.e("s_waitcnt lgkmcnt(0)")
    srd(a, 24, 4, 5, 2048*512*2)
    a.e("s_cmp_eq_u32 s14, 0")
    a.e("s_cselect_b32 s28, s6, s8")
    a.e("s_cselect_b32 s29, s7, s9")
    a.e(f"s_mov_b32 s30, {2048*2048*2}")
    a.e("s_mov_b32 s31, 0x00020000")
    def issue():
        a.e("s_add_u32 m0, s20, s35")
        if cfg.nt_lead_upto >= 0:
            La = a.newlabel("L_nt"); Lb = a.newlabel("L_ntd")
            a.e("s_bitcmp1_b32 s37, 5")
            a.e(f"s_cbranch_scc1 {La}")
            for j in range(4):
                a.e(f"buffer_load_dwordx4 v{14+j}, s[28:31], s33 offen offset:{j*1024} lds")
            a.e(f"s_branch {Lb}")
            a.label(La)
            for j in range(4):
                a.e(f"buffer_load_dwordx4 v{14+j}, s[28:31], s33 offen offset:{j*1024} nt lds")
            a.label(Lb)
        else:
            a.e("s_nop 0")
            for j in range(4):
                a.e(f"buffer_load_dwordx4 v{14+j}, s[28:31], s33 offen offset:{j*1024} lds")
        a.e("s_add_u32 m0, s20, s34")
        a.e("s_nop 0")
        for j in range(4):
            a.e(f"buffer_load_dwordx4 v{10+j}, s[24:27], s32 offen offset:{j*1024} lds")
    def advance():
        nextk()
        a.e(f"s_add_u32 s20, s20, {STG}")
        a.e(f"s_cmp_ge_u32 s20, {STG*S}")
        a.e("s_cselect_b32 s20, 0, s20")
    P = S - 1
    for i in range(P):
        issue(); advance()
    common_srds(a)
    pc_loader_setup(a)
    a.e(f"s_mov_b32 s21, {NST-P}")
    a.label("L_big_ld")
    a.e(f"s_waitcnt vmcnt({8*(P-1)})")
    a.e("s_barrier")
    issue(); advance()
    ph_stamp_seq(a, cfg)
    a.e("s_sub_u32 s21, s21, 1")
    a.e("s_cmp_lg_u32 s21, 0")
    a.e("s_cbranch_scc1 L_big_ld")
    a.e("s_waitcnt vmcnt(24)")
    a.e("s_barrier")
    for pos in (4,5,6,7): wd_issue(a, pos)
    ph_stamp_seq(a, cfg)
    a.e("s_waitcnt vmcnt(24)")
    a.e("s_barrier")
    for pos in (8,9,10,11): wd_issue(a, pos)
    ph_stamp_seq(a, cfg)
    a.e("s_waitcnt vmcnt(24)")
    a.e("s_barrier")
    nonce_issue(a)
    ph_stamp_seq(a, cfg)
    a.e("s_waitcnt vmcnt(17)")
    a.e("s_barrier")
    for pos in (0,1,2,3): wd_issue(a, pos)
    ph_stamp_seq(a, cfg)
    a.e("s_lshl_b32 s60, s14, 2")
    a.e("s_add_u32 s60, s60, s16")
    a.e("s_lshl_b32 s60, s60, 3")
    a.e(f"s_mul_i32 s22, s15, {FSTR}")
    a.e("s_add_u32 s60, s60, s22")
    a.e(f"s_add_u32 s60, s60, {WS_FC}")
    a.e("s_mov_b32 s61, 1")
    nonce_get(a)
    ph_stamp(a, cfg, 44)
    a.e("s_barrier")
    a.e("s_branch L_y_loader")
    a.label("L_big_cons")
    pc_cons_setup(a)
    ACC = 64
    BA, BB = 10, 12
    CA, CB = 16, 18
    a.e("s_and_b32 s18, s3, 1")
    a.e("s_lshr_b32 s19, s3, 1")
    a.e("v_bfe_u32 v2, v1, 2, 2")
    a.e("v_and_b32 v3, 3, v1")
    a.e("v_bfe_u32 v4, v1, 4, 1")
    a.e("v_lshrrev_b32 v5, 5, v1")
    a.e("v_lshlrev_b32 v6, 8, v2")
    a.e("v_lshl_add_u32 v6, v5, 11, v6")
    a.e("v_lshl_add_u32 v6, v4, 5, v6")
    a.e("v_lshl_add_u32 v6, v3, 3, v6")
    a.e("s_lshl_b32 s22, s18, 1")
    for j in range(2):
        a.e(f"s_add_u32 s23, s22, {j}")
        a.e("v_xor_b32 v7, s23, v2")
        a.e(f"v_lshl_add_u32 v{BA+j}, v7, 6, v6")
    a.e("v_and_b32 v2, 31, v1")
    a.e("s_lshl_b32 s22, s19, 6")
    a.e("v_add_u32 v2, s22, v2")
    a.e("v_bfe_u32 v3, v2, 1, 3")
    a.e("v_xor_b32 v3, v3, v5")
    a.e("v_lshlrev_b32 v4, 7, v2")
    a.e("v_add_u32 v4, 16384, v4")
    for ks in range(4):
        a.e(f"v_xor_b32 v6, {ks*2}, v3")
        a.e(f"v_lshl_add_u32 v{BB+ks}, v6, 4, v4")
    a.e("v_and_b32 v3, 15, v2")
    a.e("v_xor_b32 v3, v3, v5")
    a.e("s_lshl_b32 s22, s18, 3")
    a.e("v_xor_b32 v3, s22, v3")
    a.e("v_lshlrev_b32 v4, 8, v2")
    a.e(f"v_add_u32 v4, {16*U}, v4")
    for q in range(4):
        a.e(f"v_xor_b32 v6, {q*2}, v3")
        a.e(f"v_lshl_add_u32 v{24+q}, v6, 4, v4")
    for i in range(64):
        a.e(f"v_mov_b32 v{ACC+i}, 0")
    a.e("s_mov_b32 s20, 0")
    def setaddr_l():
        l = [f"v_add_u32 v{CA+j}, s20, v{BA+j}" for j in range(2)] + [f"v_add_u32 v{CB+k}, s20, v{BB+k}" for k in range(4)]
        l += [f"s_add_u32 s20, s20, {STG}", f"s_cmp_ge_u32 s20, {STG*S}", "s_cselect_b32 s20, 0, s20"]
        return l
    def reads(F, ks):
        r = []
        r.append(f"ds_read_b128 v[{F+8}:{F+11}], v{CB+ks}")
        for u in range(2):
            r.append(f"ds_read_b64_tr_b16 v[{F+2*u}:{F+2*u+1}], v{CA} offset:{(ks*16+u*4)*256}")
        r.append(f"ds_read_b128 v[{F+12}:{F+15}], v{CB+ks} offset:4096")
        for u in range(2):
            r.append(f"ds_read_b64_tr_b16 v[{F+4+2*u}:{F+4+2*u+1}], v{CA+1} offset:{(ks*16+u*4)*256}")
        return r
    def mfmas(F):
        m = []
        for (jm, jn) in ((0,0),(0,1),(1,0),(1,1)):
            d = ACC + (jm*2+jn)*16
            m.append(f"v_mfma_f32_32x32x16_bf16 v[{d}:{d+15}], v[{F+4*jm}:{F+4*jm+3}], v[{F+8+4*jn}:{F+8+4*jn+3}], v[{d}:{d+15}]")
        return m
    FS = [128, 144, 160, 176]
    def mix(m, r, pre=()):
        return [m[0]] + list(pre) + r[0:3] + [m[1]] + r[3:6] + [m[2], m[3]]
    a.e("s_waitcnt lgkmcnt(0)")
    common_srds(a)
    a.e("s_or_b32 s22, s2, s3")
    a.e("s_cmp_lg_u32 s22, 0")
    a.e("s_cbranch_scc1 L_no_pub")
    a.e("s_memrealtime s[22:23]")
    a.e("s_waitcnt lgkmcnt(0)")
    a.e("s_or_b32 s22, s22, 1")
    a.e("v_mov_b32 v230, s22")
    a.e("v_mov_b32 v231, s23")
    a.e("v_mov_b32 v234, 0")
    a.e("s_mov_b64 exec, 1")
    a.e("buffer_store_dwordx2 v[230:231], v234, s[68:71], 0 offen sc1")
    a.e("s_mov_b64 exec, -1")
    a.label("L_no_pub")
    ph_stamp(a, cfg, 0)
    a.e("s_barrier")
    ph_stamp(a, cfg, 1)
    for x in setaddr_l(): a.e(x)
    for x in reads(FS[0], 0): a.e(x)
    for x in reads(FS[1], 1): a.e(x)
    a.e(f"s_mov_b32 s21, {NST-1}")
    a.label("L_big_loop")
    a.e("s_waitcnt lgkmcnt(6)")
    for x in mix(mfmas(FS[0]), reads(FS[2], 2)): a.e(x)
    a.e("s_waitcnt lgkmcnt(6)")
    for x in mix(mfmas(FS[1]), reads(FS[3], 3)): a.e(x)
    a.e("s_waitcnt lgkmcnt(0)")
    for x in mix(mfmas(FS[2]), reads(FS[0], 0), pre=["s_barrier"] + setaddr_l()): a.e(x)
    for x in mix(mfmas(FS[3]), reads(FS[1], 1)): a.e(x)
    a.e("s_sub_u32 s21, s21, 1")
    a.e("s_cmp_lg_u32 s21, 0")
    a.e("s_cbranch_scc1 L_big_loop")
    a.e("s_waitcnt lgkmcnt(6)")
    for x in mix(mfmas(FS[0]), reads(FS[2], 2)): a.e(x)
    a.e("s_waitcnt lgkmcnt(6)")
    for x in mix(mfmas(FS[1]), reads(FS[3], 3)): a.e(x)
    a.e("s_waitcnt lgkmcnt(6)")
    for x in mfmas(FS[2]): a.e(x)
    a.e("s_waitcnt lgkmcnt(0)")
    for x in mfmas(FS[3]): a.e(x)
    ph_stamp(a, cfg, 2)
    a.e("s_cmp_eq_u32 s14, 0")
    a.e("s_cselect_b32 s22, 0, 0x80008000")
    a.e("v_lshrrev_b32 v2, 4, v1")
    a.e("s_lshl_b32 s23, s3, 5")
    a.e("v_add_u32 v2, s23, v2")
    a.e("v_and_b32 v3, 15, v1")
    a.e("v_lshlrev_b32 v4, 8, v2")
    a.e(f"v_add_u32 v4, {16*U}, v4")
    a.e("v_and_b32 v5, 3, v2")
    a.e("v_xor_b32 v5, v5, v3")
    for q in range(4):
        a.e(f"v_xor_b32 v6, {q*4}, v5")
        a.e(f"v_lshl_add_u32 v{28+q}, v6, 4, v4")
    a.e("s_lshl_b32 s23, s15, 7")
    a.e("v_add_u32 v2, s23, v2")
    a.e("v_lshlrev_b32 v2, 11, v2")
    a.e("v_lshl_add_u32 v2, v3, 4, v2")
    t = 0
    for jm in range(2):
        for jn in range(2):
            tmp = 32 + 8*t; t += 1
            pack_tile32(a, ACC+(jm*2+jn)*16, tmp, xorreg=22)
            a.e("s_nop 0")
            for g in range(2):
                a.e(f"ds_write_b128 v{24+jm*2+g}, v[{tmp+4*g}:{tmp+4*g+3}] offset:{jn*32*256}")
    a.e("s_waitcnt lgkmcnt(0)")
    a.e("s_barrier")
    ph_stamp(a, cfg, 3)
    for q in range(8):
        a.e(f"ds_read_b128 v[{128+4*q}:{131+4*q}], v{28+(q&3)} offset:{q*1024}")
    a.e("s_lshl_b32 s22, s14, 10")
    a.e("s_lshl_b32 s23, s16, 8")
    a.e("s_add_u32 s22, s22, s23")
    for q in range(8):
        a.e(f"s_waitcnt lgkmcnt({7-q})")
        a.e(f"buffer_store_dwordx4 v[{128+4*q}:{131+4*q}], v2, s[64:67], s22 offen{cfg.st_mode}")
        if q < 7: a.e("s_add_u32 s22, s22, 8192")
    ph_stamp(a, cfg, 4)
    a.e("s_branch L_y_cons")

def common_srds(a):
    srd(a, 64, 10, 11, WS_BYTES)
    srd(a, 68, 62, 63, 256)

def k_attn(a, cfg):
    S = cfg.SB; NST = 8
    AREG = 24576
    STG = AREG + 18*1024
    PITCH = 400
    a.c("---- part B role: xcd=s2&7, i=(s2>>3)-16")
    a.e("s_load_dwordx4 s[40:43], s[0:1], 40")
    a.e("s_and_b32 s12, s2, 7")
    a.e("s_lshr_b32 s13, s2, 3")
    a.e("s_sub_u32 s13, s13, 16")
    a.e("s_lshr_b32 s14, s13, 3")
    a.e("s_lshl_b32 s12, s12, 1")
    a.e("s_add_u32 s15, s12, s14")
    a.e("s_and_b32 s16, s13, 7")
    a.e("s_lshl_b32 s17, s14, 2")
    a.e("s_add_u32 s17, s17, s16")
    a.e("s_and_b32 s17, s17, 7")
    a.e("s_cmp_ge_u32 s3, 4")
    a.e("s_cbranch_scc0 L_att_cons")
    a.e("s_cmp_eq_u32 s3, 7")
    a.e("s_cbranch_scc1 L_att_pf")
    a.e("s_sub_u32 s18, s3, 4")
    a.e("v_lshrrev_b32 v2, 3, v1")
    a.e("v_and_b32 v3, 7, v1")
    a.e("v_bfe_u32 v4, v1, 4, 1")
    a.e("v_lshlrev_b32 v4, 1, v4")
    a.e("v_xor_b32 v3, v3, v4")
    a.e("v_xor_b32 v5, 4, v3")
    a.e("s_mov_b32 s22, 3072")
    a.e("v_mul_lo_u32 v2, v2, s22")
    a.e("s_lshl_b32 s19, s16, 7")
    a.e("s_lshl_b32 s22, s18, 10")
    a.e("s_add_u32 s19, s19, s22")
    a.e("v_add_u32 v2, s19, v2")
    a.e("v_lshl_add_u32 v6, v3, 4, v2")
    a.e("v_lshl_add_u32 v7, v5, 4, v2")
    for p in range(8):
        a.e(f"v_add_u32 v{10+p}, {p*8*3072 - (p%4)*1024}, v{6 if p%2==0 else 7}")
    a.e("v_lshrrev_b32 v2, 3, v1")
    a.e("v_and_b32 v3, 7, v1")
    a.e("v_lshrrev_b32 v4, 4, v1")
    a.e("v_xor_b32 v3, v3, v4")
    a.e("v_xor_b32 v5, 4, v3")
    a.e("s_lshl_b32 s19, s15, 7")
    a.e("s_sub_u32 s19, s19, 16")
    a.e("s_mul_i32 s22, s18, 48")
    a.e("s_add_u32 s19, s19, s22")
    a.e("v_add_u32 v2, s19, v2")
    a.e("v_lshlrev_b32 v2, 10, v2")
    a.e("v_lshl_add_u32 v6, v3, 4, v2")
    a.e("v_lshl_add_u32 v7, v5, 4, v2")
    for j in range(6):
        a.e(f"v_add_u32 v{20+j}, {j*8*1024}, v{6 if j%2==0 else 7}")
    a.e("s_mul_i32 s32, s17, 196608")
    a.e("s_lshl_b32 s33, s17, 7")
    a.e("s_lshl_b32 s34, s18, 13")
    a.e("s_mul_i32 s35, s18, 6144")
    a.e(f"s_add_u32 s35, s35, {AREG}")
    a.e("s_mov_b32 s20, 0")
    a.e("s_waitcnt lgkmcnt(0)")
    srd(a, 24, 42, 43, 512*1536*2)
    srd(a, 28, 40, 41, 2048*512*2)
    def issue():
        a.e("s_add_u32 s37, s20, s35")
        for j in range(6):
            a.e(f"s_add_u32 m0, s37, {j*1024}")
            a.e("s_nop 0")
            a.e(f"buffer_load_dwordx4 v{20+j}, s[28:31], s33 offen lds")
        a.e("s_add_u32 s37, s20, s34")
        for hh in range(2):
            a.e(f"s_add_u32 m0, s37, {hh*4096}")
            a.e("s_nop 0")
            for p in range(4):
                a.e(f"buffer_load_dwordx4 v{10+hh*4+p}, s[24:27], s32 offen offset:{p*1024} lds")
    def advance():
        a.e("s_add_u32 s32, s32, 196608")
        a.e(f"s_cmp_ge_u32 s32, {512*3072}")
        a.e("s_cselect_b32 s32, 0, s32")
        a.e("s_add_u32 s33, s33, 128")
        a.e("s_and_b32 s33, s33, 0x3ff")
        a.e(f"s_add_u32 s20, s20, {STG}")
        a.e(f"s_cmp_ge_u32 s20, {STG*S}")
        a.e("s_cselect_b32 s20, 0, s20")
    P = S - 1
    for i in range(P):
        issue(); advance()
    a.e(f"s_mov_b32 s21, {NST-P}")
    a.label("L_att_ld")
    a.e(f"s_waitcnt vmcnt({14*(P-1)})")
    a.e("s_barrier")
    issue(); advance()
    a.e("s_sub_u32 s21, s21, 1")
    a.e("s_cmp_lg_u32 s21, 0")
    a.e("s_cbranch_scc1 L_att_ld")
    for i in range(NST-P, NST):
        a.e(f"s_waitcnt vmcnt({14*(NST-1-i)})")
        a.e("s_barrier")
    a.label("L_att_e1")
    a.e("s_barrier")
    pc_loader_setup(a)
    op_loader_setup(a)
    a.e("s_barrier")
    for i in range(8): wo_issue(a, i)
    a.e("s_branch L_att_attn")
    a.label("L_att_pf")
    a.e("s_bfe_u32 s18, s13, 0x10002")
    a.e("s_add_u32 s18, s18, s12")
    a.e("s_lshl_b32 s18, s18, 7")
    a.e("s_and_b32 s19, s13, 3")
    a.e("s_lshl_b32 s19, s19, 5")
    a.e("s_add_u32 s18, s18, s19")
    a.e("v_lshrrev_b32 v2, 2, v1")
    a.e("v_add_u32 v2, s18, v2")
    a.e("v_lshlrev_b32 v2, 12, v2")
    a.e("v_and_b32 v3, 3, v1")
    a.e("v_lshl_add_u32 v236, v3, 7, v2")
    a.e("v_add_u32 v237, 0x10000, v236")
    a.e("s_lshl_b32 s18, s13, 4")
    a.e("v_lshrrev_b32 v2, 3, v1")
    a.e("v_add_u32 v2, s18, v2")
    a.e("v_lshlrev_b32 v2, 10, v2")
    a.e("v_and_b32 v3, 7, v1")
    a.e("v_lshl_add_u32 v238, v3, 7, v2")
    a.e("v_add_u32 v239, 0x2000, v238")
    a.e("s_waitcnt lgkmcnt(0)")
    srd(a, 24, 4, 5, 2048*512*2)
    a.e("s_cmp_eq_u32 s14, 0")
    a.e("s_cselect_b32 s28, s6, s8")
    a.e("s_cselect_b32 s29, s7, s9")
    a.e(f"s_mov_b32 s30, {2048*2048*2}")
    a.e("s_mov_b32 s31, 0x00020000")
    TD = 244
    tcount = [0]
    def touch(kind, b):
        for h in (0, 1):
            d = TD + (tcount[0] % 8); tcount[0] += 1
            if kind == "w":
                a.e(f"s_movk_i32 s32, {b*512}")
                a.e(f"buffer_load_dword v{d}, v{236+h}, s[28:31], s32 offen" + (" nt" if b <= cfg.pf_nt_upto else ""))
            else:
                a.e(f"s_mov_b32 s32, {b*256*1024}")
                a.e(f"buffer_load_dword v{d}, v{238+h}, s[24:27], s32 offen")
    for (k, b) in cfg.pf_early.get(-1, []): touch(k, b)
    for i in range(NST):
        a.e("s_barrier")
        for (k, b) in cfg.pf_early.get(i, []): touch(k, b)
    for (k, b) in cfg.pf_late: touch(k, b)
    if cfg.pf_weights:
        a.e("s_lshl_b32 s22, s13, 15")
        a.e("v_lshl_add_u32 v2, v1, 7, s22")
        for m_ in range(3):
            srd(a, 32, 44+2*m_, 45+2*m_, 512*512*2)
            for q in range(4):
                d = TD + (tcount[0] % 8); tcount[0] += 1
                a.e(f"s_movk_i32 s36, {q*8192}")
                a.e(f"buffer_load_dword v{d}, v2, s[32:35], s36 offen")
    a.e("s_branch L_att_e1")
    a.label("L_att_cons")
    ACC = 128 - 8
    F0, F1 = 24, 72
    BA, BB = 10, 12
    CA, CB = 16, 18
    a.e("v_bfe_u32 v2, v1, 2, 2")
    a.e("v_and_b32 v3, 3, v1")
    a.e("v_lshrrev_b32 v4, 4, v1")
    a.e("v_lshrrev_b32 v5, 1, v2")
    a.e("v_and_b32 v6, 1, v4")
    a.e("v_lshl_or_b32 v5, v6, 1, v5")
    a.e("v_xor_b32 v5, s3, v5")
    a.e("v_lshlrev_b32 v6, 7, v2")
    a.e("v_lshl_add_u32 v6, v4, 10, v6")
    a.e("v_lshl_add_u32 v6, v5, 5, v6")
    a.e(f"v_lshl_add_u32 v{BA}, v3, 3, v6")
    a.e("v_and_b32 v2, 15, v1")
    a.e("v_lshrrev_b32 v3, 1, v2")
    a.e("v_xor_b32 v3, v3, v4")
    a.e("v_lshlrev_b32 v5, 7, v2")
    a.e(f"v_add_u32 v5, {AREG}, v5")
    for ks in range(2):
        a.e(f"v_xor_b32 v6, {ks*4}, v3")
        a.e(f"v_lshl_add_u32 v{BB+ks}, v6, 4, v5")
    a.e(f"s_mov_b32 s22, {PITCH}")
    a.e("v_mul_lo_u32 v8, v2, s22")
    a.e("v_lshl_add_u32 v8, v4, 3, v8")
    a.e("s_lshl_b32 s22, s3, 5")
    a.e("v_add_u32 v8, s22, v8")
    for i in range(4, 108):
        a.e(f"v_mov_b32 v{ACC+i}, 0")
    a.e("s_mov_b32 s20, 0")
    def setaddr():
        a.e(f"v_add_u32 v{CA}, s20, v{BA}")
        for k in range(2): a.e(f"v_add_u32 v{CB+k}, s20, v{BB+k}")
        a.e(f"s_add_u32 s20, s20, {STG}")
        a.e(f"s_cmp_ge_u32 s20, {STG*S}")
        a.e("s_cselect_b32 s20, 0, s20")
    def reads(F, ks):
        r = []
        for seg in range(3):
            for u in range(2):
                r.append(f"ds_read_b64_tr_b16 v[{F+4*seg+2*u}:{F+4*seg+2*u+1}], v{CA} offset:{seg*8192 + (ks*32+u*4)*128}")
        for nt in range(9):
            r.append(f"ds_read_b128 v[{F+12+4*nt}:{F+12+4*nt+3}], v{CB+ks} offset:{nt*2048}")
        return r
    TL = [(nt, seg) for nt in range(9) for seg in range(3) if not (seg == 0 and nt == 0)]
    def mfmas(F):
        m = []
        for (nt, seg) in TL:
            d = ACC + (seg*9+nt)*4
            m.append(f"v_mfma_f32_16x16x32_bf16 v[{d}:{d+3}], v[{F+4*seg}:{F+4*seg+3}], v[{F+12+4*nt}:{F+12+4*nt+3}], v[{d}:{d+3}]")
        return m
    def interleave(m, r):
        out = []
        for i, x in enumerate(m):
            out.append(x)
            if i < len(r): out.append(r[i])
        return out
    a.e("s_waitcnt lgkmcnt(0)")
    ph_stamp(a, cfg, 0)
    a.e("s_barrier")
    ph_stamp(a, cfg, 1)
    setaddr()
    for x in reads(F0, 0): a.e(x)
    a.e(f"s_mov_b32 s21, {NST}")
    a.label("L_att_loop")
    a.e("s_waitcnt lgkmcnt(0)")
    for x in interleave(mfmas(F0), reads(F1, 1)): a.e(x)
    a.e("s_waitcnt lgkmcnt(0)")
    a.e("s_sub_u32 s21, s21, 1")
    a.e("s_cmp_eq_u32 s21, 0")
    a.e("s_cbranch_scc1 L_att_last")
    a.e("s_barrier")
    setaddr()
    for x in interleave(mfmas(F1), reads(F0, 0)): a.e(x)
    a.e("s_branch L_att_loop")
    a.label("L_att_last")
    a.e("s_barrier")
    ph_stamp(a, cfg, 2)
    m = mfmas(F1)
    def wr(idx):
        nt, seg = TL[idx]
        d = ACC + (seg*9+nt)*4
        tmp = F0 + 2*(idx % 16)
        return [f"v_cvt_pk_bf16_f32 v{tmp}, v{d}, v{d+1}", f"v_cvt_pk_bf16_f32 v{tmp+1}, v{d+2}, v{d+3}",
                f"ds_write_b64 v8, v[{tmp}:{tmp+1}] offset:{nt*16*PITCH + seg*128}"]
    LAG = 9
    for i, x in enumerate(m):
        a.e(x)
        if i >= LAG:
            for y in wr(i-LAG): a.e(y)
    a.e("s_nop 7")
    for i in range(len(m)-LAG, len(m)):
        for y in wr(i): a.e(y)
    a.e("s_waitcnt lgkmcnt(0)")
    a.e("s_barrier")
    a.label("L_att_attn")
    common_srds(a)
    nonce_issue(a)
    a.e("s_and_b32 s18, s3, 3")
    a.e("s_lshr_b32 s19, s3, 2")
    a.e("s_lshl_b32 s19, s19, 6")
    a.e("v_add_u32 v2, s19, v1")
    a.e(f"s_mov_b32 s22, {PITCH}")
    a.e("v_mul_lo_u32 v3, v2, s22")
    a.e("s_lshl_b32 s22, s18, 5")
    a.e(f"s_add_u32 s22, s22, {2*PITCH}")
    a.e("v_add_u32 v3, s22, v3")
    Q = 8; KK = 16; VV = 80; LG = 144; O = 160; T = 180
    a.e(f"ds_read_b128 v[{Q}:{Q+3}], v3 offset:{14*PITCH}")
    a.e(f"ds_read_b128 v[{Q+4}:{Q+7}], v3 offset:{14*PITCH+16}")
    for w in range(8):
        a.e(f"ds_read_b128 v[{KK+8*w}:{KK+8*w+3}], v3 offset:{(14-2*w)*PITCH+128}")
        a.e(f"ds_read_b128 v[{KK+8*w+4}:{KK+8*w+7}], v3 offset:{(14-2*w)*PITCH+144}")
    a.e("s_lshl_b32 s22, s15, 7")
    a.e("v_add_u32 v4, s22, v2")
    for w in range(8):
        a.e(f"s_waitcnt lgkmcnt({min(15, 14-2*w)})")
        a.e(f"v_mov_b32 v{LG+w}, 0")
        for i in range(8):
            a.e(f"v_dot2_f32_bf16 v{LG+w}, v{Q+i}, v{KK+8*w+i}, v{LG+w}")
    for w in range(8):
        a.e(f"ds_read_b128 v[{VV+8*w}:{VV+8*w+3}], v3 offset:{(14-2*w)*PITCH+256}")
        a.e(f"ds_read_b128 v[{VV+8*w+4}:{VV+8*w+7}], v3 offset:{(14-2*w)*PITCH+272}")
    a.e("s_nop 3")
    for w in range(0, 8, 2):
        a.e(f"v_cvt_pk_bf16_f32 v{T+w//2}, v{LG+w}, v{LG+w+1}")
    for w in range(0, 8, 2):
        a.e(f"v_lshlrev_b32 v{LG+w}, 16, v{T+w//2}")
        a.e(f"v_and_b32 v{LG+w+1}, 0xffff0000, v{T+w//2}")
    for w in range(8):
        a.e(f"v_mul_f32 v{LG+w}, 0x3e800000, v{LG+w}")
    a.e("v_mov_b32 v5, 0xce6e6b28")
    for w in range(1, 8):
        a.e(f"v_cmp_gt_u32 vcc, {2*w}, v4")
        a.e("s_nop 1")
        a.e(f"v_cndmask_b32 v{LG+w}, v{LG+w}, v5, vcc")
    a.e(f"v_max3_f32 v6, v{LG}, v{LG+1}, v{LG+2}")
    a.e(f"v_max3_f32 v6, v6, v{LG+3}, v{LG+4}")
    a.e(f"v_max3_f32 v6, v6, v{LG+5}, v{LG+6}")
    a.e(f"v_max_f32 v6, v6, v{LG+7}")
    a.e("s_mov_b32 s22, 0x3fb8aa3b")
    for w in range(8):
        a.e(f"v_sub_f32 v{LG+w}, v{LG+w}, v6")
    for w in range(8):
        a.e(f"v_mul_f32 v{LG+w}, s22, v{LG+w}")
    for w in range(8):
        a.e(f"v_exp_f32 v{LG+w}, v{LG+w}")
    a.e("s_nop 0")
    a.e(f"v_add_f32 v6, v{LG}, v{LG+1}")
    for w in range(2, 8):
        a.e(f"v_add_f32 v6, v6, v{LG+w}")
    a.e("v_rcp_f32 v6, v6")
    a.e("s_nop 0")
    for w in range(8):
        a.e(f"v_mul_f32 v{LG+w}, v{LG+w}, v6")
    for w in range(0, 8, 2):
        a.e(f"v_cvt_pk_bf16_f32 v{T+w//2}, v{LG+w}, v{LG+w+1}")
    for w in range(0, 8, 2):
        a.e(f"v_lshlrev_b32 v{LG+w}, 16, v{T+w//2}")
        a.e(f"v_and_b32 v{LG+w+1}, 0xffff0000, v{T+w//2}")
    for w in range(8):
        a.e(f"s_waitcnt lgkmcnt({14-2*w})")
        for i in range(8):
            src = VV+8*w+i
            a.e(f"v_lshlrev_b32 v{T+8}, 16, v{src}")
            a.e(f"v_and_b32 v{T+9}, 0xffff0000, v{src}")
            if w == 0:
                a.e(f"v_mul_f32 v{O+2*i}, v{LG}, v{T+8}")
                a.e(f"v_mul_f32 v{O+2*i+1}, v{LG}, v{T+9}")
            else:
                a.e(f"v_fmac_f32 v{O+2*i}, v{LG+w}, v{T+8}")
                a.e(f"v_fmac_f32 v{O+2*i+1}, v{LG+w}, v{T+9}")
    for i in range(8):
        a.e(f"v_cvt_pk_bf16_f32 v{T+i}, v{O+2*i}, v{O+2*i+1}")
    ph_stamp(a, cfg, 3)
    a.e("s_movk_i32 s22, 144")
    a.e("v_mul_lo_u32 v3, v2, s22")
    a.e("s_lshl_b32 s22, s18, 5")
    a.e(f"s_add_u32 s22, s22, {16*U}")
    a.e("v_add_u32 v3, s22, v3")
    a.e(f"ds_write_b128 v3, v[{T}:{T+3}]")
    a.e(f"ds_write_b128 v3, v[{T+4}:{T+7}] offset:16")
    a.e("v_lshrrev_b32 v2, 3, v1")
    a.e("s_lshl_b32 s22, s3, 4")
    a.e("v_add_u32 v2, s22, v2")
    a.e("v_and_b32 v3, 7, v1")
    a.e("s_movk_i32 s22, 144")
    a.e("v_mul_lo_u32 v4, v2, s22")
    a.e("v_lshl_add_u32 v4, v3, 4, v4")
    a.e(f"v_add_u32 v4, {16*U}, v4")
    a.e("s_lshl_b32 s22, s15, 7")
    a.e("v_add_u32 v2, s22, v2")
    a.e("v_lshlrev_b32 v2, 10, v2")
    a.e("v_lshl_add_u32 v2, v3, 4, v2")
    a.e("s_lshl_b32 s22, s16, 7")
    a.e(f"s_add_u32 s22, s22, {WS_O}")
    a.e("s_add_u32 s23, s22, 8192")
    a.e("s_waitcnt lgkmcnt(0)")
    a.e("s_barrier")
    a.e("ds_read_b128 v[8:11], v4")
    a.e(f"ds_read_b128 v[12:15], v4 offset:{8*144}")
    a.e("s_waitcnt lgkmcnt(1)")
    a.e(f"buffer_store_dwordx4 v[8:11], v2, s[64:67], s22 offen{cfg.st_mode}")
    a.e("s_waitcnt lgkmcnt(0)")
    a.e(f"buffer_store_dwordx4 v[12:15], v2, s[64:67], s23 offen{cfg.st_mode}")
    a.e("s_lshl_b32 s60, s16, 3")
    a.e(f"s_mul_i32 s22, s15, {FSTR}")
    a.e("s_add_u32 s60, s60, s22")
    a.e(f"s_add_u32 s60, s60, {WS_FO}")
    a.e("s_mov_b32 s61, 0")
    nonce_get(a)
    ph_stamp(a, cfg, 4)
    a.e("s_barrier")
    a.e("s_cmp_ge_u32 s3, 4")
    a.e("s_cbranch_scc0 L_op_cons")
    a.e("s_lshl_b32 s54, s52, 1")
    a.e("s_cmp_lg_u32 s3, 4")
    a.e("s_cbranch_scc1 L_op_nopoll")
    flag_store(a, 60)
    flag_poll(a, PA+9, cfg)
    a.label("L_op_nopoll")
    a.e("s_barrier")
    ph_stamp(a, cfg, 45)
    ops = []
    def o_issue(i):
        a.e(f"s_add_u32 s53, s16, {i}")
        a.e("s_and_b32 s53, s53, 7")
        a.e("s_lshl_b32 s53, s53, 7")
        a.e(f"s_add_u32 m0, s54, {(i%4)*2*U}")
        a.e("s_nop 0")
        for j in range(4):
            a.e(f"buffer_load_dwordx4 v{190+j}, s[64:67], s53 offen offset:{j*1024} lds")
    def do(tag):
        if tag[0] == "o": o_issue(tag[1]); ops.append((tag, 4))
        else: wd_issue(a, tag[1]); ops.append((tag, 2))
    def wait_for(tag):
        last = max(i for i, (t, c) in enumerate(ops) if t == tag)
        a.e(f"s_waitcnt vmcnt({sum(c for (t, c) in ops[last+1:])})")
    for i in range(4): do(("o", i))
    sched = {1: [("o",4), ("w",4)], 2: [("o",5), ("w",5)], 3: [("o",6), ("w",6)], 4: [("o",7), ("w",7)],
             5: [("w",8), ("w",0), ("w",1)], 6: [("w",9), ("w",2), ("w",3)], 7: [("w",10)]}
    for n in range(8):
        wait_for(("o", n))
        a.e("s_barrier")
        for tag in sched.get(n, []): do(tag)
        ph_stamp(a, cfg, 46+n)
    a.e("s_barrier")
    wd_issue(a, 11)
    a.e("s_waitcnt vmcnt(0)")
    ph_stamp(a, cfg, 44)
    a.e("s_barrier")
    a.e("s_branch L_y_loader")
    a.label("L_op_cons")
    pc_cons_setup(a)
    OA = 20
    OF = [52, 100]
    a.e("s_lshl_b32 s22, s19, 12")
    for ks in range(4):
        a.e(f"v_add_u32 v{150+ks}, s22, v{PC_B0+ks}")
    a.e(f"v_add_u32 v154, 0x10000, v{PC_T0}")
    a.e("v_and_b32 v2, 31, v1")
    a.e("s_lshl_b32 s22, s15, 7")
    a.e("s_lshl_b32 s23, s19, 6")
    a.e("s_add_u32 s22, s22, s23")
    a.e("v_add_u32 v2, s22, v2")
    a.e("v_lshlrev_b32 v2, 11, v2")
    a.e("v_lshrrev_b32 v3, 5, v1")
    a.e("v_lshl_add_u32 v2, v3, 4, v2")
    a.e("s_lshl_b32 s22, s16, 7")
    a.e("s_lshl_b32 s23, s18, 6")
    a.e("s_add_u32 s22, s22, s23")
    a.e("v_add_u32 v155, s22, v2")
    a.e("v_add_u32 v156, 0x10000, v155")
    srd(a, 24, 50, 51, 2048*1024*2)
    def oreads(n):
        F = OF[n % 2]; r = []
        for ks in range(4):
            for u in range(2):
                r.append(f"ds_read_b64_tr_b16 v[{F+4*ks+2*u}:{F+4*ks+2*u+1}], v154 offset:{n*U + (ks*16+u*4)*128}")
            for jn in range(2):
                d = F + 16 + 4*(ks*2+jn)
                r.append(f"ds_read_b128 v[{d}:{d+3}], v{150+ks} offset:{(n%4)*2*U + jn*4096}")
        return r
    def omf(n):
        F = OF[n % 2]; m = []
        for ks in range(4):
            for jn in range(2):
                acc = OA + 16*jn; b = F + 16 + 4*(ks*2+jn)
                c = "0" if (n == 0 and ks == 0) else f"v[{acc}:{acc+15}]"
                m.append(f"v_mfma_f32_32x32x16_bf16 v[{acc}:{acc+15}], v[{F+4*ks}:{F+4*ks+3}], v[{b}:{b+3}], {c}")
        return m
    a.e("s_barrier")
    a.e("s_barrier")
    for x in oreads(0): a.e(x)
    ph_stamp(a, cfg, 5)
    for n in range(8):
        a.e("s_waitcnt lgkmcnt(0)")
        a.e("s_barrier")
        for x in mixd(omf(n), oreads(n+1) if n < 7 else [], 3): a.e(x)
    a.e("s_nop 7"); a.e("s_nop 7")
    for jn in range(2):
        pack_tile32(a, OA+16*jn, 52+8*jn)
        a.e("s_nop 1")
        for g in range(2):
            a.e(f"buffer_store_dwordx4 v[{52+8*jn+4*g}:{52+8*jn+4*g+3}], v{155+jn}, s[24:27], 0 offen offset:{1024 + g*32}")
    ph_stamp(a, cfg, 6)
    a.e("s_barrier")
    a.e("s_branch L_y_cons")

PC_A0, PC_A1 = 212, 216
PC_B0, PC_B2 = 220, 224
PC_T0, PC_T2 = 236, 237
PC_ST = 238
def pc_cons_setup(a):
    a.e("s_and_b32 s18, s3, 1")
    a.e("s_lshr_b32 s19, s3, 1")
    a.e("v_and_b32 v2, 31, v1")
    a.e("v_bfe_u32 v3, v2, 1, 3")
    a.e("v_lshrrev_b32 v5, 5, v1")
    a.e("v_xor_b32 v3, v3, v5")
    a.e("v_lshlrev_b32 v4, 7, v2")
    a.e("s_lshl_b32 s22, s18, 12")
    a.e("s_lshl_b32 s23, s19, 12")
    for ks in range(4):
        a.e(f"v_xor_b32 v6, {ks*2}, v3")
        a.e("v_lshl_add_u32 v6, v6, 4, v4")
        a.e(f"v_add_u32 v{PC_A0+ks}, s22, v6")
        a.e(f"v_add_u32 v{PC_B0+ks}, s23, v6")
        a.e(f"v_add_u32 v{PC_A1+ks}, 0x10000, v{PC_A0+ks}")
        a.e(f"v_add_u32 v{PC_B2+ks}, 0x20000, v{PC_B0+ks}")
    a.e("s_lshl_b32 s22, s72, 6")
    a.e("s_lshl_b32 s23, s19, 5")
    a.e("s_add_u32 s22, s22, s23")
    a.e("v_add_u32 v6, s22, v2")
    a.e("v_lshlrev_b32 v6, 11, v6")
    a.e("v_lshl_add_u32 v6, v5, 4, v6")
    a.e("s_lshl_b32 s22, s73, 7")
    a.e("s_lshl_b32 s23, s18, 6")
    a.e("s_add_u32 s22, s22, s23")
    a.e(f"v_add_u32 v{PC_ST}, s22, v6")
    a.e("v_bfe_u32 v2, v1, 2, 2")
    a.e("v_and_b32 v3, 3, v1")
    a.e("v_bfe_u32 v4, v1, 4, 1")
    a.e("v_lshlrev_b32 v6, 7, v2")
    a.e("v_lshl_add_u32 v6, v5, 10, v6")
    a.e("v_lshl_add_u32 v6, v4, 5, v6")
    a.e("v_lshl_add_u32 v6, v3, 3, v6")
    a.e("v_lshrrev_b32 v7, 1, v2")
    a.e("v_xor_b32 v7, s18, v7")
    a.e(f"v_lshl_add_u32 v{PC_T0}, v7, 6, v6")
    a.e(f"v_add_u32 v{PC_T2}, 0x20000, v{PC_T0}")

def mixd(m, r, per):
    out = []; r = list(r)
    for x in m:
        out.append(x)
        out += r[:per]; r = r[per:]
    return out + r

def phase_c(a, cfg):
    a.label("L_y_loader")
    a.e("s_add_u32 s54, s52, 8192")
    def issue(y):
        slot = RING[y % 4]
        a.e(f"s_add_u32 s53, s73, {y}")
        a.e("s_and_b32 s53, s53, 7")
        a.e("s_lshl_b32 s53, s53, 8")
        a.e("s_add_u32 s55, s53, 128")
        a.e(f"s_add_u32 m0, s52, {slot}")
        a.e("s_nop 0")
        a.e(f"buffer_load_dwordx4 v{PA+2}, s[64:67], s53 offen lds")
        a.e(f"buffer_load_dwordx4 v{PA+3}, s[64:67], s53 offen offset:1024 lds")
        a.e(f"s_add_u32 m0, s54, {slot}")
        a.e("s_nop 0")
        a.e(f"buffer_load_dwordx4 v{PA+2}, s[64:67], s55 offen lds")
        a.e(f"buffer_load_dwordx4 v{PA+3}, s[64:67], s55 offen offset:1024 lds")
    a.e("s_barrier")
    for pos in (12, 13, 14, 15): wd_issue(a, pos)
    a.e("s_barrier")
    ph_stamp(a, cfg, 40)
    a.e("s_cmp_lg_u32 s3, 4")
    a.e("s_cbranch_scc1 L_y_nopoll")
    a.e("s_cmp_eq_u32 s61, 0")
    a.e("s_cbranch_scc1 L_y_nofl")
    flag_store(a, 60)
    a.label("L_y_nofl")
    flag_poll(a, PA+8, cfg)
    a.label("L_y_nopoll")
    a.e("s_waitcnt vmcnt(0)")
    a.e("s_barrier")
    ph_stamp(a, cfg, 41)
    for y in range(4): issue(y)
    issued = 4
    for y in range(8):
        a.e(f"s_waitcnt vmcnt({4*(issued-1-y)})")
        a.e("s_barrier")
        if y >= 1 and issued < 8:
            issue(issued); issued += 1
        if y < 6: ph_stamp(a, cfg, 54+y)
    ph_stamp(a, cfg, 42)
    a.e("s_branch L_pc_end")
    a.label("L_y_cons")
    ACC1 = 20
    FS = [52, 84]
    RA = 116
    def rdB(dst, ks, addr):
        base = PC_B0 if addr < 65536 else PC_B2
        off = addr if addr < 65536 else addr - 131072
        return f"ds_read_b128 v[{dst}:{dst+3}], v{base+ks} offset:{off}"
    def rdA(pos):
        addr = WD_UNIT[pos]*U
        base = PC_A0 if addr < 65536 else PC_A1
        off = addr % 65536
        dst = RA + (pos % 6)*16
        return [f"ds_read_b128 v[{dst+4*ks}:{dst+4*ks+3}], v{base+ks} offset:{off}" for ks in range(4)]
    def reads(y):
        F = FS[y % 2]; slot = RING[y % 4]
        return [rdB(F+4*(c*4+ks), ks, slot + c*U) for c in range(2) for ks in range(4)]
    def mf(y):
        F = FS[y % 2]; m = []
        for c_ in range(2):
            ra = RA + ((2*y+c_) % 6)*16
            for ks in range(4):
                c = "0" if (y == 0 and c_ == 0 and ks == 0) else f"v[{ACC1}:{ACC1+15}]"
                b = F + 4*(c_*4+ks)
                m.append(f"v_mfma_f32_32x32x16_bf16 v[{ACC1}:{ACC1+15}], v[{ra+4*ks}:{ra+4*ks+3}], v[{b}:{b+3}], {c}")
        return m
    a.e("s_nop 1")
    for pos in range(6):
        for x in rdA(pos): a.e(x)
    srd(a, 24, 50, 51, 2048*1024*2)
    a.e("s_waitcnt lgkmcnt(0)")
    a.e("s_barrier")
    a.e("s_waitcnt vmcnt(0)")
    if cfg.phases:
        a.e("s_cmp_lt_u32 s2, 128")
        a.e("s_cbranch_scc0 L_ph5")
        ph_stamp(a, cfg, 5)
        a.label("L_ph5")
    a.e("s_barrier")
    a.e("s_barrier")
    a.e("s_barrier")
    ph_stamp(a, cfg, 7)
    for x in reads(0): a.e(x)
    pendA = 0
    for y in range(8):
        a.e(f"s_waitcnt lgkmcnt({pendA})")
        m = mf(y)
        if y < 7:
            a.e("s_barrier")
            for x in mixd(m, reads(y+1), 3): a.e(x)
            if y + 3 < 8:
                for x in rdA(2*(y+3)) + rdA(2*(y+3)+1): a.e(x)
                pendA = 8
            else:
                pendA = 0
        else:
            for x in m: a.e(x)
    ph_stamp(a, cfg, 8)
    a.e("s_nop 7"); a.e("s_nop 7")
    pack_tile32(a, ACC1, 8)
    a.e("s_nop 1")
    for g in range(2):
        a.e(f"buffer_store_dwordx4 v[{8+4*g}:{8+4*g+3}], v{PC_ST}, s[24:27], 0 offen offset:{g*32}")
    a.label("L_pc_end")

def gen(cfg):
    a = Asm()
    K = NAME + "_kernel"
    a.raw(HDR.rstrip("\n"))
    a.raw(f"; @launch grid=(256,1,1) block=(512,1,1) lds=163840")
    a.raw('.amdgcn_target "amdgcn-amd-amdhsa--gfx950"')
    a.raw(".text")
    a.raw(f".globl {K}"); a.raw(".p2align 8"); a.raw(f".type {K},@function"); a.label(K)
    a.e("s_cmp_ge_u32 s2, 256")
    a.e("s_cbranch_scc1 L_exit")
    a.e("s_load_dwordx2 s[4:5], s[0:1], 0")
    a.e("s_load_dwordx2 s[6:7], s[0:1], 8")
    a.e("s_load_dwordx2 s[8:9], s[0:1], 16")
    a.e("s_load_dwordx2 s[10:11], s[0:1], 80")
    a.e("s_load_dwordx4 s[44:47], s[0:1], 24")
    a.e("s_load_dwordx4 s[48:51], s[0:1], 56")
    a.e("s_load_dwordx2 s[62:63], s[0:1], 72")
    wave_ids(a)
    ph_init(a, cfg)
    a.e("s_and_b32 s72, s2, 7")
    a.e("s_lshl_b32 s72, s72, 2")
    a.e("s_lshr_b32 s73, s2, 6")
    a.e("s_add_u32 s72, s72, s73")
    a.e("s_bfe_u32 s73, s2, 0x30003")
    a.e("s_mov_b32 s58, 524288")
    a.e("s_mov_b32 s59, 0x00020000")
    a.e("s_cmp_ge_u32 s2, 128")
    a.e("s_cbranch_scc1 L_partb")
    k_big(a, cfg)
    a.label("L_partb")
    k_attn(a, cfg)
    phase_c(a, cfg)
    ph_dump(a, cfg, [(0, 0), (4, 131072), (7, 65536)])
    a.label("L_exit")
    a.e("s_endpgm")
    a.raw('.section .rodata,"a"')
    for l in kdesc(K, 256): a.raw(l)
    return a.text()

def mk(name, **kw):
    cfg = Cfg()
    for k, v in kw.items(): setattr(cfg, k, v)
    open(name, "w").write(gen(cfg))

if __name__ == "__main__":
    mk("v6.s")
    mk("v6_ph.s", phases=True)
    mk("v6_ph_s0.s", phases=True, poll_sleep=0)
    mk("v6_ph_s6.s", phases=True, poll_sleep=6)
```

```python
import sys
from asmlib import *
NAME = "concat_heads__spectral_fnet__sliding_local_dilated__prompt"
HDR = open("cdna_kernels/%s.s.ref" % NAME).read().split("; Override launch")[0]

WS_CD = 0
WS_O = 5 << 20
CDP = 2048
OP = 1024
FSTR = 4352
WS_FC = 8 << 20
WS_FO = WS_FC + 16*FSTR
WS_BYTES = (8 << 20) + 32*FSTR

U = 8192
WD_UNIT = [0,1,2,3, 8,9,10,11, 12,13,14,15, 0,1,2,3]
RING = [4*U, 6*U, 16*U, 18*U]

class Cfg:
    S1 = 5
    SB = 3
    phases = False
    look = 1
    pf_early = {0: [("w",2)], 1: [("x",2)], 2: [("w",3)], 3: [("x",3)], 4: [("w",4)], 5: [("x",4)]}
    pf_late = [("w",5),("x",5),("w",6),("x",6),("w",7),("x",7)]
    pf_nt_upto = 4
    pf_weights = False
    flag_at = 0
    poll_sleep = 2
    wo_at = 'late'
    nt_xb0 = True
    fake16 = False
    xrot = 0
    nbx = 0
    out_st = ''
    y_st = ''
    yrot_stag = True
    ld_sc1 = False
    wd_early = False
    st_mode = ' sc1'
    nt_lead_upto = 1

def wave_ids(a):
    a.e("v_lshrrev_b32 v1, 6, v0")
    a.e("s_nop 0")
    a.e("v_readfirstlane_b32 s3, v1")
    a.e("v_and_b32 v1, 63, v0")

def ph_init(a, cfg):
    if not cfg.phases: return
    a.e("v_mov_b32 v240, 0")
    a.e("s_memrealtime s[80:81]")
    a.e("s_memtime s[84:85]")
    a.e("s_waitcnt lgkmcnt(0)")
    a.e("v_writelane_b32 v240, s80, 60")
    a.e("v_writelane_b32 v240, s84, 61")
    a.e("s_mov_b32 s82, 0")
def ph_stamp(a, cfg, idx):
    if not cfg.phases: return
    a.e("s_memtime s[80:81]")
    a.e("s_waitcnt lgkmcnt(0)")
    a.e(f"v_writelane_b32 v240, s80, {idx}")
def ph_rt(a, cfg, idx):
    if not cfg.phases: return
    a.e("s_memrealtime s[80:81]")
    a.e("s_waitcnt lgkmcnt(0)")
    a.e(f"v_writelane_b32 v240, s80, {idx}")
def ph_stamp_seq(a, cfg):
    if not cfg.phases: return
    a.e("s_memtime s[80:81]")
    a.e("s_waitcnt lgkmcnt(0)")
    a.e("v_mov_b32 v242, s80")
    a.e("v_cmp_eq_u32 vcc, s82, v1")
    a.e("s_nop 1")
    a.e("v_cndmask_b32 v240, v240, v242, vcc")
    a.e("s_add_u32 s82, s82, 1")
def ph_dump(a, cfg, waves_offs):
    if not cfg.phases: return
    for wave, off in waves_offs:
        L = a.newlabel("L_pd")
        a.e(f"s_cmp_lg_u32 s3, {wave}")
        a.e(f"s_cbranch_scc1 {L}")
        a.e("s_waitcnt vmcnt(0)")
        a.e("s_memrealtime s[80:81]")
        a.e("s_memtime s[84:85]")
        a.e("s_load_dwordx2 s[86:87], s[0:1], 80")
        a.e("s_waitcnt lgkmcnt(0)")
        a.e("v_writelane_b32 v240, s80, 62")
        a.e("v_writelane_b32 v240, s84, 63")
        a.e(f"s_add_u32 s92, s86, {0x3000000 + off}")
        a.e("s_addc_u32 s93, s87, 0")
        a.e("s_mov_b32 s94, 0x100000")
        a.e("s_mov_b32 s95, 0x00020000")
        a.e("s_lshl_b32 s90, s2, 8")
        a.e("v_lshl_add_u32 v241, v1, 2, s90")
        a.e("buffer_store_dword v240, v241, s[92:95], 0 offen")
        a.label(L)

def pack_tile32(a, acc, tmp, xorreg=None):
    for g in range(4):
        a.e(f"v_cvt_pk_bf16_f32 v{tmp+2*g}, v{acc+4*g}, v{acc+4*g+1}")
        a.e(f"v_cvt_pk_bf16_f32 v{tmp+2*g+1}, v{acc+4*g+2}, v{acc+4*g+3}")
    if xorreg is not None:
        for i in range(8):
            a.e(f"v_xor_b32 v{tmp+i}, s{xorreg}, v{tmp+i}")
    a.e("s_nop 1")
    for g in (0, 2):
        a.e(f"v_permlane32_swap_b32 v{tmp+2*g}, v{tmp+2*g+2}")
        a.e(f"v_permlane32_swap_b32 v{tmp+2*g+1}, v{tmp+2*g+3}")

NONCE_V = 232

def nonce_issue(a):
    a.e("v_mov_b32 v234, 0")
    a.e(f"buffer_load_dwordx2 v[{NONCE_V}:{NONCE_V+1}], v234, s[68:71], 0 offen sc1")
def nonce_get(a):
    L = a.newlabel("L_nn"); D = a.newlabel("L_nd")
    a.label(L)
    a.e("s_waitcnt vmcnt(0)")
    a.e(f"v_readfirstlane_b32 s74, v{NONCE_V}")
    a.e(f"v_readfirstlane_b32 s75, v{NONCE_V+1}")
    a.e("s_nop 0")
    a.e("s_cmp_lg_u32 s74, 0")
    a.e(f"s_cbranch_scc1 {D}")
    a.e(f"buffer_load_dwordx2 v[{NONCE_V}:{NONCE_V+1}], v234, s[68:71], 0 offen sc1")
    a.e(f"s_branch {L}")
    a.label(D)
def flag_store(a, soff_reg):
    a.e("v_mov_b32 v230, s74")
    a.e("v_mov_b32 v231, s75")
    a.e("v_mov_b32 v234, 0")
    a.e("s_mov_b64 exec, 1")
    a.e(f"buffer_store_dwordx2 v[230:231], v234, s[64:67], s{soff_reg} offen sc1")
    a.e("s_mov_b64 exec, -1")
def flag_poll(a, voff, cfg):
    L = a.newlabel("L_poll"); L0 = a.newlabel("L_poll0")
    a.e(f"s_branch {L0}")
    a.label(L)
    if cfg.poll_sleep: a.e(f"s_sleep {cfg.poll_sleep}")
    a.label(L0)
    a.e(f"buffer_load_dwordx2 v[228:229], v{voff}, s[64:67], 0 offen sc1")
    a.e("s_waitcnt vmcnt(0)")
    a.e("v_cmp_eq_u32 s[76:77], s74, v228")
    a.e("v_cmp_eq_u32 s[78:79], s75, v229")
    a.e("s_nop 1")
    a.e("s_and_b64 s[76:77], s[76:77], s[78:79]")
    a.e("s_cmp_eq_u64 s[76:77], -1")
    a.e(f"s_cbranch_scc0 {L}")

PA = 200
def pc_loader_setup(a):
    a.e("s_sub_u32 s18, s3, 4")
    a.e("v_lshrrev_b32 v2, 3, v1")
    a.e("v_and_b32 v3, 7, v1")
    a.e("v_lshrrev_b32 v4, 4, v1")
    a.e("v_xor_b32 v3, v3, v4")
    a.e("v_xor_b32 v5, 4, v3")
    a.e("s_lshl_b32 s19, s18, 4")
    a.e("v_add_u32 v2, s19, v2")
    a.e("s_lshl_b32 s19, s73, 6")
    a.e("v_add_u32 v6, s19, v2")
    a.e("v_lshlrev_b32 v6, 10, v6")
    a.e(f"v_lshl_add_u32 v{PA}, v3, 4, v6")
    a.e(f"v_lshl_add_u32 v{PA+1}, v5, 4, v6")
    a.e(f"v_add_u32 v{PA+1}, {8*1024-1024}, v{PA+1}")
    a.e("s_lshl_b32 s19, s72, 6")
    a.e("v_add_u32 v6, s19, v2")
    a.e(f"s_movk_i32 s19, {CDP}")
    a.e("v_mul_lo_u32 v7, v6, s19")
    a.e(f"v_lshl_add_u32 v{PA+2}, v3, 4, v7")
    a.e(f"v_lshl_add_u32 v{PA+3}, v5, 4, v7")
    a.e(f"v_add_u32 v{PA+3}, {8*CDP-1024}, v{PA+3}")
    a.e("s_lshr_b32 s19, s72, 1")
    a.e(f"s_mul_i32 s22, s19, {FSTR}")
    a.e(f"s_add_u32 s22, s22, {WS_FC}")
    a.e("v_and_b32 v3, 31, v1")
    a.e(f"v_lshl_add_u32 v{PA+8}, v3, 3, s22")
    a.e("s_lshl_b32 s52, s18, 11")

def op_loader_setup(a):
    a.e("s_sub_u32 s18, s3, 4")
    a.e("v_lshrrev_b32 v2, 3, v1")
    a.e("v_and_b32 v3, 7, v1")
    a.e("v_lshrrev_b32 v4, 4, v1")
    a.e("v_xor_b32 v3, v3, v4")
    a.e("v_xor_b32 v5, 4, v3")
    a.e("s_lshl_b32 s19, s18, 5")
    a.e("s_lshl_b32 s22, s15, 7")
    a.e("s_add_u32 s19, s19, s22")
    a.e("v_add_u32 v6, s19, v2")
    a.e(f"s_movk_i32 s19, {OP}")
    a.e("v_mul_lo_u32 v6, v6, s19")
    a.e(f"v_add_u32 v6, {WS_O}, v6")
    a.e("v_lshl_add_u32 v7, v5, 4, v6")
    a.e("v_lshl_add_u32 v6, v3, 4, v6")
    for j in range(4):
        a.e(f"v_add_u32 v{190+j}, {j*8*OP - j*1024}, v{6 if j%2==0 else 7}")
    a.e("s_lshl_b32 s19, s18, 4")
    a.e("v_add_u32 v2, s19, v2")
    a.e("v_and_b32 v3, 7, v1")
    a.e("v_bfe_u32 v4, v1, 4, 1")
    a.e("v_lshlrev_b32 v4, 2, v4")
    a.e("v_xor_b32 v3, v3, v4")
    a.e("v_lshlrev_b32 v6, 10, v2")
    a.e("v_lshl_add_u32 v6, v3, 4, v6")
    a.e("s_lshl_b32 s19, s16, 7")
    a.e(f"v_add_u32 v{PA+6}, s19, v6")
    a.e(f"v_add_u32 v{PA+7}, {8*1024-1024}, v{PA+6}")
    a.e(f"s_mul_i32 s22, s15, {FSTR}")
    a.e(f"s_add_u32 s22, s22, {WS_FO}")
    a.e("v_and_b32 v3, 7, v1")
    a.e(f"v_lshl_add_u32 v{PA+9}, v3, 3, s22")
    srd(a, 36, 48, 49, 512*512*2)

def wo_issue(a, i):
    a.e(f"s_add_u32 s53, s17, {i}")
    a.e("s_and_b32 s53, s53, 7")
    a.e("s_lshl_b32 s53, s53, 16")
    a.e(f"s_add_u32 m0, s52, {(8+i)*U}")
    a.e("s_nop 0")
    a.e(f"buffer_load_dwordx4 v{PA+6}, s[36:39], s53 offen lds")
    a.e(f"buffer_load_dwordx4 v{PA+7}, s[36:39], s53 offen offset:1024 lds")

def wd_issue(a, pos):
    a.e("s_lshl_b32 s53, s88, 1")
    a.e(f"s_add_u32 s53, s53, {pos}")
    a.e("s_bitcmp1_b32 s53, 3")
    a.e("s_cselect_b32 s56, s46, s44")
    a.e("s_cselect_b32 s57, s47, s45")
    a.e("s_and_b32 s53, s53, 7")
    a.e("s_lshl_b32 s53, s53, 7")
    a.e(f"s_add_u32 m0, s52, {WD_UNIT[pos]*U}")
    a.e("s_nop 0")
    a.e(f"buffer_load_dwordx4 v{PA}, s[56:59], s53 offen lds")
    a.e(f"buffer_load_dwordx4 v{PA+1}, s[56:59], s53 offen offset:1024 lds")

def k_big(a, cfg):
    S = cfg.S1; STG = 32768; NST = 32
    assert S == 5
    a.c("---- big GEMM role: xcd=s2&7, i=s2>>3 (0..15)")
    a.e("s_and_b32 s12, s2, 7")
    a.e("s_lshr_b32 s13, s2, 3")
    a.e("s_lshr_b32 s14, s13, 3")
    a.e("s_bfe_u32 s15, s13, 0x10002")
    a.e("s_lshl_b32 s12, s12, 1")
    a.e("s_add_u32 s15, s15, s12")
    a.e("s_and_b32 s16, s13, 3")
    if cfg.nbx: a.e(f"s_xor_b32 s16, s16, {cfg.nbx}")
    a.e("s_lshr_b32 s17, s13, 2")
    a.e("s_add_u32 s17, s17, s16")
    a.e("s_and_b32 s17, s17, 3")
    a.e("s_cmp_ge_u32 s3, 4")
    a.e("s_cbranch_scc0 L_big_cons")
    a.e("s_sub_u32 s18, s3, 4")
    a.e("v_lshrrev_b32 v2, 4, v1")
    a.e("v_and_b32 v3, 15, v1")
    a.e("v_lshlrev_b32 v4, 2, v2")
    a.e("v_xor_b32 v3, v3, v4")
    a.e("s_lshl_b32 s19, s18, 4")
    a.e("v_add_u32 v4, s19, v2")
    a.e("v_lshlrev_b32 v4, 10, v4")
    a.e("v_lshl_add_u32 v4, v3, 4, v4")
    a.e("s_lshl_b32 s19, s16, 8")
    a.e("v_add_u32 v4, s19, v4")
    for j in range(4):
        a.e(f"v_add_u32 v{10+j}, {j*4096 - j*1024}, v4")
    a.e("v_lshrrev_b32 v4, 3, v1")
    a.e("v_and_b32 v3, 7, v1")
    a.e("v_xor_b32 v3, v3, v2")
    a.e("v_xor_b32 v5, 4, v3")
    a.e("s_lshl_b32 s19, s18, 5")
    a.e("s_lshl_b32 s22, s15, 7")
    a.e("s_add_u32 s19, s19, s22")
    a.e("v_add_u32 v4, s19, v4")
    a.e("v_lshlrev_b32 v4, 12, v4")
    a.e("v_lshl_add_u32 v6, v3, 4, v4")
    a.e("v_lshl_add_u32 v7, v5, 4, v4")
    for j in range(4):
        a.e(f"v_add_u32 v{14+j}, {j*8*4096 - j*1024}, v{6 if j%2==0 else 7}")
    L = cfg.look; NF = 4*(8-L)
    a.e(f"v_add_u32 v20, {-L}, v1")
    a.e("v_and_b32 v21, 3, v20")
    a.e("v_and_b32 v22, -4, v20")
    a.e("v_cmp_lt_u32 vcc, s17, v21")
    a.e("s_nop 1")
    a.e("v_subbrev_co_u32 v25, vcc, 0, v21, vcc")
    a.e(f"v_add_u32 v26, {-NF}, v20")
    a.e("v_mul_u32_u24 v27, 11, v26")
    a.e("v_lshrrev_b32 v27, 5, v27")
    a.e("v_mul_u32_u24 v28, 3, v27")
    a.e("v_sub_u32 v28, v26, v28")
    a.e(f"v_lshl_add_u32 v27, v27, 2, {NF}")
    a.e(f"v_cmp_le_u32 vcc, {NF+L}, v1")
    a.e("v_mov_b32 v29, -1")
    a.e("s_nop 0")
    a.e("v_cndmask_b32 v22, v22, v27, vcc")
    a.e("v_cndmask_b32 v25, v25, v28, vcc")
    a.e("v_cndmask_b32 v21, v21, v29, vcc")
    a.e("s_add_u32 s36, s17, 1")
    a.e("v_add_u32 v23, s36, v25")
    a.e("v_and_b32 v23, 3, v23")
    a.e("v_add_u32 v23, v22, v23")
    a.e(f"s_add_u32 s36, s17, {4*L + 32}")
    a.e("v_add_u32 v24, s36, v22")
    a.e("v_cmp_eq_u32 vcc, s17, v21")
    a.e("s_nop 1")
    a.e("v_cndmask_b32 v23, v23, v24, vcc")
    a.e("s_add_u32 s36, s17, 32")
    a.e("v_lshl_add_u32 v24, v1, 2, s36")
    a.e(f"v_cmp_gt_u32 vcc, {L}, v1")
    a.e("s_nop 1")
    a.e("v_cndmask_b32 v23, v23, v24, vcc")
    if cfg.nt_lead_upto >= 0:
        a.e("v_and_b32 v24, 31, v23")
        a.e(f"v_cmp_lt_u32 vcc, {32 + 4*cfg.nt_lead_upto + 3}, v23")
        a.e("s_nop 1")
        a.e("v_cndmask_b32 v23, v23, v24, vcc")
    a.e("s_mov_b32 s36, 0")
    a.e(f"s_mul_i32 s39, s12, {2*cfg.xrot}")
    a.e("s_lshl_b32 s34, s18, 12")
    a.e("s_add_u32 s35, s34, 16384")
    a.e("s_mov_b32 s20, 0")
    def nextk():
        a.e("v_readlane_b32 s37, v23, s36")
        a.e("s_add_u32 s36, s36, 1")
        a.e("s_and_b32 s36, s36, 31")
        a.e("s_add_u32 s38, s37, s39")
        a.e("s_and_b32 s38, s38, 31")
        a.e("s_lshl_b32 s32, s38, 16")
        a.e("s_lshl_b32 s33, s38, 7")
    nextk()
    a.e("s_waitcnt lgkmcnt(0)")
    srd(a, 24, 4, 5, 2048*512*2)
    a.e("s_cmp_eq_u32 s14, 0")
    a.e("s_cselect_b32 s28, s6, s8")
    a.e("s_cselect_b32 s29, s7, s9")
    a.e(f"s_mov_b32 s30, {2048*2048*2}")
    a.e("s_mov_b32 s31, 0x00020000")
    def issue():
        a.e("s_add_u32 m0, s20, s35")
        if cfg.nt_lead_upto >= 0:
            La = a.newlabel("L_nt"); Lb = a.newlabel("L_ntd")
            a.e("s_bitcmp1_b32 s37, 5")
            a.e(f"s_cbranch_scc1 {La}")
            for j in range(4):
                a.e(f"buffer_load_dwordx4 v{14+j}, s[28:31], s33 offen offset:{j*1024} lds")
            a.e(f"s_branch {Lb}")
            a.label(La)
            for j in range(4):
                a.e(f"buffer_load_dwordx4 v{14+j}, s[28:31], s33 offen offset:{j*1024} nt lds")
            a.label(Lb)
        else:
            a.e("s_nop 0")
            for j in range(4):
                a.e(f"buffer_load_dwordx4 v{14+j}, s[28:31], s33 offen offset:{j*1024} lds")
        a.e("s_add_u32 m0, s20, s34")
        a.e("s_nop 0")
        for j in range(4):
            a.e(f"buffer_load_dwordx4 v{10+j}, s[24:27], s32 offen offset:{j*1024} lds")
    def advance():
        nextk()
        a.e(f"s_add_u32 s20, s20, {STG}")
        a.e(f"s_cmp_ge_u32 s20, {STG*S}")
        a.e("s_cselect_b32 s20, 0, s20")
    P = S - 1
    for i in range(P):
        issue(); advance()
    common_srds(a)
    pc_loader_setup(a)
    a.e(f"s_mov_b32 s21, {NST-P}")
    a.label("L_big_ld")
    a.e(f"s_waitcnt vmcnt({8*(P-1)})")
    a.e("s_barrier")
    issue(); advance()
    ph_stamp_seq(a, cfg)
    a.e("s_sub_u32 s21, s21, 1")
    a.e("s_cmp_lg_u32 s21, 0")
    a.e("s_cbranch_scc1 L_big_ld")
    a.e("s_waitcnt vmcnt(24)")
    a.e("s_barrier")
    for pos in (4,5,6,7): wd_issue(a, pos)
    nonce_issue(a)
    ph_stamp_seq(a, cfg)
    a.e("s_waitcnt vmcnt(25)")
    a.e("s_barrier")
    ph_stamp_seq(a, cfg)
    a.e("s_waitcnt vmcnt(17)")
    a.e("s_barrier")
    ph_stamp_seq(a, cfg)
    a.e("s_waitcnt vmcnt(9)")
    a.e("s_barrier")
    ph_stamp_seq(a, cfg)
    for pos in (8,9,10,11,0,1,2,3): wd_issue(a, pos)
    nonce_get(a)
    ph_stamp(a, cfg, 44)
    a.e("s_barrier")
    a.e("s_branch L_y_loader")
    a.label("L_big_cons")
    pc_cons_setup(a)
    ACC = 64
    BA, BB = 10, 12
    CA, CB = 16, 18
    a.e("s_and_b32 s18, s3, 1")
    a.e("s_lshr_b32 s19, s3, 1")
    a.e("v_bfe_u32 v2, v1, 2, 2")
    a.e("v_and_b32 v3, 3, v1")
    a.e("v_bfe_u32 v4, v1, 4, 1")
    a.e("v_lshrrev_b32 v5, 5, v1")
    a.e("v_lshlrev_b32 v6, 8, v2")
    a.e("v_lshl_add_u32 v6, v5, 11, v6")
    a.e("v_lshl_add_u32 v6, v4, 5, v6")
    a.e("v_lshl_add_u32 v6, v3, 3, v6")
    a.e("s_lshl_b32 s22, s18, 1")
    for j in range(2):
        a.e(f"s_add_u32 s23, s22, {j}")
        a.e("v_xor_b32 v7, s23, v2")
        a.e(f"v_lshl_add_u32 v{BA+j}, v7, 6, v6")
    a.e("v_and_b32 v2, 31, v1")
    a.e("s_lshl_b32 s22, s19, 6")
    a.e("v_add_u32 v2, s22, v2")
    a.e("v_bfe_u32 v3, v2, 1, 3")
    a.e("v_xor_b32 v3, v3, v5")
    a.e("v_lshlrev_b32 v4, 7, v2")
    a.e("v_add_u32 v4, 16384, v4")
    for ks in range(4):
        a.e(f"v_xor_b32 v6, {ks*2}, v3")
        a.e(f"v_lshl_add_u32 v{BB+ks}, v6, 4, v4")
    a.e("v_and_b32 v2, 31, v1")
    a.e("v_and_b32 v3, 7, v2")
    a.e("v_xor_b32 v3, v3, v5")
    a.e("v_lshlrev_b32 v4, 7, v2")
    a.e("s_lshl_b32 s22, s3, 13")
    a.e(f"s_add_u32 s22, s22, {16*U}")
    a.e("v_add_u32 v4, s22, v4")
    for q in range(4):
        a.e(f"v_xor_b32 v6, {q*2}, v3")
        a.e(f"v_lshl_add_u32 v{24+q}, v6, 4, v4")
    a.e("v_lshrrev_b32 v2, 3, v1")
    a.e("v_and_b32 v3, 7, v1")
    a.e("v_xor_b32 v4, v3, v2")
    a.e("v_lshlrev_b32 v6, 7, v2")
    a.e("v_lshl_add_u32 v6, v4, 4, v6")
    a.e("v_add_u32 v28, s22, v6")
    a.e("s_lshl_b32 s22, s15, 7")
    a.e("s_lshl_b32 s23, s19, 6")
    a.e("s_add_u32 s22, s22, s23")
    a.e("v_add_u32 v2, s22, v2")
    a.e(f"s_movk_i32 s22, {CDP}")
    a.e("v_mul_lo_u32 v2, v2, s22")
    a.e("v_lshl_add_u32 v2, v3, 4, v2")
    a.e("s_lshl_b32 s22, s14, 10")
    a.e("s_lshl_b32 s23, s16, 8")
    a.e("s_add_u32 s22, s22, s23")
    a.e("s_lshl_b32 s23, s18, 7")
    a.e("s_add_u32 s22, s22, s23")
    a.e("v_add_u32 v29, s22, v2")
    for i in range(64):
        a.e(f"v_mov_b32 v{ACC+i}, 0")
    a.e("s_mov_b32 s20, 0")
    def setaddr_l():
        l = [f"v_add_u32 v{CA+j}, s20, v{BA+j}" for j in range(2)] + [f"v_add_u32 v{CB+k}, s20, v{BB+k}" for k in range(4)]
        l += [f"s_add_u32 s20, s20, {STG}", f"s_cmp_ge_u32 s20, {STG*S}", "s_cselect_b32 s20, 0, s20"]
        return l
    def reads(F, ks):
        r = []
        r.append(f"ds_read_b128 v[{F+8}:{F+11}], v{CB+ks}")
        for u in range(2):
            r.append(f"ds_read_b64_tr_b16 v[{F+2*u}:{F+2*u+1}], v{CA} offset:{(ks*16+u*4)*256}")
        r.append(f"ds_read_b128 v[{F+12}:{F+15}], v{CB+ks} offset:4096")
        for u in range(2):
            r.append(f"ds_read_b64_tr_b16 v[{F+4+2*u}:{F+4+2*u+1}], v{CA+1} offset:{(ks*16+u*4)*256}")
        return r
    def mfmas(F):
        m = []
        for (jm, jn) in ((0,0),(0,1),(1,0),(1,1)):
            d = ACC + (jm*2+jn)*16
            if cfg.fake16:
                fk[0] = (fk[0] + 1) % 2
                d2 = d + 8*fk[0]
                m.append(f"v_mfma_f32_16x16x32_bf16 v[{d2}:{d2+3}], v[{F+4*jm}:{F+4*jm+3}], v[{F+8+4*jn}:{F+8+4*jn+3}], v[{d2}:{d2+3}]\n  v_mfma_f32_16x16x32_bf16 v[{d2+4}:{d2+7}], v[{F+4*jm}:{F+4*jm+3}], v[{F+8+4*(1-jn)}:{F+8+4*(1-jn)+3}], v[{d2+4}:{d2+7}]")
            else:
                m.append(f"v_mfma_f32_32x32x16_bf16 v[{d}:{d+15}], v[{F+4*jm}:{F+4*jm+3}], v[{F+8+4*jn}:{F+8+4*jn+3}], v[{d}:{d+15}]")
        return m
    fk = [0]
    FS = [128, 144, 160, 176]
    def mix(m, r, pre=()):
        return [m[0]] + list(pre) + r[0:3] + [m[1]] + r[3:6] + [m[2], m[3]]
    a.e("s_waitcnt lgkmcnt(0)")
    common_srds(a)
    a.e("s_or_b32 s22, s2, s3")
    a.e("s_cmp_lg_u32 s22, 0")
    a.e("s_cbranch_scc1 L_no_pub")
    a.e("s_memrealtime s[22:23]")
    a.e("s_waitcnt lgkmcnt(0)")
    a.e("s_or_b32 s22, s22, 1")
    a.e("v_mov_b32 v230, s22")
    a.e("v_mov_b32 v231, s23")
    a.e("v_mov_b32 v234, 0")
    a.e("s_mov_b64 exec, 1")
    a.e("buffer_store_dwordx2 v[230:231], v234, s[68:71], 0 offen sc1")
    a.e("s_mov_b64 exec, -1")
    a.label("L_no_pub")
    ph_stamp(a, cfg, 0)
    a.e("s_barrier")
    ph_stamp(a, cfg, 1)
    for x in setaddr_l(): a.e(x)
    for x in reads(FS[0], 0): a.e(x)
    for x in reads(FS[1], 1): a.e(x)
    a.e(f"s_mov_b32 s21, {NST-1}")
    a.label("L_big_loop")
    a.e("s_waitcnt lgkmcnt(6)")
    for x in mix(mfmas(FS[0]), reads(FS[2], 2)): a.e(x)
    a.e("s_waitcnt lgkmcnt(6)")
    for x in mix(mfmas(FS[1]), reads(FS[3], 3)): a.e(x)
    a.e("s_waitcnt lgkmcnt(0)")
    for x in mix(mfmas(FS[2]), reads(FS[0], 0), pre=["s_barrier"] + setaddr_l()): a.e(x)
    for x in mix(mfmas(FS[3]), reads(FS[1], 1)): a.e(x)
    a.e("s_sub_u32 s21, s21, 1")
    a.e("s_cmp_lg_u32 s21, 0")
    a.e("s_cbranch_scc1 L_big_loop")
    nonce_issue(a)
    a.e("s_waitcnt lgkmcnt(6)")
    for x in mix(mfmas(FS[0]), reads(FS[2], 2)): a.e(x)
    a.e("s_waitcnt lgkmcnt(6)")
    for x in mix(mfmas(FS[1]), reads(FS[3], 3)): a.e(x)
    a.e("s_waitcnt lgkmcnt(6)")
    for x in mfmas(FS[2]): a.e(x)
    a.e("s_waitcnt lgkmcnt(0)")
    for x in mfmas(FS[3]): a.e(x)
    ph_stamp(a, cfg, 2)
    a.e("s_cmp_eq_u32 s14, 0")
    a.e("s_cselect_b32 s22, 0, 0x80008000")
    a.e("s_nop 7")
    t = 0
    for jn in range(2):
        for jm in range(2):
            tmp = 32 + 8*t; t += 1
            if (jm, jn) == (1, 0): a.e("s_nop 0")
            pack_tile32(a, ACC+(jm*2+jn)*16, tmp, xorreg=22)
            a.e("s_nop 0")
            for g in range(2):
                a.e(f"ds_write_b128 v{24+jm*2+g}, v[{tmp+4*g}:{tmp+4*g+3}] offset:{jn*4096}")
        for q in range(4*jn, 4*jn+4):
            a.e(f"ds_read_b128 v[{128+4*q}:{131+4*q}], v28 offset:{q*1024}")
    ph_stamp(a, cfg, 3)
    a.e("s_mov_b32 s22, 0")
    for q in range(8):
        a.e(f"s_waitcnt lgkmcnt({7-q if q >= 4 else 0 + 8 + 3 - q})") if False else None
    for q in range(8):
        rem = (3 - q) + 8 if q < 4 else 7 - q
        a.e(f"s_waitcnt lgkmcnt({rem})")
        a.e(f"buffer_store_dwordx4 v[{128+4*q}:{131+4*q}], v29, s[64:67], s22 offen{cfg.st_mode}")
        if q < 7: a.e(f"s_add_u32 s22, s22, {8*CDP}")
    ph_stamp(a, cfg, 4)
    a.e("s_lshl_b32 s60, s14, 2")
    a.e("s_add_u32 s60, s60, s16")
    a.e("s_lshl_b32 s60, s60, 2")
    a.e("s_add_u32 s60, s60, s3")
    a.e("s_lshl_b32 s60, s60, 3")
    a.e(f"s_mul_i32 s22, s15, {FSTR}")
    a.e("s_add_u32 s60, s60, s22")
    a.e(f"s_add_u32 s60, s60, {WS_FC}")
    nonce_get(a)
    ph_rt(a, cfg, 36)
    flag_store(a, 60)
    ph_stamp(a, cfg, 5)
    a.e("s_barrier")
    a.e("s_branch L_y_cons")

def common_srds(a):
    srd(a, 64, 10, 11, WS_BYTES)
    srd(a, 68, 62, 63, 256)

def k_attn(a, cfg):
    S = cfg.SB; NST = 8
    AREG = 24576
    STG = AREG + 18*1024
    PITCH = 400
    a.c("---- part B role: xcd=s2&7, i=(s2>>3)-16")
    a.e("s_load_dwordx4 s[40:43], s[0:1], 40")
    a.e("s_and_b32 s12, s2, 7")
    a.e("s_lshr_b32 s13, s2, 3")
    a.e("s_sub_u32 s13, s13, 16")
    a.e("s_lshr_b32 s14, s13, 3")
    a.e("s_lshl_b32 s12, s12, 1")
    a.e("s_add_u32 s15, s12, s14")
    a.e("s_and_b32 s16, s13, 7")
    a.e("s_lshl_b32 s17, s14, 2")
    a.e("s_add_u32 s17, s17, s16")
    a.e("s_and_b32 s17, s17, 7")
    a.e("s_cmp_ge_u32 s3, 4")
    a.e("s_cbranch_scc0 L_att_cons")
    a.e("s_cmp_eq_u32 s3, 7")
    a.e("s_cbranch_scc1 L_att_pf")
    a.e("s_sub_u32 s18, s3, 4")
    a.e("v_lshrrev_b32 v2, 3, v1")
    a.e("v_and_b32 v3, 7, v1")
    a.e("v_bfe_u32 v4, v1, 4, 1")
    a.e("v_lshlrev_b32 v4, 1, v4")
    a.e("v_xor_b32 v3, v3, v4")
    a.e("v_xor_b32 v5, 4, v3")
    a.e("s_mov_b32 s22, 3072")
    a.e("v_mul_lo_u32 v2, v2, s22")
    a.e("s_lshl_b32 s19, s16, 7")
    a.e("s_lshl_b32 s22, s18, 10")
    a.e("s_add_u32 s19, s19, s22")
    a.e("v_add_u32 v2, s19, v2")
    a.e("v_lshl_add_u32 v6, v3, 4, v2")
    a.e("v_lshl_add_u32 v7, v5, 4, v2")
    for p in range(8):
        a.e(f"v_add_u32 v{10+p}, {p*8*3072 - (p%4)*1024}, v{6 if p%2==0 else 7}")
    a.e("v_lshrrev_b32 v2, 3, v1")
    a.e("v_and_b32 v3, 7, v1")
    a.e("v_lshrrev_b32 v4, 4, v1")
    a.e("v_xor_b32 v3, v3, v4")
    a.e("v_xor_b32 v5, 4, v3")
    a.e("s_lshl_b32 s19, s15, 7")
    a.e("s_sub_u32 s19, s19, 16")
    a.e("s_mul_i32 s22, s18, 48")
    a.e("s_add_u32 s19, s19, s22")
    a.e("v_add_u32 v2, s19, v2")
    a.e("v_lshlrev_b32 v2, 10, v2")
    a.e("v_lshl_add_u32 v6, v3, 4, v2")
    a.e("v_lshl_add_u32 v7, v5, 4, v2")
    for j in range(6):
        a.e(f"v_add_u32 v{20+j}, {j*8*1024}, v{6 if j%2==0 else 7}")
    a.e("s_mul_i32 s32, s17, 196608")
    a.e("s_lshl_b32 s33, s17, 7")
    a.e("s_lshl_b32 s34, s18, 13")
    a.e("s_mul_i32 s35, s18, 6144")
    a.e(f"s_add_u32 s35, s35, {AREG}")
    a.e("s_mov_b32 s20, 0")
    a.e("s_waitcnt lgkmcnt(0)")
    srd(a, 24, 42, 43, 512*1536*2)
    srd(a, 28, 40, 41, 2048*512*2)
    def issue(nt=""):
        a.e("s_add_u32 s37, s20, s35")
        for j in range(6):
            a.e(f"s_add_u32 m0, s37, {j*1024}")
            a.e("s_nop 0")
            a.e(f"buffer_load_dwordx4 v{20+j}, s[28:31], s33 offen{nt} lds")
        a.e("s_add_u32 s37, s20, s34")
        for hh in range(2):
            a.e(f"s_add_u32 m0, s37, {hh*4096}")
            a.e("s_nop 0")
            for p in range(4):
                a.e(f"buffer_load_dwordx4 v{10+hh*4+p}, s[24:27], s32 offen offset:{p*1024} lds")
    def advance():
        a.e("s_add_u32 s32, s32, 196608")
        a.e(f"s_cmp_ge_u32 s32, {512*3072}")
        a.e("s_cselect_b32 s32, 0, s32")
        a.e("s_add_u32 s33, s33, 128")
        a.e("s_and_b32 s33, s33, 0x3ff")
        a.e(f"s_add_u32 s20, s20, {STG}")
        a.e(f"s_cmp_ge_u32 s20, {STG*S}")
        a.e("s_cselect_b32 s20, 0, s20")
    P = S - 1
    for i in range(P):
        issue(" nt" if (i == 0 and cfg.nt_xb0) else ""); advance()
    a.e(f"s_mov_b32 s21, {NST-P}")
    a.label("L_att_ld")
    a.e(f"s_waitcnt vmcnt({14*(P-1)})")
    a.e("s_barrier")
    issue(); advance()
    a.e("s_sub_u32 s21, s21, 1")
    a.e("s_cmp_lg_u32 s21, 0")
    a.e("s_cbranch_scc1 L_att_ld")
    for i in range(NST-P, NST):
        a.e(f"s_waitcnt vmcnt({14*(NST-1-i)})")
        a.e("s_barrier")
    a.label("L_att_e1")
    a.e("s_barrier")
    pc_loader_setup(a)
    op_loader_setup(a)
    a.e("s_barrier")
    if cfg.wo_at == 'e2':
        for i in range(8): wo_issue(a, i)
    a.e("s_branch L_att_attn")
    a.label("L_att_pf")
    a.e("s_bfe_u32 s18, s13, 0x10002")
    a.e("s_add_u32 s18, s18, s12")
    a.e("s_lshl_b32 s18, s18, 7")
    a.e("s_and_b32 s19, s13, 3")
    a.e("s_lshl_b32 s19, s19, 5")
    a.e("s_add_u32 s18, s18, s19")
    a.e("v_lshrrev_b32 v2, 2, v1")
    a.e("v_add_u32 v2, s18, v2")
    a.e("v_lshlrev_b32 v2, 12, v2")
    a.e("v_and_b32 v3, 3, v1")
    a.e("v_lshl_add_u32 v236, v3, 7, v2")
    a.e("v_add_u32 v237, 0x10000, v236")
    a.e("s_lshl_b32 s18, s13, 4")
    a.e("v_lshrrev_b32 v2, 3, v1")
    a.e("v_add_u32 v2, s18, v2")
    a.e("v_lshlrev_b32 v2, 10, v2")
    a.e("v_and_b32 v3, 7, v1")
    a.e("v_lshl_add_u32 v238, v3, 7, v2")
    a.e("v_add_u32 v239, 0x2000, v238")
    a.e("s_waitcnt lgkmcnt(0)")
    srd(a, 24, 4, 5, 2048*512*2)
    a.e("s_cmp_eq_u32 s14, 0")
    a.e("s_cselect_b32 s28, s6, s8")
    a.e("s_cselect_b32 s29, s7, s9")
    a.e(f"s_mov_b32 s30, {2048*2048*2}")
    a.e("s_mov_b32 s31, 0x00020000")
    a.e("s_lshr_b32 s34, s12, 1")
    a.e(f"s_mul_i32 s34, s34, {cfg.xrot}")
    TD = 244
    tcount = [0]
    def touch(kind, b):
        for h in (0, 1):
            d = TD + (tcount[0] % 8); tcount[0] += 1
            a.e(f"s_add_u32 s33, s34, {b}")
            a.e("s_and_b32 s33, s33, 7")
            if kind == "w":
                a.e("s_lshl_b32 s32, s33, 9")
                a.e(f"buffer_load_dword v{d}, v{236+h}, s[28:31], s32 offen" + (" nt" if b <= cfg.pf_nt_upto else ""))
            else:
                a.e("s_lshl_b32 s32, s33, 18")
                a.e(f"buffer_load_dword v{d}, v{238+h}, s[24:27], s32 offen")
    for (k, b) in cfg.pf_early.get(-1, []): touch(k, b)
    for i in range(NST):
        a.e("s_barrier")
        for (k, b) in cfg.pf_early.get(i, []): touch(k, b)
    for (k, b) in cfg.pf_late: touch(k, b)
    if cfg.pf_weights:
        a.e("s_lshl_b32 s22, s13, 15")
        a.e("v_lshl_add_u32 v2, v1, 7, s22")
        for m_ in range(3):
            srd(a, 32, 44+2*m_, 45+2*m_, 512*512*2)
            for q in range(4):
                d = TD + (tcount[0] % 8); tcount[0] += 1
                a.e(f"s_movk_i32 s36, {q*8192}")
                a.e(f"buffer_load_dword v{d}, v2, s[32:35], s36 offen")
    a.e("s_branch L_att_e1")
    a.label("L_att_cons")
    ACC = 128 - 8
    F0, F1 = 24, 72
    BA, BB = 10, 12
    CA, CB = 16, 18
    a.e("v_bfe_u32 v2, v1, 2, 2")
    a.e("v_and_b32 v3, 3, v1")
    a.e("v_lshrrev_b32 v4, 4, v1")
    a.e("v_lshrrev_b32 v5, 1, v2")
    a.e("v_and_b32 v6, 1, v4")
    a.e("v_lshl_or_b32 v5, v6, 1, v5")
    a.e("v_xor_b32 v5, s3, v5")
    a.e("v_lshlrev_b32 v6, 7, v2")
    a.e("v_lshl_add_u32 v6, v4, 10, v6")
    a.e("v_lshl_add_u32 v6, v5, 5, v6")
    a.e(f"v_lshl_add_u32 v{BA}, v3, 3, v6")
    a.e("v_and_b32 v2, 15, v1")
    a.e("v_lshrrev_b32 v3, 1, v2")
    a.e("v_xor_b32 v3, v3, v4")
    a.e("v_lshlrev_b32 v5, 7, v2")
    a.e(f"v_add_u32 v5, {AREG}, v5")
    for ks in range(2):
        a.e(f"v_xor_b32 v6, {ks*4}, v3")
        a.e(f"v_lshl_add_u32 v{BB+ks}, v6, 4, v5")
    a.e(f"s_mov_b32 s22, {PITCH}")
    a.e("v_mul_lo_u32 v8, v2, s22")
    a.e("v_lshl_add_u32 v8, v4, 3, v8")
    a.e("s_lshl_b32 s22, s3, 5")
    a.e("v_add_u32 v8, s22, v8")
    for i in range(4, 108):
        a.e(f"v_mov_b32 v{ACC+i}, 0")
    a.e("s_mov_b32 s20, 0")
    def setaddr():
        a.e(f"v_add_u32 v{CA}, s20, v{BA}")
        for k in range(2): a.e(f"v_add_u32 v{CB+k}, s20, v{BB+k}")
        a.e(f"s_add_u32 s20, s20, {STG}")
        a.e(f"s_cmp_ge_u32 s20, {STG*S}")
        a.e("s_cselect_b32 s20, 0, s20")
    def reads(F, ks):
        r = []
        for seg in range(3):
            for u in range(2):
                r.append(f"ds_read_b64_tr_b16 v[{F+4*seg+2*u}:{F+4*seg+2*u+1}], v{CA} offset:{seg*8192 + (ks*32+u*4)*128}")
        for nt in range(9):
            r.append(f"ds_read_b128 v[{F+12+4*nt}:{F+12+4*nt+3}], v{CB+ks} offset:{nt*2048}")
        return r
    TL = [(nt, seg) for nt in range(9) for seg in range(3) if not (seg == 0 and nt == 0)]
    def mfmas(F):
        m = []
        for (nt, seg) in TL:
            d = ACC + (seg*9+nt)*4
            m.append(f"v_mfma_f32_16x16x32_bf16 v[{d}:{d+3}], v[{F+4*seg}:{F+4*seg+3}], v[{F+12+4*nt}:{F+12+4*nt+3}], v[{d}:{d+3}]")
        return m
    def interleave(m, r):
        out = []
        for i, x in enumerate(m):
            out.append(x)
            if i < len(r): out.append(r[i])
        return out
    a.e("s_waitcnt lgkmcnt(0)")
    ph_stamp(a, cfg, 0)
    a.e("s_barrier")
    ph_stamp(a, cfg, 1)
    setaddr()
    for x in reads(F0, 0): a.e(x)
    a.e(f"s_mov_b32 s21, {NST}")
    a.label("L_att_loop")
    a.e("s_waitcnt lgkmcnt(0)")
    for x in interleave(mfmas(F0), reads(F1, 1)): a.e(x)
    a.e("s_waitcnt lgkmcnt(0)")
    a.e("s_sub_u32 s21, s21, 1")
    a.e("s_cmp_eq_u32 s21, 0")
    a.e("s_cbranch_scc1 L_att_last")
    a.e("s_barrier")
    setaddr()
    for x in interleave(mfmas(F1), reads(F0, 0)): a.e(x)
    a.e("s_branch L_att_loop")
    a.label("L_att_last")
    a.e("s_barrier")
    ph_stamp(a, cfg, 2)
    m = mfmas(F1)
    def wr(idx):
        nt, seg = TL[idx]
        d = ACC + (seg*9+nt)*4
        tmp = F0 + 2*(idx % 16)
        return [f"v_cvt_pk_bf16_f32 v{tmp}, v{d}, v{d+1}", f"v_cvt_pk_bf16_f32 v{tmp+1}, v{d+2}, v{d+3}",
                f"ds_write_b64 v8, v[{tmp}:{tmp+1}] offset:{nt*16*PITCH + seg*128}"]
    LAG = 9
    for i, x in enumerate(m):
        a.e(x)
        if i >= LAG:
            for y in wr(i-LAG): a.e(y)
    a.e("s_nop 7")
    for i in range(len(m)-LAG, len(m)):
        for y in wr(i): a.e(y)
    a.e("s_waitcnt lgkmcnt(0)")
    a.e("s_barrier")
    a.label("L_att_attn")
    common_srds(a)
    if cfg.wo_at == 'all8':
        srd(a, 36, 48, 49, 512*512*2)
        a.e("v_lshrrev_b32 v2, 3, v1")
        a.e("v_and_b32 v3, 7, v1")
        a.e("v_bfe_u32 v4, v1, 4, 1")
        a.e("v_lshlrev_b32 v4, 2, v4")
        a.e("v_xor_b32 v3, v3, v4")
        a.e("v_lshlrev_b32 v2, 10, v2")
        a.e("v_lshl_add_u32 v2, v3, 4, v2")
        a.e("s_lshl_b32 s19, s16, 7")
        a.e("v_add_u32 v2, s19, v2")
        a.e("s_add_u32 s53, s17, s3")
        a.e("s_and_b32 s53, s53, 7")
        a.e("s_lshl_b32 s53, s53, 16")
        a.e("s_lshl_b32 s22, s3, 13")
        a.e(f"s_add_u32 s22, s22, {8*U}")
        for p in range(8):
            a.e(f"s_add_u32 m0, s22, {p*1024}")
            a.e(f"s_add_u32 s23, s53, {p*8192}")
            a.e("buffer_load_dwordx4 v2, s[36:39], s23 offen lds")
    nonce_issue(a)
    a.e("s_and_b32 s18, s3, 3")
    a.e("s_lshr_b32 s19, s3, 2")
    a.e("s_lshl_b32 s19, s19, 6")
    a.e("v_add_u32 v2, s19, v1")
    a.e(f"s_mov_b32 s22, {PITCH}")
    a.e("v_mul_lo_u32 v3, v2, s22")
    a.e("s_lshl_b32 s22, s18, 5")
    a.e(f"s_add_u32 s22, s22, {2*PITCH}")
    a.e("v_add_u32 v3, s22, v3")
    Q = 8; KK = 16; VV = 80; LG = 144; O = 160; T = 180
    a.e(f"ds_read_b128 v[{Q}:{Q+3}], v3 offset:{14*PITCH}")
    a.e(f"ds_read_b128 v[{Q+4}:{Q+7}], v3 offset:{14*PITCH+16}")
    for w in range(8):
        a.e(f"ds_read_b128 v[{KK+8*w}:{KK+8*w+3}], v3 offset:{(14-2*w)*PITCH+128}")
        a.e(f"ds_read_b128 v[{KK+8*w+4}:{KK+8*w+7}], v3 offset:{(14-2*w)*PITCH+144}")
    a.e("s_lshl_b32 s22, s15, 7")
    a.e("v_add_u32 v4, s22, v2")
    for w in range(8):
        a.e(f"s_waitcnt lgkmcnt({min(15, 14-2*w)})")
        a.e(f"v_mov_b32 v{LG+w}, 0")
        for i in range(8):
            a.e(f"v_dot2_f32_bf16 v{LG+w}, v{Q+i}, v{KK+8*w+i}, v{LG+w}")
    for w in range(8):
        a.e(f"ds_read_b128 v[{VV+8*w}:{VV+8*w+3}], v3 offset:{(14-2*w)*PITCH+256}")
        a.e(f"ds_read_b128 v[{VV+8*w+4}:{VV+8*w+7}], v3 offset:{(14-2*w)*PITCH+272}")
    a.e("s_nop 3")
    for w in range(0, 8, 2):
        a.e(f"v_cvt_pk_bf16_f32 v{T+w//2}, v{LG+w}, v{LG+w+1}")
    for w in range(0, 8, 2):
        a.e(f"v_lshlrev_b32 v{LG+w}, 16, v{T+w//2}")
        a.e(f"v_and_b32 v{LG+w+1}, 0xffff0000, v{T+w//2}")
    for w in range(8):
        a.e(f"v_mul_f32 v{LG+w}, 0x3e800000, v{LG+w}")
    a.e("v_mov_b32 v5, 0xce6e6b28")
    for w in range(1, 8):
        a.e(f"v_cmp_gt_u32 vcc, {2*w}, v4")
        a.e("s_nop 1")
        a.e(f"v_cndmask_b32 v{LG+w}, v{LG+w}, v5, vcc")
    a.e(f"v_max3_f32 v6, v{LG}, v{LG+1}, v{LG+2}")
    a.e(f"v_max3_f32 v6, v6, v{LG+3}, v{LG+4}")
    a.e(f"v_max3_f32 v6, v6, v{LG+5}, v{LG+6}")
    a.e(f"v_max_f32 v6, v6, v{LG+7}")
    a.e("s_mov_b32 s22, 0x3fb8aa3b")
    for w in range(8):
        a.e(f"v_sub_f32 v{LG+w}, v{LG+w}, v6")
    for w in range(8):
        a.e(f"v_mul_f32 v{LG+w}, s22, v{LG+w}")
    for w in range(8):
        a.e(f"v_exp_f32 v{LG+w}, v{LG+w}")
    a.e("s_nop 0")
    a.e(f"v_add_f32 v6, v{LG}, v{LG+1}")
    for w in range(2, 8):
        a.e(f"v_add_f32 v6, v6, v{LG+w}")
    a.e("v_rcp_f32 v6, v6")
    a.e("s_nop 0")
    for w in range(8):
        a.e(f"v_mul_f32 v{LG+w}, v{LG+w}, v6")
    for w in range(0, 8, 2):
        a.e(f"v_cvt_pk_bf16_f32 v{T+w//2}, v{LG+w}, v{LG+w+1}")
    for w in range(0, 8, 2):
        a.e(f"v_lshlrev_b32 v{LG+w}, 16, v{T+w//2}")
        a.e(f"v_and_b32 v{LG+w+1}, 0xffff0000, v{T+w//2}")
    for w in range(8):
        a.e(f"s_waitcnt lgkmcnt({14-2*w})")
        for i in range(8):
            src = VV+8*w+i
            a.e(f"v_lshlrev_b32 v{T+8}, 16, v{src}")
            a.e(f"v_and_b32 v{T+9}, 0xffff0000, v{src}")
            if w == 0:
                a.e(f"v_mul_f32 v{O+2*i}, v{LG}, v{T+8}")
                a.e(f"v_mul_f32 v{O+2*i+1}, v{LG}, v{T+9}")
            else:
                a.e(f"v_fmac_f32 v{O+2*i}, v{LG+w}, v{T+8}")
                a.e(f"v_fmac_f32 v{O+2*i+1}, v{LG+w}, v{T+9}")
    for i in range(8):
        a.e(f"v_cvt_pk_bf16_f32 v{T+i}, v{O+2*i}, v{O+2*i+1}")
    ph_stamp(a, cfg, 3)
    if cfg.wo_at == 'post':
        a.e("s_cmp_ge_u32 s3, 4")
        a.e("s_cbranch_scc0 L_att_nowo")
        srd(a, 36, 48, 49, 512*512*2)
        for i in range(8): wo_issue(a, i)
        a.label("L_att_nowo")
    a.e("s_movk_i32 s22, 144")
    a.e("v_mul_lo_u32 v3, v2, s22")
    a.e("s_lshl_b32 s22, s18, 5")
    a.e(f"s_add_u32 s22, s22, {16*U}")
    a.e("v_add_u32 v3, s22, v3")
    a.e(f"ds_write_b128 v3, v[{T}:{T+3}]")
    a.e(f"ds_write_b128 v3, v[{T+4}:{T+7}] offset:16")
    a.e("v_lshrrev_b32 v2, 3, v1")
    a.e("s_lshl_b32 s22, s3, 4")
    a.e("v_add_u32 v2, s22, v2")
    a.e("v_and_b32 v3, 7, v1")
    a.e("s_movk_i32 s22, 144")
    a.e("v_mul_lo_u32 v4, v2, s22")
    a.e("v_lshl_add_u32 v4, v3, 4, v4")
    a.e(f"v_add_u32 v4, {16*U}, v4")
    a.e("s_lshl_b32 s22, s15, 7")
    a.e("v_add_u32 v2, s22, v2")
    a.e(f"s_movk_i32 s22, {OP}")
    a.e("v_mul_lo_u32 v2, v2, s22")
    a.e("v_lshl_add_u32 v2, v3, 4, v2")
    a.e("s_lshl_b32 s22, s16, 7")
    a.e(f"s_add_u32 s22, s22, {WS_O}")
    a.e(f"s_add_u32 s23, s22, {8*OP}")
    a.e("s_waitcnt lgkmcnt(0)")
    a.e("s_barrier")
    a.e("ds_read_b128 v[8:11], v4")
    a.e(f"ds_read_b128 v[12:15], v4 offset:{8*144}")
    a.e("s_waitcnt lgkmcnt(1)")
    a.e(f"buffer_store_dwordx4 v[8:11], v2, s[64:67], s22 offen{cfg.st_mode}")
    a.e("s_waitcnt lgkmcnt(0)")
    a.e(f"buffer_store_dwordx4 v[12:15], v2, s[64:67], s23 offen{cfg.st_mode}")
    a.e("s_lshl_b32 s60, s16, 3")
    a.e(f"s_mul_i32 s22, s15, {FSTR}")
    a.e("s_add_u32 s60, s60, s22")
    a.e(f"s_add_u32 s60, s60, {WS_FO}")
    a.e("s_mov_b32 s61, 0")
    nonce_get(a)
    ph_stamp(a, cfg, 4)
    a.e("s_barrier")
    a.e("s_cmp_ge_u32 s3, 4")
    a.e("s_cbranch_scc0 L_op_cons")
    a.e("s_lshl_b32 s54, s52, 1")
    a.e("s_cmp_lg_u32 s3, 4")
    a.e("s_cbranch_scc1 L_op_nofl")
    ph_rt(a, cfg, 34)
    flag_store(a, 60)
    a.label("L_op_nofl")
    if cfg.wo_at == 'late':
        srd(a, 36, 48, 49, 512*512*2)
        for i in range(8): wo_issue(a, i)
    a.e("s_cmp_lg_u32 s3, 4")
    a.e("s_cbranch_scc1 L_op_nopoll")
    flag_poll(a, PA+9, cfg)
    ph_rt(a, cfg, 35)
    a.label("L_op_nopoll")
    a.e("s_waitcnt vmcnt(0)")
    a.e("s_barrier")
    ph_stamp(a, cfg, 45)
    ops = []
    def o_issue(i):
        a.e(f"s_add_u32 s53, s17, {i}")
        a.e("s_and_b32 s53, s53, 7")
        a.e("s_lshl_b32 s53, s53, 7")
        a.e(f"s_add_u32 m0, s54, {(i%4)*2*U}")
        a.e("s_nop 0")
        for j in range(4):
            a.e(f"buffer_load_dwordx4 v{190+j}, s[64:67], s53 offen offset:{j*1024} lds")
    def do(tag):
        if tag[0] == "o": o_issue(tag[1]); ops.append((tag, 4))
        else: wd_issue(a, tag[1]); ops.append((tag, 2))
    def wait_for(tag):
        last = max(i for i, (t, c) in enumerate(ops) if t == tag)
        a.e(f"s_waitcnt vmcnt({sum(c for (t, c) in ops[last+1:])})")
    for i in range(4): do(("o", i))
    sched = {1: [("o",4), ("w",4)], 2: [("o",5), ("w",5)], 3: [("o",6), ("w",6)], 4: [("o",7), ("w",7)],
             5: [("w",8), ("w",0), ("w",1)], 6: [("w",9), ("w",2), ("w",3)], 7: [("w",10)]}
    for n in range(8):
        wait_for(("o", n))
        a.e("s_barrier")
        for tag in sched.get(n, []): do(tag)
        ph_stamp(a, cfg, 46+n)
    a.e("s_barrier")
    wd_issue(a, 11)
    a.e("s_waitcnt vmcnt(0)")
    ph_stamp(a, cfg, 44)
    a.e("s_barrier")
    a.e("s_branch L_y_loader")
    a.label("L_op_cons")
    pc_cons_setup(a)
    OA = 20
    OF = [52, 100]
    a.e("s_lshl_b32 s22, s19, 12")
    for ks in range(4):
        a.e(f"v_add_u32 v{150+ks}, s22, v{PC_B0+ks}")
    a.e(f"v_add_u32 v154, 0x10000, v{PC_T0}")
    a.e("v_and_b32 v2, 31, v1")
    a.e("s_lshl_b32 s22, s15, 7")
    a.e("s_lshl_b32 s23, s19, 6")
    a.e("s_add_u32 s22, s22, s23")
    a.e("v_add_u32 v2, s22, v2")
    a.e("v_lshlrev_b32 v2, 11, v2")
    a.e("v_lshrrev_b32 v3, 5, v1")
    a.e("v_lshl_add_u32 v2, v3, 4, v2")
    a.e("s_lshl_b32 s22, s16, 7")
    a.e("s_lshl_b32 s23, s18, 6")
    a.e("s_add_u32 s22, s22, s23")
    a.e("v_add_u32 v155, s22, v2")
    a.e("v_add_u32 v156, 0x10000, v155")
    srd(a, 24, 50, 51, 2048*1024*2)
    def oreads(n):
        F = OF[n % 2]; r = []
        for ks in range(4):
            for u in range(2):
                r.append(f"ds_read_b64_tr_b16 v[{F+4*ks+2*u}:{F+4*ks+2*u+1}], v154 offset:{n*U + (ks*16+u*4)*128}")
            for jn in range(2):
                d = F + 16 + 4*(ks*2+jn)
                r.append(f"ds_read_b128 v[{d}:{d+3}], v{150+ks} offset:{(n%4)*2*U + jn*4096}")
        return r
    def omf(n):
        F = OF[n % 2]; m = []
        for ks in range(4):
            for jn in range(2):
                acc = OA + 16*jn; b = F + 16 + 4*(ks*2+jn)
                c = "0" if (n == 0 and ks == 0) else f"v[{acc}:{acc+15}]"
                m.append(f"v_mfma_f32_32x32x16_bf16 v[{acc}:{acc+15}], v[{F+4*ks}:{F+4*ks+3}], v[{b}:{b+3}], {c}")
        return m
    a.e("s_barrier")
    a.e("s_barrier")
    for x in oreads(0): a.e(x)
    ph_stamp(a, cfg, 5)
    for n in range(8):
        a.e("s_waitcnt lgkmcnt(0)")
        a.e("s_barrier")
        for x in mixd(omf(n), oreads(n+1) if n < 7 else [], 3): a.e(x)
    a.e("s_nop 7"); a.e("s_nop 7")
    for jn in range(2):
        pack_tile32(a, OA+16*jn, 52+8*jn)
        a.e("s_nop 1")
        for g in range(2):
            a.e(f"buffer_store_dwordx4 v[{52+8*jn+4*g}:{52+8*jn+4*g+3}], v{155+jn}, s[24:27], 0 offen offset:{1024 + g*32}{cfg.out_st}")
    ph_stamp(a, cfg, 6)
    a.e("s_barrier")
    a.e("s_branch L_y_cons")

PC_A0, PC_A1 = 212, 216
PC_B0, PC_B2 = 220, 224
PC_T0, PC_T2 = 236, 237
PC_ST = 238
def pc_cons_setup(a):
    a.e("s_and_b32 s18, s3, 1")
    a.e("s_lshr_b32 s19, s3, 1")
    a.e("v_and_b32 v2, 31, v1")
    a.e("v_bfe_u32 v3, v2, 1, 3")
    a.e("v_lshrrev_b32 v5, 5, v1")
    a.e("v_xor_b32 v3, v3, v5")
    a.e("v_lshlrev_b32 v4, 7, v2")
    a.e("s_lshl_b32 s22, s18, 12")
    a.e("s_lshl_b32 s23, s19, 12")
    for ks in range(4):
        a.e(f"v_xor_b32 v6, {ks*2}, v3")
        a.e("v_lshl_add_u32 v6, v6, 4, v4")
        a.e(f"v_add_u32 v{PC_A0+ks}, s22, v6")
        a.e(f"v_add_u32 v{PC_B0+ks}, s23, v6")
        a.e(f"v_add_u32 v{PC_A1+ks}, 0x10000, v{PC_A0+ks}")
        a.e(f"v_add_u32 v{PC_B2+ks}, 0x20000, v{PC_B0+ks}")
    a.e("s_lshl_b32 s22, s72, 6")
    a.e("s_lshl_b32 s23, s19, 5")
    a.e("s_add_u32 s22, s22, s23")
    a.e("v_add_u32 v6, s22, v2")
    a.e("v_lshlrev_b32 v6, 11, v6")
    a.e("v_lshl_add_u32 v6, v5, 4, v6")
    a.e("s_lshl_b32 s22, s73, 7")
    a.e("s_lshl_b32 s23, s18, 6")
    a.e("s_add_u32 s22, s22, s23")
    a.e(f"v_add_u32 v{PC_ST}, s22, v6")
    a.e("v_bfe_u32 v2, v1, 2, 2")
    a.e("v_and_b32 v3, 3, v1")
    a.e("v_bfe_u32 v4, v1, 4, 1")
    a.e("v_lshlrev_b32 v6, 7, v2")
    a.e("v_lshl_add_u32 v6, v5, 10, v6")
    a.e("v_lshl_add_u32 v6, v4, 5, v6")
    a.e("v_lshl_add_u32 v6, v3, 3, v6")
    a.e("v_lshrrev_b32 v7, 1, v2")
    a.e("v_xor_b32 v7, s18, v7")
    a.e(f"v_lshl_add_u32 v{PC_T0}, v7, 6, v6")
    a.e(f"v_add_u32 v{PC_T2}, 0x20000, v{PC_T0}")

def mixd(m, r, per):
    out = []; r = list(r)
    for x in m:
        out.append(x)
        out += r[:per]; r = r[per:]
    return out + r

def phase_c(a, cfg):
    a.label("L_y_loader")
    a.e("s_add_u32 s54, s52, 8192")
    def issue(y):
        slot = RING[y % 4]
        a.e(f"s_add_u32 s53, s88, {y}")
        a.e("s_and_b32 s53, s53, 7")
        a.e("s_lshl_b32 s53, s53, 8")
        a.e("s_add_u32 s55, s53, 128")
        a.e(f"s_add_u32 m0, s52, {slot}")
        a.e("s_nop 0")
        a.e(f"buffer_load_dwordx4 v{PA+2}, s[64:67], s53 offen lds")
        a.e(f"buffer_load_dwordx4 v{PA+3}, s[64:67], s53 offen offset:1024 lds")
        a.e(f"s_add_u32 m0, s54, {slot}")
        a.e("s_nop 0")
        a.e(f"buffer_load_dwordx4 v{PA+2}, s[64:67], s55 offen lds")
        a.e(f"buffer_load_dwordx4 v{PA+3}, s[64:67], s55 offen offset:1024 lds")
    a.e("s_barrier")
    for pos in (12, 13, 14, 15): wd_issue(a, pos)
    ph_stamp(a, cfg, 40)
    a.e("s_cmp_lg_u32 s3, 4")
    a.e("s_cbranch_scc1 L_y_nopoll")
    ph_rt(a, cfg, 38)
    flag_poll(a, PA+8, cfg)
    ph_rt(a, cfg, 37)
    a.label("L_y_nopoll")
    a.e("s_waitcnt vmcnt(0)")
    a.e("s_barrier")
    ph_stamp(a, cfg, 41)
    for y in range(4): issue(y)
    issued = 4
    for y in range(8):
        a.e(f"s_waitcnt vmcnt({4*(issued-1-y)})")
        a.e("s_barrier")
        if y >= 1 and issued < 8:
            issue(issued); issued += 1
        if y < 6: ph_stamp(a, cfg, 54+y)
    ph_stamp(a, cfg, 42)
    a.e("s_branch L_pc_end")
    a.label("L_y_cons")
    ACC1 = 20
    FS = [52, 84]
    RA = 116
    def rdB(dst, ks, addr):
        base = PC_B0 if addr < 65536 else PC_B2
        off = addr if addr < 65536 else addr - 131072
        return f"ds_read_b128 v[{dst}:{dst+3}], v{base+ks} offset:{off}"
    def rdA(pos):
        addr = WD_UNIT[pos]*U
        base = PC_A0 if addr < 65536 else PC_A1
        off = addr % 65536
        dst = RA + (pos % 6)*16
        return [f"ds_read_b128 v[{dst+4*ks}:{dst+4*ks+3}], v{base+ks} offset:{off}" for ks in range(4)]
    def reads(y):
        F = FS[y % 2]; slot = RING[y % 4]
        return [rdB(F+4*(c*4+ks), ks, slot + c*U) for c in range(2) for ks in range(4)]
    def mf(y):
        F = FS[y % 2]; m = []
        for c_ in range(2):
            ra = RA + ((2*y+c_) % 6)*16
            for ks in range(4):
                c = "0" if (y == 0 and c_ == 0 and ks == 0) else f"v[{ACC1}:{ACC1+15}]"
                b = F + 4*(c_*4+ks)
                m.append(f"v_mfma_f32_32x32x16_bf16 v[{ACC1}:{ACC1+15}], v[{ra+4*ks}:{ra+4*ks+3}], v[{b}:{b+3}], {c}")
        return m
    a.e("s_nop 1")
    for pos in range(6):
        for x in rdA(pos): a.e(x)
    srd(a, 24, 50, 51, 2048*1024*2)
    a.e("s_waitcnt lgkmcnt(0)")
    a.e("s_barrier")
    a.e("s_barrier")
    a.e("s_barrier")
    ph_stamp(a, cfg, 7)
    for x in reads(0): a.e(x)
    pendA = 0
    for y in range(8):
        a.e(f"s_waitcnt lgkmcnt({pendA})")
        m = mf(y)
        if y < 7:
            a.e("s_barrier")
            for x in mixd(m, reads(y+1), 3): a.e(x)
            if y + 3 < 8:
                for x in rdA(2*(y+3)) + rdA(2*(y+3)+1): a.e(x)
                pendA = 8
            else:
                pendA = 0
        else:
            for x in m: a.e(x)
    ph_stamp(a, cfg, 8)
    a.e("s_nop 7"); a.e("s_nop 7")
    pack_tile32(a, ACC1, 8)
    a.e("s_nop 1")
    for g in range(2):
        a.e(f"buffer_store_dwordx4 v[{8+4*g}:{8+4*g+3}], v{PC_ST}, s[24:27], 0 offen offset:{g*32}{cfg.y_st}")
    a.label("L_pc_end")

def gen(cfg):
    a = Asm()
    K = NAME + "_kernel"
    a.raw(HDR.rstrip("\n"))
    a.raw(f"; @launch grid=(256,1,1) block=(512,1,1) lds=163840")
    a.raw('.amdgcn_target "amdgcn-amd-amdhsa--gfx950"')
    a.raw(".text")
    a.raw(f".globl {K}"); a.raw(".p2align 8"); a.raw(f".type {K},@function"); a.label(K)
    a.e("s_cmp_ge_u32 s2, 256")
    a.e("s_cbranch_scc1 L_exit")
    a.e("s_load_dwordx2 s[4:5], s[0:1], 0")
    a.e("s_load_dwordx2 s[6:7], s[0:1], 8")
    a.e("s_load_dwordx2 s[8:9], s[0:1], 16")
    a.e("s_load_dwordx2 s[10:11], s[0:1], 80")
    a.e("s_load_dwordx4 s[44:47], s[0:1], 24")
    a.e("s_load_dwordx4 s[48:51], s[0:1], 56")
    a.e("s_load_dwordx2 s[62:63], s[0:1], 72")
    wave_ids(a)
    ph_init(a, cfg)
    a.e("s_and_b32 s72, s2, 7")
    a.e("s_lshl_b32 s72, s72, 2")
    a.e("s_lshr_b32 s73, s2, 6")
    a.e("s_add_u32 s72, s72, s73")
    a.e("s_bfe_u32 s73, s2, 0x30003")
    a.e("s_bfe_u32 s88, s2, 0x10006")
    a.e("s_lshl_b32 s88, s88, 2")
    a.e("s_lshr_b32 s89, s2, 7")
    a.e("s_lshl_b32 s89, s89, 1")
    a.e("s_add_u32 s88, s88, s89")
    a.e("s_add_u32 s88, s88, s73")
    a.e("s_and_b32 s88, s88, 7")
    if not cfg.yrot_stag: a.e("s_mov_b32 s88, s73")
    a.e("s_mov_b32 s58, 524288")
    a.e("s_mov_b32 s59, 0x00020000")
    a.e("s_cmp_ge_u32 s2, 128")
    a.e("s_cbranch_scc1 L_partb")
    k_big(a, cfg)
    a.label("L_partb")
    k_attn(a, cfg)
    phase_c(a, cfg)
    ph_dump(a, cfg, [(0, 0), (4, 131072), (7, 65536)])
    a.label("L_exit")
    a.e("s_endpgm")
    a.raw('.section .rodata,"a"')
    for l in kdesc(K, 256): a.raw(l)
    return a.text()

def mk(name, cdp=2048, op=1024, **kw):
    global CDP, OP
    CDP, OP = cdp, op
    cfg = Cfg()
    for k, v in kw.items(): setattr(cfg, k, v)
    open(name, "w").write(gen(cfg))

if __name__ == "__main__":
    mk("v9.s")
    mk("v9_e2.s", wo_at='e2')
    mk("d_base.s", phases=True)
```

```python
import sys
from asmlib import *
NAME = "concat_heads__spectral_fnet__sliding_local_dilated__prompt"
HDR = open("cdna_kernels/%s.s.ref" % NAME).read().split("; Override launch")[0]

WS_CD = 0
WS_O = 5 << 20
CDP = 2048
OP = 1024
FSTR = 4352
WS_FC = 8 << 20
WS_FO = WS_FC + 16*FSTR
WS_BYTES = (8 << 20) + 32*FSTR

U = 8192
WD_UNIT = [0,1,2,3, 8,9,10,11, 12,13,14,15, 0,1,2,3]
RING = [4*U, 6*U, 16*U, 18*U]

class Cfg:
    S1 = 5
    SB = 3
    phases = False
    look = 1
    pf_early = {-1: [("x",0)], 0: [("w",2)], 1: [("x",2)], 2: [("w",3)], 3: [("x",3)], 4: [("w",4)], 5: [("x",4)]}
    pf_late = [("w",5),("x",5),("w",6),("x",6),("w",7),("x",7)]
    pf_nt_upto = -1
    pf_weights = False
    flag_at = 0
    poll_sleep = 2
    wo_at = 'late'
    nt_xb0 = False
    code_pf = False
    pb_delay = False
    ep_overlap = True
    fake16 = False
    xrot = 0
    nbx = 0
    out_st = ''
    y_st = ''
    yrot_stag = True
    ld_sc1 = False
    wd_early = False
    st_mode = ' sc1'
    nt_lead_upto = -1

def wave_ids(a):
    a.e("v_lshrrev_b32 v1, 6, v0")
    a.e("s_nop 0")
    a.e("v_readfirstlane_b32 s3, v1")
    a.e("v_and_b32 v1, 63, v0")

def ph_init(a, cfg):
    if not cfg.phases: return
    a.e("v_mov_b32 v240, 0")
    a.e("s_memrealtime s[80:81]")
    a.e("s_memtime s[84:85]")
    a.e("s_waitcnt lgkmcnt(0)")
    a.e("v_writelane_b32 v240, s80, 60")
    a.e("v_writelane_b32 v240, s84, 61")
    a.e("s_mov_b32 s82, 0")
def ph_stamp(a, cfg, idx):
    if not cfg.phases: return
    a.e("s_memtime s[80:81]")
    a.e("s_waitcnt lgkmcnt(0)")
    a.e(f"v_writelane_b32 v240, s80, {idx}")
def ph_rt(a, cfg, idx):
    if not cfg.phases: return
    a.e("s_memrealtime s[80:81]")
    a.e("s_waitcnt lgkmcnt(0)")
    a.e(f"v_writelane_b32 v240, s80, {idx}")
def ph_stamp_seq(a, cfg):
    if not cfg.phases: return
    a.e("s_memtime s[80:81]")
    a.e("s_waitcnt lgkmcnt(0)")
    a.e("v_mov_b32 v242, s80")
    a.e("v_cmp_eq_u32 vcc, s82, v1")
    a.e("s_nop 1")
    a.e("v_cndmask_b32 v240, v240, v242, vcc")
    a.e("s_add_u32 s82, s82, 1")
def ph_dump(a, cfg, waves_offs):
    if not cfg.phases: return
    for wave, off in waves_offs:
        L = a.newlabel("L_pd")
        a.e(f"s_cmp_lg_u32 s3, {wave}")
        a.e(f"s_cbranch_scc1 {L}")
        a.e("s_waitcnt vmcnt(0)")
        a.e("s_memrealtime s[80:81]")
        a.e("s_memtime s[84:85]")
        a.e("s_load_dwordx2 s[86:87], s[0:1], 80")
        a.e("s_waitcnt lgkmcnt(0)")
        a.e("v_writelane_b32 v240, s80, 62")
        a.e("v_writelane_b32 v240, s84, 63")
        a.e(f"s_add_u32 s92, s86, {0x3000000 + off}")
        a.e("s_addc_u32 s93, s87, 0")
        a.e("s_mov_b32 s94, 0x100000")
        a.e("s_mov_b32 s95, 0x00020000")
        a.e("s_lshl_b32 s90, s2, 8")
        a.e("v_lshl_add_u32 v241, v1, 2, s90")
        a.e("buffer_store_dword v240, v241, s[92:95], 0 offen")
        a.label(L)

def pack_tile32(a, acc, tmp, xorreg=None):
    for g in range(4):
        a.e(f"v_cvt_pk_bf16_f32 v{tmp+2*g}, v{acc+4*g}, v{acc+4*g+1}")
        a.e(f"v_cvt_pk_bf16_f32 v{tmp+2*g+1}, v{acc+4*g+2}, v{acc+4*g+3}")
    if xorreg is not None:
        for i in range(8):
            a.e(f"v_xor_b32 v{tmp+i}, s{xorreg}, v{tmp+i}")
    a.e("s_nop 1")
    for g in (0, 2):
        a.e(f"v_permlane32_swap_b32 v{tmp+2*g}, v{tmp+2*g+2}")
        a.e(f"v_permlane32_swap_b32 v{tmp+2*g+1}, v{tmp+2*g+3}")

NONCE_V = 232

def nonce_issue(a):
    a.e("v_mov_b32 v234, 0")
    a.e(f"buffer_load_dwordx2 v[{NONCE_V}:{NONCE_V+1}], v234, s[68:71], 0 offen sc1")
def nonce_get(a):
    L = a.newlabel("L_nn"); D = a.newlabel("L_nd")
    a.label(L)
    a.e("s_waitcnt vmcnt(0)")
    a.e(f"v_readfirstlane_b32 s74, v{NONCE_V}")
    a.e(f"v_readfirstlane_b32 s75, v{NONCE_V+1}")
    a.e("s_nop 0")
    a.e("s_cmp_lg_u32 s74, 0")
    a.e(f"s_cbranch_scc1 {D}")
    a.e(f"buffer_load_dwordx2 v[{NONCE_V}:{NONCE_V+1}], v234, s[68:71], 0 offen sc1")
    a.e(f"s_branch {L}")
    a.label(D)
def flag_store(a, soff_reg):
    a.e("v_mov_b32 v230, s74")
    a.e("v_mov_b32 v231, s75")
    a.e("v_mov_b32 v234, 0")
    a.e("s_mov_b64 exec, 1")
    a.e(f"buffer_store_dwordx2 v[230:231], v234, s[64:67], s{soff_reg} offen sc1")
    a.e("s_mov_b64 exec, -1")
def flag_poll(a, voff, cfg):
    L = a.newlabel("L_poll"); L0 = a.newlabel("L_poll0")
    a.e(f"s_branch {L0}")
    a.label(L)
    if cfg.poll_sleep: a.e(f"s_sleep {cfg.poll_sleep}")
    a.label(L0)
    a.e(f"buffer_load_dwordx2 v[228:229], v{voff}, s[64:67], 0 offen sc1")
    a.e("s_waitcnt vmcnt(0)")
    a.e("v_cmp_eq_u32 s[76:77], s74, v228")
    a.e("v_cmp_eq_u32 s[78:79], s75, v229")
    a.e("s_nop 1")
    a.e("s_and_b64 s[76:77], s[76:77], s[78:79]")
    a.e("s_cmp_eq_u64 s[76:77], -1")
    a.e(f"s_cbranch_scc0 {L}")

PA = 200
def pc_loader_setup(a):
    a.e("s_sub_u32 s18, s3, 4")
    a.e("v_lshrrev_b32 v2, 3, v1")
    a.e("v_and_b32 v3, 7, v1")
    a.e("v_lshrrev_b32 v4, 4, v1")
    a.e("v_xor_b32 v3, v3, v4")
    a.e("v_xor_b32 v5, 4, v3")
    a.e("s_lshl_b32 s19, s18, 4")
    a.e("v_add_u32 v2, s19, v2")
    a.e("s_lshl_b32 s19, s73, 6")
    a.e("v_add_u32 v6, s19, v2")
    a.e("v_lshlrev_b32 v6, 10, v6")
    a.e(f"v_lshl_add_u32 v{PA}, v3, 4, v6")
    a.e(f"v_lshl_add_u32 v{PA+1}, v5, 4, v6")
    a.e(f"v_add_u32 v{PA+1}, {8*1024-1024}, v{PA+1}")
    a.e("s_lshl_b32 s19, s72, 6")
    a.e("v_add_u32 v6, s19, v2")
    a.e(f"s_movk_i32 s19, {CDP}")
    a.e("v_mul_lo_u32 v7, v6, s19")
    a.e(f"v_lshl_add_u32 v{PA+2}, v3, 4, v7")
    a.e(f"v_lshl_add_u32 v{PA+3}, v5, 4, v7")
    a.e(f"v_add_u32 v{PA+3}, {8*CDP-1024}, v{PA+3}")
    a.e("s_lshr_b32 s19, s72, 1")
    a.e(f"s_mul_i32 s22, s19, {FSTR}")
    a.e(f"s_add_u32 s22, s22, {WS_FC}")
    a.e("v_and_b32 v3, 31, v1")
    a.e(f"v_lshl_add_u32 v{PA+8}, v3, 3, s22")
    a.e("s_lshl_b32 s52, s18, 11")

def op_loader_setup(a):
    a.e("s_sub_u32 s18, s3, 4")
    a.e("v_lshrrev_b32 v2, 3, v1")
    a.e("v_and_b32 v3, 7, v1")
    a.e("v_lshrrev_b32 v4, 4, v1")
    a.e("v_xor_b32 v3, v3, v4")
    a.e("v_xor_b32 v5, 4, v3")
    a.e("s_lshl_b32 s19, s18, 5")
    a.e("s_lshl_b32 s22, s15, 7")
    a.e("s_add_u32 s19, s19, s22")
    a.e("v_add_u32 v6, s19, v2")
    a.e(f"s_movk_i32 s19, {OP}")
    a.e("v_mul_lo_u32 v6, v6, s19")
    a.e(f"v_add_u32 v6, {WS_O}, v6")
    a.e("v_lshl_add_u32 v7, v5, 4, v6")
    a.e("v_lshl_add_u32 v6, v3, 4, v6")
    for j in range(4):
        a.e(f"v_add_u32 v{190+j}, {j*8*OP - j*1024}, v{6 if j%2==0 else 7}")
    a.e("s_lshl_b32 s19, s18, 4")
    a.e("v_add_u32 v2, s19, v2")
    a.e("v_and_b32 v3, 7, v1")
    a.e("v_bfe_u32 v4, v1, 4, 1")
    a.e("v_lshlrev_b32 v4, 2, v4")
    a.e("v_xor_b32 v3, v3, v4")
    a.e("v_lshlrev_b32 v6, 10, v2")
    a.e("v_lshl_add_u32 v6, v3, 4, v6")
    a.e("s_lshl_b32 s19, s16, 7")
    a.e(f"v_add_u32 v{PA+6}, s19, v6")
    a.e(f"v_add_u32 v{PA+7}, {8*1024-1024}, v{PA+6}")
    a.e(f"s_mul_i32 s22, s15, {FSTR}")
    a.e(f"s_add_u32 s22, s22, {WS_FO}")
    a.e("v_and_b32 v3, 7, v1")
    a.e(f"v_lshl_add_u32 v{PA+9}, v3, 3, s22")
    srd(a, 36, 48, 49, 512*512*2)

def wo_issue(a, i):
    a.e(f"s_add_u32 s53, s17, {i}")
    a.e("s_and_b32 s53, s53, 7")
    a.e("s_lshl_b32 s53, s53, 16")
    a.e(f"s_add_u32 m0, s52, {(8+i)*U}")
    a.e("s_nop 0")
    a.e(f"buffer_load_dwordx4 v{PA+6}, s[36:39], s53 offen lds")
    a.e(f"buffer_load_dwordx4 v{PA+7}, s[36:39], s53 offen offset:1024 lds")

def wd_issue(a, pos):
    a.e("s_lshl_b32 s53, s88, 1")
    a.e(f"s_add_u32 s53, s53, {pos}")
    a.e("s_bitcmp1_b32 s53, 3")
    a.e("s_cselect_b32 s56, s46, s44")
    a.e("s_cselect_b32 s57, s47, s45")
    a.e("s_and_b32 s53, s53, 7")
    a.e("s_lshl_b32 s53, s53, 7")
    a.e(f"s_add_u32 m0, s52, {WD_UNIT[pos]*U}")
    a.e("s_nop 0")
    a.e(f"buffer_load_dwordx4 v{PA}, s[56:59], s53 offen lds")
    a.e(f"buffer_load_dwordx4 v{PA+1}, s[56:59], s53 offen offset:1024 lds")

def k_big(a, cfg):
    S = cfg.S1; STG = 32768; NST = 32
    assert S == 5
    a.c("---- big GEMM role: xcd=s2&7, i=s2>>3 (0..15)")
    a.e("s_and_b32 s12, s2, 7")
    a.e("s_lshr_b32 s13, s2, 3")
    a.e("s_lshr_b32 s14, s13, 3")
    a.e("s_bfe_u32 s15, s13, 0x10002")
    a.e("s_lshl_b32 s12, s12, 1")
    a.e("s_add_u32 s15, s15, s12")
    a.e("s_and_b32 s16, s13, 3")
    if cfg.nbx: a.e(f"s_xor_b32 s16, s16, {cfg.nbx}")
    a.e("s_lshr_b32 s17, s13, 2")
    a.e("s_add_u32 s17, s17, s16")
    a.e("s_and_b32 s17, s17, 3")
    a.e("s_cmp_ge_u32 s3, 4")
    a.e("s_cbranch_scc0 L_big_cons")
    a.e("s_sub_u32 s18, s3, 4")
    a.e("v_lshrrev_b32 v2, 4, v1")
    a.e("v_and_b32 v3, 15, v1")
    a.e("v_lshlrev_b32 v4, 2, v2")
    a.e("v_xor_b32 v3, v3, v4")
    a.e("s_lshl_b32 s19, s18, 4")
    a.e("v_add_u32 v4, s19, v2")
    a.e("v_lshlrev_b32 v4, 10, v4")
    a.e("v_lshl_add_u32 v4, v3, 4, v4")
    a.e("s_lshl_b32 s19, s16, 8")
    a.e("v_add_u32 v4, s19, v4")
    for j in range(4):
        a.e(f"v_add_u32 v{10+j}, {j*4096 - j*1024}, v4")
    a.e("v_lshrrev_b32 v4, 3, v1")
    a.e("v_and_b32 v3, 7, v1")
    a.e("v_xor_b32 v3, v3, v2")
    a.e("v_xor_b32 v5, 4, v3")
    a.e("s_lshl_b32 s19, s18, 5")
    a.e("s_lshl_b32 s22, s15, 7")
    a.e("s_add_u32 s19, s19, s22")
    a.e("v_add_u32 v4, s19, v4")
    a.e("v_lshlrev_b32 v4, 12, v4")
    a.e("v_lshl_add_u32 v6, v3, 4, v4")
    a.e("v_lshl_add_u32 v7, v5, 4, v4")
    for j in range(4):
        a.e(f"v_add_u32 v{14+j}, {j*8*4096 - j*1024}, v{6 if j%2==0 else 7}")
    L = cfg.look; NF = 4*(8-L)
    a.e(f"v_add_u32 v20, {-L}, v1")
    a.e("v_and_b32 v21, 3, v20")
    a.e("v_and_b32 v22, -4, v20")
    a.e("v_cmp_lt_u32 vcc, s17, v21")
    a.e("s_nop 1")
    a.e("v_subbrev_co_u32 v25, vcc, 0, v21, vcc")
    a.e(f"v_add_u32 v26, {-NF}, v20")
    a.e("v_mul_u32_u24 v27, 11, v26")
    a.e("v_lshrrev_b32 v27, 5, v27")
    a.e("v_mul_u32_u24 v28, 3, v27")
    a.e("v_sub_u32 v28, v26, v28")
    a.e(f"v_lshl_add_u32 v27, v27, 2, {NF}")
    a.e(f"v_cmp_le_u32 vcc, {NF+L}, v1")
    a.e("v_mov_b32 v29, -1")
    a.e("s_nop 0")
    a.e("v_cndmask_b32 v22, v22, v27, vcc")
    a.e("v_cndmask_b32 v25, v25, v28, vcc")
    a.e("v_cndmask_b32 v21, v21, v29, vcc")
    a.e("s_add_u32 s36, s17, 1")
    a.e("v_add_u32 v23, s36, v25")
    a.e("v_and_b32 v23, 3, v23")
    a.e("v_add_u32 v23, v22, v23")
    a.e(f"s_add_u32 s36, s17, {4*L + 32}")
    a.e("v_add_u32 v24, s36, v22")
    a.e("v_cmp_eq_u32 vcc, s17, v21")
    a.e("s_nop 1")
    a.e("v_cndmask_b32 v23, v23, v24, vcc")
    a.e("s_add_u32 s36, s17, 32")
    a.e("v_lshl_add_u32 v24, v1, 2, s36")
    a.e(f"v_cmp_gt_u32 vcc, {L}, v1")
    a.e("s_nop 1")
    a.e("v_cndmask_b32 v23, v23, v24, vcc")
    if cfg.nt_lead_upto >= 0:
        a.e("v_and_b32 v24, 31, v23")
        a.e(f"v_cmp_lt_u32 vcc, {32 + 4*cfg.nt_lead_upto + 3}, v23")
        a.e("s_nop 1")
        a.e("v_cndmask_b32 v23, v23, v24, vcc")
    a.e("s_mov_b32 s36, 0")
    a.e(f"s_mul_i32 s39, s12, {2*cfg.xrot}")
    a.e("s_lshl_b32 s34, s18, 12")
    a.e("s_add_u32 s35, s34, 16384")
    a.e("s_mov_b32 s20, 0")
    def nextk():
        a.e("v_readlane_b32 s37, v23, s36")
        a.e("s_add_u32 s36, s36, 1")
        a.e("s_and_b32 s36, s36, 31")
        a.e("s_add_u32 s38, s37, s39")
        a.e("s_and_b32 s38, s38, 31")
        a.e("s_lshl_b32 s32, s38, 16")
        a.e("s_lshl_b32 s33, s38, 7")
    nextk()
    a.e("s_waitcnt lgkmcnt(0)")
    srd(a, 24, 4, 5, 2048*512*2)
    a.e("s_cmp_eq_u32 s14, 0")
    a.e("s_cselect_b32 s28, s6, s8")
    a.e("s_cselect_b32 s29, s7, s9")
    a.e(f"s_mov_b32 s30, {2048*2048*2}")
    a.e("s_mov_b32 s31, 0x00020000")
    def issue():
        a.e("s_add_u32 m0, s20, s35")
        if cfg.nt_lead_upto >= 0:
            La = a.newlabel("L_nt"); Lb = a.newlabel("L_ntd")
            a.e("s_bitcmp1_b32 s37, 5")
            a.e(f"s_cbranch_scc1 {La}")
            for j in range(4):
                a.e(f"buffer_load_dwordx4 v{14+j}, s[28:31], s33 offen offset:{j*1024} lds")
            a.e(f"s_branch {Lb}")
            a.label(La)
            for j in range(4):
                a.e(f"buffer_load_dwordx4 v{14+j}, s[28:31], s33 offen offset:{j*1024} nt lds")
            a.label(Lb)
        else:
            a.e("s_nop 0")
            for j in range(4):
                a.e(f"buffer_load_dwordx4 v{14+j}, s[28:31], s33 offen offset:{j*1024} lds")
        a.e("s_add_u32 m0, s20, s34")
        a.e("s_nop 0")
        for j in range(4):
            a.e(f"buffer_load_dwordx4 v{10+j}, s[24:27], s32 offen offset:{j*1024} lds")
    def advance():
        nextk()
        a.e(f"s_add_u32 s20, s20, {STG}")
        a.e(f"s_cmp_ge_u32 s20, {STG*S}")
        a.e("s_cselect_b32 s20, 0, s20")
    P = S - 1
    ph_stamp(a, cfg, 32)
    for i in range(P):
        issue(); advance()
        if i == 0: ph_stamp(a, cfg, 33)
    common_srds(a)
    pc_loader_setup(a)
    a.e(f"s_mov_b32 s21, {NST-P}")
    a.label("L_big_ld")
    a.e(f"s_waitcnt vmcnt({8*(P-1)})")
    a.e("s_barrier")
    issue(); advance()
    ph_stamp_seq(a, cfg)
    a.e("s_sub_u32 s21, s21, 1")
    a.e("s_cmp_lg_u32 s21, 0")
    a.e("s_cbranch_scc1 L_big_ld")
    a.e("s_waitcnt vmcnt(24)")
    a.e("s_barrier")
    for pos in (4,5,6,7): wd_issue(a, pos)
    nonce_issue(a)
    ph_stamp_seq(a, cfg)
    a.e("s_waitcnt vmcnt(25)")
    a.e("s_barrier")
    ph_stamp_seq(a, cfg)
    a.e("s_waitcnt vmcnt(17)")
    a.e("s_barrier")
    ph_stamp_seq(a, cfg)
    a.e("s_waitcnt vmcnt(9)")
    a.e("s_barrier")
    ph_stamp_seq(a, cfg)
    for pos in (8,9,10,11,0,1,2,3): wd_issue(a, pos)
    nonce_get(a)
    ph_stamp(a, cfg, 44)
    a.e("s_barrier")
    a.e("s_branch L_y_loader")
    a.label("L_big_cons")
    if cfg.code_pf:
        a.e("s_cmp_ge_u32 s2, 16")
        a.e("s_cbranch_scc1 L_nocpf")
        a.e("s_cmp_eq_u32 s3, 0")
        a.e("s_cbranch_scc1 L_nocpf")
        a.e("s_getpc_b64 s[22:23]")
        a.label("L_pcref")
        a.e(f"s_sub_u32 s22, s22, L_pcref-{NAME}_kernel")
        a.e("s_subb_u32 s23, s23, 0")
        a.e("s_sub_u32 s18, s3, 1")
        a.e("s_lshl_b32 s18, s18, 13")
        a.e("v_lshl_add_u32 v2, v1, 7, s18")
        a.e(f"v_min_u32 v2, L_exit-{NAME}_kernel, v2")
        a.e("global_load_dword v239, v2, s[22:23]")
        a.label("L_nocpf")
    pc_cons_setup(a)
    ACC = 64
    BA, BB = 10, 12
    CA, CB = 16, 18
    a.e("s_and_b32 s18, s3, 1")
    a.e("s_lshr_b32 s19, s3, 1")
    a.e("v_bfe_u32 v2, v1, 2, 2")
    a.e("v_and_b32 v3, 3, v1")
    a.e("v_bfe_u32 v4, v1, 4, 1")
    a.e("v_lshrrev_b32 v5, 5, v1")
    a.e("v_lshlrev_b32 v6, 8, v2")
    a.e("v_lshl_add_u32 v6, v5, 11, v6")
    a.e("v_lshl_add_u32 v6, v4, 5, v6")
    a.e("v_lshl_add_u32 v6, v3, 3, v6")
    a.e("s_lshl_b32 s22, s18, 1")
    for j in range(2):
        a.e(f"s_add_u32 s23, s22, {j}")
        a.e("v_xor_b32 v7, s23, v2")
        a.e(f"v_lshl_add_u32 v{BA+j}, v7, 6, v6")
    a.e("v_and_b32 v2, 31, v1")
    a.e("s_lshl_b32 s22, s19, 6")
    a.e("v_add_u32 v2, s22, v2")
    a.e("v_bfe_u32 v3, v2, 1, 3")
    a.e("v_xor_b32 v3, v3, v5")
    a.e("v_lshlrev_b32 v4, 7, v2")
    a.e("v_add_u32 v4, 16384, v4")
    for ks in range(4):
        a.e(f"v_xor_b32 v6, {ks*2}, v3")
        a.e(f"v_lshl_add_u32 v{BB+ks}, v6, 4, v4")
    a.e("v_and_b32 v2, 31, v1")
    a.e("v_and_b32 v3, 7, v2")
    a.e("v_xor_b32 v3, v3, v5")
    a.e("v_lshlrev_b32 v4, 7, v2")
    a.e("s_lshl_b32 s22, s3, 13")
    a.e(f"s_add_u32 s22, s22, {16*U}")
    a.e("v_add_u32 v4, s22, v4")
    for q in range(4):
        a.e(f"v_xor_b32 v6, {q*2}, v3")
        a.e(f"v_lshl_add_u32 v{24+q}, v6, 4, v4")
    a.e("v_lshrrev_b32 v2, 3, v1")
    a.e("v_and_b32 v3, 7, v1")
    a.e("v_xor_b32 v4, v3, v2")
    a.e("v_lshlrev_b32 v6, 7, v2")
    a.e("v_lshl_add_u32 v6, v4, 4, v6")
    a.e("v_add_u32 v28, s22, v6")
    a.e("s_lshl_b32 s22, s15, 7")
    a.e("s_lshl_b32 s23, s19, 6")
    a.e("s_add_u32 s22, s22, s23")
    a.e("v_add_u32 v2, s22, v2")
    a.e(f"s_movk_i32 s22, {CDP}")
    a.e("v_mul_lo_u32 v2, v2, s22")
    a.e("v_lshl_add_u32 v2, v3, 4, v2")
    a.e("s_lshl_b32 s22, s14, 10")
    a.e("s_lshl_b32 s23, s16, 8")
    a.e("s_add_u32 s22, s22, s23")
    a.e("s_lshl_b32 s23, s18, 7")
    a.e("s_add_u32 s22, s22, s23")
    a.e("v_add_u32 v29, s22, v2")
    for i in range(64):
        a.e(f"v_mov_b32 v{ACC+i}, 0")
    a.e("s_mov_b32 s20, 0")
    def setaddr_l():
        l = [f"v_add_u32 v{CA+j}, s20, v{BA+j}" for j in range(2)] + [f"v_add_u32 v{CB+k}, s20, v{BB+k}" for k in range(4)]
        l += [f"s_add_u32 s20, s20, {STG}", f"s_cmp_ge_u32 s20, {STG*S}", "s_cselect_b32 s20, 0, s20"]
        return l
    def reads(F, ks):
        r = []
        r.append(f"ds_read_b128 v[{F+8}:{F+11}], v{CB+ks}")
        for u in range(2):
            r.append(f"ds_read_b64_tr_b16 v[{F+2*u}:{F+2*u+1}], v{CA} offset:{(ks*16+u*4)*256}")
        r.append(f"ds_read_b128 v[{F+12}:{F+15}], v{CB+ks} offset:4096")
        for u in range(2):
            r.append(f"ds_read_b64_tr_b16 v[{F+4+2*u}:{F+4+2*u+1}], v{CA+1} offset:{(ks*16+u*4)*256}")
        return r
    def mfmas(F):
        m = []
        for (jm, jn) in ((0,0),(0,1),(1,0),(1,1)):
            d = ACC + (jm*2+jn)*16
            if cfg.fake16:
                fk[0] = (fk[0] + 1) % 2
                d2 = d + 8*fk[0]
                m.append(f"v_mfma_f32_16x16x32_bf16 v[{d2}:{d2+3}], v[{F+4*jm}:{F+4*jm+3}], v[{F+8+4*jn}:{F+8+4*jn+3}], v[{d2}:{d2+3}]\n  v_mfma_f32_16x16x32_bf16 v[{d2+4}:{d2+7}], v[{F+4*jm}:{F+4*jm+3}], v[{F+8+4*(1-jn)}:{F+8+4*(1-jn)+3}], v[{d2+4}:{d2+7}]")
            else:
                m.append(f"v_mfma_f32_32x32x16_bf16 v[{d}:{d+15}], v[{F+4*jm}:{F+4*jm+3}], v[{F+8+4*jn}:{F+8+4*jn+3}], v[{d}:{d+15}]")
        return m
    fk = [0]
    FS = [128, 144, 160, 176]
    def mix(m, r, pre=()):
        return [m[0]] + list(pre) + r[0:3] + [m[1]] + r[3:6] + [m[2], m[3]]
    a.e("s_waitcnt lgkmcnt(0)")
    common_srds(a)
    a.e("s_or_b32 s22, s2, s3")
    a.e("s_cmp_lg_u32 s22, 0")
    a.e("s_cbranch_scc1 L_no_pub")
    a.e("s_memrealtime s[22:23]")
    a.e("s_waitcnt lgkmcnt(0)")
    a.e("s_or_b32 s22, s22, 1")
    a.e("v_mov_b32 v230, s22")
    a.e("v_mov_b32 v231, s23")
    a.e("v_mov_b32 v234, 0")
    a.e("s_mov_b64 exec, 1")
    a.e("buffer_store_dwordx2 v[230:231], v234, s[68:71], 0 offen sc1")
    a.e("s_mov_b64 exec, -1")
    a.label("L_no_pub")
    ph_stamp(a, cfg, 0)
    a.e("s_barrier")
    ph_stamp(a, cfg, 1)
    for x in setaddr_l(): a.e(x)
    for x in reads(FS[0], 0): a.e(x)
    for x in reads(FS[1], 1): a.e(x)
    a.e(f"s_mov_b32 s21, {NST-1}")
    a.label("L_big_loop")
    a.e("s_waitcnt lgkmcnt(6)")
    for x in mix(mfmas(FS[0]), reads(FS[2], 2)): a.e(x)
    a.e("s_waitcnt lgkmcnt(6)")
    for x in mix(mfmas(FS[1]), reads(FS[3], 3)): a.e(x)
    a.e("s_waitcnt lgkmcnt(0)")
    for x in mix(mfmas(FS[2]), reads(FS[0], 0), pre=["s_barrier"] + setaddr_l()): a.e(x)
    for x in mix(mfmas(FS[3]), reads(FS[1], 1)): a.e(x)
    a.e("s_sub_u32 s21, s21, 1")
    a.e("s_cmp_lg_u32 s21, 0")
    a.e("s_cbranch_scc1 L_big_loop")
    nonce_issue(a)
    a.e("s_waitcnt lgkmcnt(6)")
    for x in mix(mfmas(FS[0]), reads(FS[2], 2)): a.e(x)
    a.e("s_waitcnt lgkmcnt(6)")
    for x in mix(mfmas(FS[1]), reads(FS[3], 3)): a.e(x)
    a.e("s_cmp_eq_u32 s14, 0")
    a.e("s_cselect_b32 s22, 0, 0x80008000")
    order = [(0,0),(1,0),(0,1),(1,1)]
    def ep_tile(t):
        jm, jn = order[t]
        tmp = 32 + 8*t
        sub = Asm()
        pack_tile32(sub, ACC+(jm*2+jn)*16, tmp, xorreg=22)
        sub.e("s_nop 0")
        for g in range(2):
            sub.e(f"ds_write_b128 v{24+jm*2+g}, v[{tmp+4*g}:{tmp+4*g+3}] offset:{jn*4096}")
        if jm == 1:
            for q in range(4*jn, 4*jn+4):
                sub.e(f"ds_read_b128 v[{128+4*q}:{131+4*q}], v28 offset:{q*1024}")
        return [l.strip() for l in sub.lines]
    m2 = mfmas(FS[2]); m3 = mfmas(FS[3])
    idx = {(0,0):0,(0,1):1,(1,0):2,(1,1):3}
    if cfg.ep_overlap:
        a.e("s_waitcnt lgkmcnt(0)")
        seq = []
        for t in range(4):
            seq += [m2[idx[order[t]]], m3[idx[order[t]]]]
        for x in seq[0:4]: a.e(x)
        a.e(seq[4]); a.e("s_nop 7"); a.e("s_nop 1")
        e0 = ep_tile(0)
        for x in e0[:12]: a.e(x)
        a.e(seq[5])
        for x in e0[12:]: a.e(x)
        a.e(seq[6])
        e1 = ep_tile(1)
        for x in e1[:12]: a.e(x)
        a.e(seq[7])
        for x in e1[12:]: a.e(x)
        ph_stamp(a, cfg, 2)
        for x in ep_tile(2): a.e(x)
        for x in ep_tile(3): a.e(x)
    else:
        a.e("s_waitcnt lgkmcnt(6)")
        for x in m2: a.e(x)
        a.e("s_waitcnt lgkmcnt(0)")
        for x in m3: a.e(x)
        ph_stamp(a, cfg, 2)
        a.e("s_nop 7"); a.e("s_nop 3")
        for t in range(4):
            for x in ep_tile(t): a.e(x)
    ph_stamp(a, cfg, 3)
    a.e("s_mov_b32 s22, 0")
    for q in range(8):
        a.e(f"s_waitcnt lgkmcnt({7-q if q >= 4 else 0 + 8 + 3 - q})") if False else None
    for q in range(8):
        rem = (3 - q) + 8 if q < 4 else 7 - q
        a.e(f"s_waitcnt lgkmcnt({rem})")
        a.e(f"buffer_store_dwordx4 v[{128+4*q}:{131+4*q}], v29, s[64:67], s22 offen{cfg.st_mode}")
        if q < 7: a.e(f"s_add_u32 s22, s22, {8*CDP}")
    ph_stamp(a, cfg, 4)
    a.e("s_lshl_b32 s60, s14, 2")
    a.e("s_add_u32 s60, s60, s16")
    a.e("s_lshl_b32 s60, s60, 2")
    a.e("s_add_u32 s60, s60, s3")
    a.e("s_lshl_b32 s60, s60, 3")
    a.e(f"s_mul_i32 s22, s15, {FSTR}")
    a.e("s_add_u32 s60, s60, s22")
    a.e(f"s_add_u32 s60, s60, {WS_FC}")
    nonce_get(a)
    ph_rt(a, cfg, 36)
    flag_store(a, 60)
    ph_stamp(a, cfg, 5)
    a.e("s_barrier")
    a.e("s_branch L_y_cons")

def common_srds(a):
    srd(a, 64, 10, 11, WS_BYTES)
    srd(a, 68, 62, 63, 256)

def k_attn(a, cfg):
    S = cfg.SB; NST = 8
    AREG = 24576
    STG = AREG + 18*1024
    PITCH = 400
    a.c("---- part B role: xcd=s2&7, i=(s2>>3)-16")
    a.e("s_load_dwordx4 s[40:43], s[0:1], 40")
    a.e("s_and_b32 s12, s2, 7")
    a.e("s_lshr_b32 s13, s2, 3")
    a.e("s_sub_u32 s13, s13, 16")
    a.e("s_lshr_b32 s14, s13, 3")
    a.e("s_lshl_b32 s12, s12, 1")
    a.e("s_add_u32 s15, s12, s14")
    a.e("s_and_b32 s16, s13, 7")
    a.e("s_lshl_b32 s17, s14, 2")
    a.e("s_add_u32 s17, s17, s16")
    a.e("s_and_b32 s17, s17, 7")
    a.e("s_cmp_ge_u32 s3, 4")
    a.e("s_cbranch_scc0 L_att_cons")
    a.e("s_cmp_eq_u32 s3, 7")
    a.e("s_cbranch_scc1 L_att_pf")
    a.e("s_sub_u32 s18, s3, 4")
    a.e("v_lshrrev_b32 v2, 3, v1")
    a.e("v_and_b32 v3, 7, v1")
    a.e("v_bfe_u32 v4, v1, 4, 1")
    a.e("v_lshlrev_b32 v4, 1, v4")
    a.e("v_xor_b32 v3, v3, v4")
    a.e("v_xor_b32 v5, 4, v3")
    a.e("s_mov_b32 s22, 3072")
    a.e("v_mul_lo_u32 v2, v2, s22")
    a.e("s_lshl_b32 s19, s16, 7")
    a.e("s_lshl_b32 s22, s18, 10")
    a.e("s_add_u32 s19, s19, s22")
    a.e("v_add_u32 v2, s19, v2")
    a.e("v_lshl_add_u32 v6, v3, 4, v2")
    a.e("v_lshl_add_u32 v7, v5, 4, v2")
    for p in range(8):
        a.e(f"v_add_u32 v{10+p}, {p*8*3072 - (p%4)*1024}, v{6 if p%2==0 else 7}")
    a.e("v_lshrrev_b32 v2, 3, v1")
    a.e("v_and_b32 v3, 7, v1")
    a.e("v_lshrrev_b32 v4, 4, v1")
    a.e("v_xor_b32 v3, v3, v4")
    a.e("v_xor_b32 v5, 4, v3")
    a.e("s_lshl_b32 s19, s15, 7")
    a.e("s_sub_u32 s19, s19, 16")
    a.e("s_mul_i32 s22, s18, 48")
    a.e("s_add_u32 s19, s19, s22")
    a.e("v_add_u32 v2, s19, v2")
    a.e("v_lshlrev_b32 v2, 10, v2")
    a.e("v_lshl_add_u32 v6, v3, 4, v2")
    a.e("v_lshl_add_u32 v7, v5, 4, v2")
    for j in range(6):
        a.e(f"v_add_u32 v{20+j}, {j*8*1024}, v{6 if j%2==0 else 7}")
    a.e("s_mul_i32 s32, s17, 196608")
    a.e("s_lshl_b32 s33, s17, 7")
    a.e("s_lshl_b32 s34, s18, 13")
    a.e("s_mul_i32 s35, s18, 6144")
    a.e(f"s_add_u32 s35, s35, {AREG}")
    a.e("s_mov_b32 s20, 0")
    a.e("s_waitcnt lgkmcnt(0)")
    srd(a, 24, 42, 43, 512*1536*2)
    srd(a, 28, 40, 41, 2048*512*2)
    def issue(nt=""):
        a.e("s_add_u32 s37, s20, s35")
        for j in range(6):
            a.e(f"s_add_u32 m0, s37, {j*1024}")
            a.e("s_nop 0")
            a.e(f"buffer_load_dwordx4 v{20+j}, s[28:31], s33 offen{nt} lds")
        a.e("s_add_u32 s37, s20, s34")
        for hh in range(2):
            a.e(f"s_add_u32 m0, s37, {hh*4096}")
            a.e("s_nop 0")
            for p in range(4):
                a.e(f"buffer_load_dwordx4 v{10+hh*4+p}, s[24:27], s32 offen offset:{p*1024} lds")
    def advance():
        a.e("s_add_u32 s32, s32, 196608")
        a.e(f"s_cmp_ge_u32 s32, {512*3072}")
        a.e("s_cselect_b32 s32, 0, s32")
        a.e("s_add_u32 s33, s33, 128")
        a.e("s_and_b32 s33, s33, 0x3ff")
        a.e(f"s_add_u32 s20, s20, {STG}")
        a.e(f"s_cmp_ge_u32 s20, {STG*S}")
        a.e("s_cselect_b32 s20, 0, s20")
    P = S - 1
    if cfg.pb_delay: a.e("s_barrier")
    ph_stamp(a, cfg, 32)
    for i in range(P):
        issue(" nt" if (i == 0 and cfg.nt_xb0) else ""); advance()
        if i == 0: ph_stamp(a, cfg, 33)
    a.e(f"s_mov_b32 s21, {NST-P}")
    a.label("L_att_ld")
    a.e(f"s_waitcnt vmcnt({14*(P-1)})")
    a.e("s_barrier")
    issue(); advance()
    a.e("s_sub_u32 s21, s21, 1")
    a.e("s_cmp_lg_u32 s21, 0")
    a.e("s_cbranch_scc1 L_att_ld")
    for i in range(NST-P, NST):
        a.e(f"s_waitcnt vmcnt({14*(NST-1-i)})")
        a.e("s_barrier")
    a.label("L_att_e1")
    a.e("s_barrier")
    pc_loader_setup(a)
    op_loader_setup(a)
    a.e("s_barrier")
    if cfg.wo_at == 'e2':
        for i in range(8): wo_issue(a, i)
    a.e("s_branch L_att_attn")
    a.label("L_att_pf")
    a.e("s_bfe_u32 s18, s13, 0x10002")
    a.e("s_add_u32 s18, s18, s12")
    a.e("s_lshl_b32 s18, s18, 7")
    a.e("s_and_b32 s19, s13, 3")
    a.e("s_lshl_b32 s19, s19, 5")
    a.e("s_add_u32 s18, s18, s19")
    a.e("v_lshrrev_b32 v2, 2, v1")
    a.e("v_add_u32 v2, s18, v2")
    a.e("v_lshlrev_b32 v2, 12, v2")
    a.e("v_and_b32 v3, 3, v1")
    a.e("v_lshl_add_u32 v236, v3, 7, v2")
    a.e("v_add_u32 v237, 0x10000, v236")
    a.e("s_lshl_b32 s18, s13, 4")
    a.e("v_lshrrev_b32 v2, 3, v1")
    a.e("v_add_u32 v2, s18, v2")
    a.e("v_lshlrev_b32 v2, 10, v2")
    a.e("v_and_b32 v3, 7, v1")
    a.e("v_lshl_add_u32 v238, v3, 7, v2")
    a.e("v_add_u32 v239, 0x2000, v238")
    a.e("s_waitcnt lgkmcnt(0)")
    srd(a, 24, 4, 5, 2048*512*2)
    a.e("s_cmp_eq_u32 s14, 0")
    a.e("s_cselect_b32 s28, s6, s8")
    a.e("s_cselect_b32 s29, s7, s9")
    a.e(f"s_mov_b32 s30, {2048*2048*2}")
    a.e("s_mov_b32 s31, 0x00020000")
    a.e("s_lshr_b32 s34, s12, 1")
    a.e(f"s_mul_i32 s34, s34, {cfg.xrot}")
    TD = 244
    tcount = [0]
    def touch(kind, b):
        for h in (0, 1):
            d = TD + (tcount[0] % 8); tcount[0] += 1
            a.e(f"s_add_u32 s33, s34, {b}")
            a.e("s_and_b32 s33, s33, 7")
            if kind == "w":
                a.e("s_lshl_b32 s32, s33, 9")
                a.e(f"buffer_load_dword v{d}, v{236+h}, s[28:31], s32 offen" + (" nt" if b <= cfg.pf_nt_upto else ""))
            else:
                a.e("s_lshl_b32 s32, s33, 18")
                a.e(f"buffer_load_dword v{d}, v{238+h}, s[24:27], s32 offen")
    for (k, b) in cfg.pf_early.get(-1, []): touch(k, b)
    if cfg.pb_delay:
        a.e("s_waitcnt vmcnt(0)")
        a.e("s_barrier")
    for i in range(NST):
        a.e("s_barrier")
        for (k, b) in cfg.pf_early.get(i, []): touch(k, b)
    for (k, b) in cfg.pf_late: touch(k, b)
    if cfg.pf_weights:
        a.e("s_lshl_b32 s22, s13, 15")
        a.e("v_lshl_add_u32 v2, v1, 7, s22")
        for m_ in range(3):
            srd(a, 32, 44+2*m_, 45+2*m_, 512*512*2)
            for q in range(4):
                d = TD + (tcount[0] % 8); tcount[0] += 1
                a.e(f"s_movk_i32 s36, {q*8192}")
                a.e(f"buffer_load_dword v{d}, v2, s[32:35], s36 offen")
    a.e("s_branch L_att_e1")
    a.label("L_att_cons")
    ACC = 128 - 8
    F0, F1 = 24, 72
    BA, BB = 10, 12
    CA, CB = 16, 18
    a.e("v_bfe_u32 v2, v1, 2, 2")
    a.e("v_and_b32 v3, 3, v1")
    a.e("v_lshrrev_b32 v4, 4, v1")
    a.e("v_lshrrev_b32 v5, 1, v2")
    a.e("v_and_b32 v6, 1, v4")
    a.e("v_lshl_or_b32 v5, v6, 1, v5")
    a.e("v_xor_b32 v5, s3, v5")
    a.e("v_lshlrev_b32 v6, 7, v2")
    a.e("v_lshl_add_u32 v6, v4, 10, v6")
    a.e("v_lshl_add_u32 v6, v5, 5, v6")
    a.e(f"v_lshl_add_u32 v{BA}, v3, 3, v6")
    a.e("v_and_b32 v2, 15, v1")
    a.e("v_lshrrev_b32 v3, 1, v2")
    a.e("v_xor_b32 v3, v3, v4")
    a.e("v_lshlrev_b32 v5, 7, v2")
    a.e(f"v_add_u32 v5, {AREG}, v5")
    for ks in range(2):
        a.e(f"v_xor_b32 v6, {ks*4}, v3")
        a.e(f"v_lshl_add_u32 v{BB+ks}, v6, 4, v5")
    a.e(f"s_mov_b32 s22, {PITCH}")
    a.e("v_mul_lo_u32 v8, v2, s22")
    a.e("v_lshl_add_u32 v8, v4, 3, v8")
    a.e("s_lshl_b32 s22, s3, 5")
    a.e("v_add_u32 v8, s22, v8")
    for i in range(4, 108):
        a.e(f"v_mov_b32 v{ACC+i}, 0")
    a.e("s_mov_b32 s20, 0")
    def setaddr():
        a.e(f"v_add_u32 v{CA}, s20, v{BA}")
        for k in range(2): a.e(f"v_add_u32 v{CB+k}, s20, v{BB+k}")
        a.e(f"s_add_u32 s20, s20, {STG}")
        a.e(f"s_cmp_ge_u32 s20, {STG*S}")
        a.e("s_cselect_b32 s20, 0, s20")
    def reads(F, ks):
        r = []
        for seg in range(3):
            for u in range(2):
                r.append(f"ds_read_b64_tr_b16 v[{F+4*seg+2*u}:{F+4*seg+2*u+1}], v{CA} offset:{seg*8192 + (ks*32+u*4)*128}")
        for nt in range(9):
            r.append(f"ds_read_b128 v[{F+12+4*nt}:{F+12+4*nt+3}], v{CB+ks} offset:{nt*2048}")
        return r
    TL = [(nt, seg) for nt in range(9) for seg in range(3) if not (seg == 0 and nt == 0)]
    def mfmas(F):
        m = []
        for (nt, seg) in TL:
            d = ACC + (seg*9+nt)*4
            m.append(f"v_mfma_f32_16x16x32_bf16 v[{d}:{d+3}], v[{F+4*seg}:{F+4*seg+3}], v[{F+12+4*nt}:{F+12+4*nt+3}], v[{d}:{d+3}]")
        return m
    def interleave(m, r):
        out = []
        for i, x in enumerate(m):
            out.append(x)
            if i < len(r): out.append(r[i])
        return out
    a.e("s_waitcnt lgkmcnt(0)")
    ph_stamp(a, cfg, 0)
    if cfg.pb_delay: a.e("s_barrier")
    a.e("s_barrier")
    ph_stamp(a, cfg, 1)
    setaddr()
    for x in reads(F0, 0): a.e(x)
    a.e(f"s_mov_b32 s21, {NST}")
    a.label("L_att_loop")
    a.e("s_waitcnt lgkmcnt(0)")
    for x in interleave(mfmas(F0), reads(F1, 1)): a.e(x)
    a.e("s_waitcnt lgkmcnt(0)")
    a.e("s_sub_u32 s21, s21, 1")
    a.e("s_cmp_eq_u32 s21, 0")
    a.e("s_cbranch_scc1 L_att_last")
    a.e("s_barrier")
    setaddr()
    for x in interleave(mfmas(F1), reads(F0, 0)): a.e(x)
    a.e("s_branch L_att_loop")
    a.label("L_att_last")
    a.e("s_barrier")
    ph_stamp(a, cfg, 2)
    m = mfmas(F1)
    def wr(idx):
        nt, seg = TL[idx]
        d = ACC + (seg*9+nt)*4
        tmp = F0 + 2*(idx % 16)
        return [f"v_cvt_pk_bf16_f32 v{tmp}, v{d}, v{d+1}", f"v_cvt_pk_bf16_f32 v{tmp+1}, v{d+2}, v{d+3}",
                f"ds_write_b64 v8, v[{tmp}:{tmp+1}] offset:{nt*16*PITCH + seg*128}"]
    LAG = 9
    for i, x in enumerate(m):
        a.e(x)
        if i >= LAG:
            for y in wr(i-LAG): a.e(y)
    a.e("s_nop 7")
    for i in range(len(m)-LAG, len(m)):
        for y in wr(i): a.e(y)
    a.e("s_waitcnt lgkmcnt(0)")
    a.e("s_barrier")
    a.label("L_att_attn")
    common_srds(a)
    if cfg.wo_at == 'all8':
        srd(a, 36, 48, 49, 512*512*2)
        a.e("v_lshrrev_b32 v2, 3, v1")
        a.e("v_and_b32 v3, 7, v1")
        a.e("v_bfe_u32 v4, v1, 4, 1")
        a.e("v_lshlrev_b32 v4, 2, v4")
        a.e("v_xor_b32 v3, v3, v4")
        a.e("v_lshlrev_b32 v2, 10, v2")
        a.e("v_lshl_add_u32 v2, v3, 4, v2")
        a.e("s_lshl_b32 s19, s16, 7")
        a.e("v_add_u32 v2, s19, v2")
        a.e("s_add_u32 s53, s17, s3")
        a.e("s_and_b32 s53, s53, 7")
        a.e("s_lshl_b32 s53, s53, 16")
        a.e("s_lshl_b32 s22, s3, 13")
        a.e(f"s_add_u32 s22, s22, {8*U}")
        for p in range(8):
            a.e(f"s_add_u32 m0, s22, {p*1024}")
            a.e(f"s_add_u32 s23, s53, {p*8192}")
            a.e("buffer_load_dwordx4 v2, s[36:39], s23 offen lds")
    nonce_issue(a)
    a.e("s_and_b32 s18, s3, 3")
    a.e("s_lshr_b32 s19, s3, 2")
    a.e("s_lshl_b32 s19, s19, 6")
    a.e("v_add_u32 v2, s19, v1")
    a.e(f"s_mov_b32 s22, {PITCH}")
    a.e("v_mul_lo_u32 v3, v2, s22")
    a.e("s_lshl_b32 s22, s18, 5")
    a.e(f"s_add_u32 s22, s22, {2*PITCH}")
    a.e("v_add_u32 v3, s22, v3")
    Q = 8; KK = 16; VV = 80; LG = 144; O = 160; T = 180
    a.e(f"ds_read_b128 v[{Q}:{Q+3}], v3 offset:{14*PITCH}")
    a.e(f"ds_read_b128 v[{Q+4}:{Q+7}], v3 offset:{14*PITCH+16}")
    for w in range(8):
        a.e(f"ds_read_b128 v[{KK+8*w}:{KK+8*w+3}], v3 offset:{(14-2*w)*PITCH+128}")
        a.e(f"ds_read_b128 v[{KK+8*w+4}:{KK+8*w+7}], v3 offset:{(14-2*w)*PITCH+144}")
    a.e("s_lshl_b32 s22, s15, 7")
    a.e("v_add_u32 v4, s22, v2")
    for w in range(8):
        a.e(f"s_waitcnt lgkmcnt({min(15, 14-2*w)})")
        a.e(f"v_mov_b32 v{LG+w}, 0")
        for i in range(8):
            a.e(f"v_dot2_f32_bf16 v{LG+w}, v{Q+i}, v{KK+8*w+i}, v{LG+w}")
    for w in range(8):
        a.e(f"ds_read_b128 v[{VV+8*w}:{VV+8*w+3}], v3 offset:{(14-2*w)*PITCH+256}")
        a.e(f"ds_read_b128 v[{VV+8*w+4}:{VV+8*w+7}], v3 offset:{(14-2*w)*PITCH+272}")
    a.e("s_nop 3")
    for w in range(0, 8, 2):
        a.e(f"v_cvt_pk_bf16_f32 v{T+w//2}, v{LG+w}, v{LG+w+1}")
    for w in range(0, 8, 2):
        a.e(f"v_lshlrev_b32 v{LG+w}, 16, v{T+w//2}")
        a.e(f"v_and_b32 v{LG+w+1}, 0xffff0000, v{T+w//2}")
    for w in range(8):
        a.e(f"v_mul_f32 v{LG+w}, 0x3e800000, v{LG+w}")
    a.e("v_mov_b32 v5, 0xce6e6b28")
    for w in range(1, 8):
        a.e(f"v_cmp_gt_u32 vcc, {2*w}, v4")
        a.e("s_nop 1")
        a.e(f"v_cndmask_b32 v{LG+w}, v{LG+w}, v5, vcc")
    a.e(f"v_max3_f32 v6, v{LG}, v{LG+1}, v{LG+2}")
    a.e(f"v_max3_f32 v6, v6, v{LG+3}, v{LG+4}")
    a.e(f"v_max3_f32 v6, v6, v{LG+5}, v{LG+6}")
    a.e(f"v_max_f32 v6, v6, v{LG+7}")
    a.e("s_mov_b32 s22, 0x3fb8aa3b")
    for w in range(8):
        a.e(f"v_sub_f32 v{LG+w}, v{LG+w}, v6")
    for w in range(8):
        a.e(f"v_mul_f32 v{LG+w}, s22, v{LG+w}")
    for w in range(8):
        a.e(f"v_exp_f32 v{LG+w}, v{LG+w}")
    a.e("s_nop 0")
    a.e(f"v_add_f32 v6, v{LG}, v{LG+1}")
    for w in range(2, 8):
        a.e(f"v_add_f32 v6, v6, v{LG+w}")
    a.e("v_rcp_f32 v6, v6")
    a.e("s_nop 0")
    for w in range(8):
        a.e(f"v_mul_f32 v{LG+w}, v{LG+w}, v6")
    for w in range(0, 8, 2):
        a.e(f"v_cvt_pk_bf16_f32 v{T+w//2}, v{LG+w}, v{LG+w+1}")
    for w in range(0, 8, 2):
        a.e(f"v_lshlrev_b32 v{LG+w}, 16, v{T+w//2}")
        a.e(f"v_and_b32 v{LG+w+1}, 0xffff0000, v{T+w//2}")
    for w in range(8):
        a.e(f"s_waitcnt lgkmcnt({14-2*w})")
        for i in range(8):
            src = VV+8*w+i
            a.e(f"v_lshlrev_b32 v{T+8}, 16, v{src}")
            a.e(f"v_and_b32 v{T+9}, 0xffff0000, v{src}")
            if w == 0:
                a.e(f"v_mul_f32 v{O+2*i}, v{LG}, v{T+8}")
                a.e(f"v_mul_f32 v{O+2*i+1}, v{LG}, v{T+9}")
            else:
                a.e(f"v_fmac_f32 v{O+2*i}, v{LG+w}, v{T+8}")
                a.e(f"v_fmac_f32 v{O+2*i+1}, v{LG+w}, v{T+9}")
    for i in range(8):
        a.e(f"v_cvt_pk_bf16_f32 v{T+i}, v{O+2*i}, v{O+2*i+1}")
    ph_stamp(a, cfg, 3)
    if cfg.wo_at == 'post':
        a.e("s_cmp_ge_u32 s3, 4")
        a.e("s_cbranch_scc0 L_att_nowo")
        srd(a, 36, 48, 49, 512*512*2)
        for i in range(8): wo_issue(a, i)
        a.label("L_att_nowo")
    a.e("s_movk_i32 s22, 144")
    a.e("v_mul_lo_u32 v3, v2, s22")
    a.e("s_lshl_b32 s22, s18, 5")
    a.e(f"s_add_u32 s22, s22, {16*U}")
    a.e("v_add_u32 v3, s22, v3")
    a.e(f"ds_write_b128 v3, v[{T}:{T+3}]")
    a.e(f"ds_write_b128 v3, v[{T+4}:{T+7}] offset:16")
    a.e("v_lshrrev_b32 v2, 3, v1")
    a.e("s_lshl_b32 s22, s3, 4")
    a.e("v_add_u32 v2, s22, v2")
    a.e("v_and_b32 v3, 7, v1")
    a.e("s_movk_i32 s22, 144")
    a.e("v_mul_lo_u32 v4, v2, s22")
    a.e("v_lshl_add_u32 v4, v3, 4, v4")
    a.e(f"v_add_u32 v4, {16*U}, v4")
    a.e("s_lshl_b32 s22, s15, 7")
    a.e("v_add_u32 v2, s22, v2")
    a.e(f"s_movk_i32 s22, {OP}")
    a.e("v_mul_lo_u32 v2, v2, s22")
    a.e("v_lshl_add_u32 v2, v3, 4, v2")
    a.e("s_lshl_b32 s22, s16, 7")
    a.e(f"s_add_u32 s22, s22, {WS_O}")
    a.e(f"s_add_u32 s23, s22, {8*OP}")
    a.e("s_waitcnt lgkmcnt(0)")
    a.e("s_barrier")
    a.e("ds_read_b128 v[8:11], v4")
    a.e(f"ds_read_b128 v[12:15], v4 offset:{8*144}")
    a.e("s_waitcnt lgkmcnt(1)")
    a.e(f"buffer_store_dwordx4 v[8:11], v2, s[64:67], s22 offen{cfg.st_mode}")
    a.e("s_waitcnt lgkmcnt(0)")
    a.e(f"buffer_store_dwordx4 v[12:15], v2, s[64:67], s23 offen{cfg.st_mode}")
    a.e("s_lshl_b32 s60, s16, 3")
    a.e(f"s_mul_i32 s22, s15, {FSTR}")
    a.e("s_add_u32 s60, s60, s22")
    a.e(f"s_add_u32 s60, s60, {WS_FO}")
    a.e("s_mov_b32 s61, 0")
    nonce_get(a)
    ph_stamp(a, cfg, 4)
    a.e("s_barrier")
    a.e("s_cmp_ge_u32 s3, 4")
    a.e("s_cbranch_scc0 L_op_cons")
    a.e("s_lshl_b32 s54, s52, 1")
    a.e("s_cmp_lg_u32 s3, 4")
    a.e("s_cbranch_scc1 L_op_nofl")
    ph_rt(a, cfg, 34)
    flag_store(a, 60)
    a.label("L_op_nofl")
    if cfg.wo_at == 'late':
        srd(a, 36, 48, 49, 512*512*2)
        for i in range(8): wo_issue(a, i)
    a.e("s_cmp_lg_u32 s3, 4")
    a.e("s_cbranch_scc1 L_op_nopoll")
    flag_poll(a, PA+9, cfg)
    ph_rt(a, cfg, 35)
    a.label("L_op_nopoll")
    a.e("s_waitcnt vmcnt(0)")
    a.e("s_barrier")
    ph_stamp(a, cfg, 45)
    ops = []
    def o_issue(i):
        a.e(f"s_add_u32 s53, s17, {i}")
        a.e("s_and_b32 s53, s53, 7")
        a.e("s_lshl_b32 s53, s53, 7")
        a.e(f"s_add_u32 m0, s54, {(i%4)*2*U}")
        a.e("s_nop 0")
        for j in range(4):
            a.e(f"buffer_load_dwordx4 v{190+j}, s[64:67], s53 offen offset:{j*1024} lds")
    def do(tag):
        if tag[0] == "o": o_issue(tag[1]); ops.append((tag, 4))
        else: wd_issue(a, tag[1]); ops.append((tag, 2))
    def wait_for(tag):
        last = max(i for i, (t, c) in enumerate(ops) if t == tag)
        a.e(f"s_waitcnt vmcnt({sum(c for (t, c) in ops[last+1:])})")
    for i in range(4): do(("o", i))
    sched = {1: [("o",4), ("w",4)], 2: [("o",5), ("w",5)], 3: [("o",6), ("w",6)], 4: [("o",7), ("w",7)],
             5: [("w",8), ("w",0), ("w",1)], 6: [("w",9), ("w",2), ("w",3)], 7: [("w",10)]}
    for n in range(8):
        wait_for(("o", n))
        a.e("s_barrier")
        for tag in sched.get(n, []): do(tag)
        ph_stamp(a, cfg, 46+n)
    a.e("s_barrier")
    wd_issue(a, 11)
    a.e("s_waitcnt vmcnt(0)")
    ph_stamp(a, cfg, 44)
    a.e("s_barrier")
    a.e("s_branch L_y_loader")
    a.label("L_op_cons")
    pc_cons_setup(a)
    OA = 20
    OF = [52, 100]
    a.e("s_lshl_b32 s22, s19, 12")
    for ks in range(4):
        a.e(f"v_add_u32 v{150+ks}, s22, v{PC_B0+ks}")
    a.e(f"v_add_u32 v154, 0x10000, v{PC_T0}")
    a.e("v_and_b32 v2, 31, v1")
    a.e("s_lshl_b32 s22, s15, 7")
    a.e("s_lshl_b32 s23, s19, 6")
    a.e("s_add_u32 s22, s22, s23")
    a.e("v_add_u32 v2, s22, v2")
    a.e("v_lshlrev_b32 v2, 11, v2")
    a.e("v_lshrrev_b32 v3, 5, v1")
    a.e("v_lshl_add_u32 v2, v3, 4, v2")
    a.e("s_lshl_b32 s22, s16, 7")
    a.e("s_lshl_b32 s23, s18, 6")
    a.e("s_add_u32 s22, s22, s23")
    a.e("v_add_u32 v155, s22, v2")
    a.e("v_add_u32 v156, 0x10000, v155")
    srd(a, 24, 50, 51, 2048*1024*2)
    def oreads(n):
        F = OF[n % 2]; r = []
        for ks in range(4):
            for u in range(2):
                r.append(f"ds_read_b64_tr_b16 v[{F+4*ks+2*u}:{F+4*ks+2*u+1}], v154 offset:{n*U + (ks*16+u*4)*128}")
            for jn in range(2):
                d = F + 16 + 4*(ks*2+jn)
                r.append(f"ds_read_b128 v[{d}:{d+3}], v{150+ks} offset:{(n%4)*2*U + jn*4096}")
        return r
    def omf(n):
        F = OF[n % 2]; m = []
        for ks in range(4):
            for jn in range(2):
                acc = OA + 16*jn; b = F + 16 + 4*(ks*2+jn)
                c = "0" if (n == 0 and ks == 0) else f"v[{acc}:{acc+15}]"
                m.append(f"v_mfma_f32_32x32x16_bf16 v[{acc}:{acc+15}], v[{F+4*ks}:{F+4*ks+3}], v[{b}:{b+3}], {c}")
        return m
    a.e("s_barrier")
    a.e("s_barrier")
    for x in oreads(0): a.e(x)
    ph_stamp(a, cfg, 5)
    for n in range(8):
        a.e("s_waitcnt lgkmcnt(0)")
        a.e("s_barrier")
        for x in mixd(omf(n), oreads(n+1) if n < 7 else [], 3): a.e(x)
    a.e("s_nop 7"); a.e("s_nop 7")
    for jn in range(2):
        pack_tile32(a, OA+16*jn, 52+8*jn)
        a.e("s_nop 1")
        for g in range(2):
            a.e(f"buffer_store_dwordx4 v[{52+8*jn+4*g}:{52+8*jn+4*g+3}], v{155+jn}, s[24:27], 0 offen offset:{1024 + g*32}{cfg.out_st}")
    ph_stamp(a, cfg, 6)
    a.e("s_barrier")
    a.e("s_branch L_y_cons")

PC_A0, PC_A1 = 212, 216
PC_B0, PC_B2 = 220, 224
PC_T0, PC_T2 = 236, 237
PC_ST = 238
def pc_cons_setup(a):
    a.e("s_and_b32 s18, s3, 1")
    a.e("s_lshr_b32 s19, s3, 1")
    a.e("v_and_b32 v2, 31, v1")
    a.e("v_bfe_u32 v3, v2, 1, 3")
    a.e("v_lshrrev_b32 v5, 5, v1")
    a.e("v_xor_b32 v3, v3, v5")
    a.e("v_lshlrev_b32 v4, 7, v2")
    a.e("s_lshl_b32 s22, s18, 12")
    a.e("s_lshl_b32 s23, s19, 12")
    for ks in range(4):
        a.e(f"v_xor_b32 v6, {ks*2}, v3")
        a.e("v_lshl_add_u32 v6, v6, 4, v4")
        a.e(f"v_add_u32 v{PC_A0+ks}, s22, v6")
        a.e(f"v_add_u32 v{PC_B0+ks}, s23, v6")
        a.e(f"v_add_u32 v{PC_A1+ks}, 0x10000, v{PC_A0+ks}")
        a.e(f"v_add_u32 v{PC_B2+ks}, 0x20000, v{PC_B0+ks}")
    a.e("s_lshl_b32 s22, s72, 6")
    a.e("s_lshl_b32 s23, s19, 5")
    a.e("s_add_u32 s22, s22, s23")
    a.e("v_add_u32 v6, s22, v2")
    a.e("v_lshlrev_b32 v6, 11, v6")
    a.e("v_lshl_add_u32 v6, v5, 4, v6")
    a.e("s_lshl_b32 s22, s73, 7")
    a.e("s_lshl_b32 s23, s18, 6")
    a.e("s_add_u32 s22, s22, s23")
    a.e(f"v_add_u32 v{PC_ST}, s22, v6")
    a.e("v_bfe_u32 v2, v1, 2, 2")
    a.e("v_and_b32 v3, 3, v1")
    a.e("v_bfe_u32 v4, v1, 4, 1")
    a.e("v_lshlrev_b32 v6, 7, v2")
    a.e("v_lshl_add_u32 v6, v5, 10, v6")
    a.e("v_lshl_add_u32 v6, v4, 5, v6")
    a.e("v_lshl_add_u32 v6, v3, 3, v6")
    a.e("v_lshrrev_b32 v7, 1, v2")
    a.e("v_xor_b32 v7, s18, v7")
    a.e(f"v_lshl_add_u32 v{PC_T0}, v7, 6, v6")
    a.e(f"v_add_u32 v{PC_T2}, 0x20000, v{PC_T0}")

def mixd(m, r, per):
    out = []; r = list(r)
    for x in m:
        out.append(x)
        out += r[:per]; r = r[per:]
    return out + r

def phase_c(a, cfg):
    a.label("L_y_loader")
    a.e("s_add_u32 s54, s52, 8192")
    def issue(y):
        slot = RING[y % 4]
        a.e(f"s_add_u32 s53, s88, {y}")
        a.e("s_and_b32 s53, s53, 7")
        a.e("s_lshl_b32 s53, s53, 8")
        a.e("s_add_u32 s55, s53, 128")
        a.e(f"s_add_u32 m0, s52, {slot}")
        a.e("s_nop 0")
        a.e(f"buffer_load_dwordx4 v{PA+2}, s[64:67], s53 offen lds")
        a.e(f"buffer_load_dwordx4 v{PA+3}, s[64:67], s53 offen offset:1024 lds")
        a.e(f"s_add_u32 m0, s54, {slot}")
        a.e("s_nop 0")
        a.e(f"buffer_load_dwordx4 v{PA+2}, s[64:67], s55 offen lds")
        a.e(f"buffer_load_dwordx4 v{PA+3}, s[64:67], s55 offen offset:1024 lds")
    a.e("s_barrier")
    for pos in (12, 13, 14, 15): wd_issue(a, pos)
    ph_stamp(a, cfg, 40)
    a.e("s_cmp_lg_u32 s3, 4")
    a.e("s_cbranch_scc1 L_y_nopoll")
    ph_rt(a, cfg, 38)
    flag_poll(a, PA+8, cfg)
    ph_rt(a, cfg, 37)
    a.label("L_y_nopoll")
    a.e("s_waitcnt vmcnt(0)")
    a.e("s_barrier")
    ph_stamp(a, cfg, 41)
    for y in range(4): issue(y)
    issued = 4
    for y in range(8):
        a.e(f"s_waitcnt vmcnt({4*(issued-1-y)})")
        a.e("s_barrier")
        if y >= 1 and issued < 8:
            issue(issued); issued += 1
        if y < 6: ph_stamp(a, cfg, 54+y)
    ph_stamp(a, cfg, 42)
    a.e("s_branch L_pc_end")
    a.label("L_y_cons")
    ACC1 = 20
    FS = [52, 84]
    RA = 116
    def rdB(dst, ks, addr):
        base = PC_B0 if addr < 65536 else PC_B2
        off = addr if addr < 65536 else addr - 131072
        return f"ds_read_b128 v[{dst}:{dst+3}], v{base+ks} offset:{off}"
    def rdA(pos):
        addr = WD_UNIT[pos]*U
        base = PC_A0 if addr < 65536 else PC_A1
        off = addr % 65536
        dst = RA + (pos % 6)*16
        return [f"ds_read_b128 v[{dst+4*ks}:{dst+4*ks+3}], v{base+ks} offset:{off}" for ks in range(4)]
    def reads(y):
        F = FS[y % 2]; slot = RING[y % 4]
        return [rdB(F+4*(c*4+ks), ks, slot + c*U) for c in range(2) for ks in range(4)]
    def mf(y):
        F = FS[y % 2]; m = []
        for c_ in range(2):
            ra = RA + ((2*y+c_) % 6)*16
            for ks in range(4):
                c = "0" if (y == 0 and c_ == 0 and ks == 0) else f"v[{ACC1}:{ACC1+15}]"
                b = F + 4*(c_*4+ks)
                m.append(f"v_mfma_f32_32x32x16_bf16 v[{ACC1}:{ACC1+15}], v[{ra+4*ks}:{ra+4*ks+3}], v[{b}:{b+3}], {c}")
        return m
    a.e("s_nop 1")
    for pos in range(6):
        for x in rdA(pos): a.e(x)
    srd(a, 24, 50, 51, 2048*1024*2)
    a.e("s_waitcnt lgkmcnt(0)")
    a.e("s_barrier")
    a.e("s_barrier")
    a.e("s_barrier")
    ph_stamp(a, cfg, 7)
    for x in reads(0): a.e(x)
    pendA = 0
    for y in range(8):
        a.e(f"s_waitcnt lgkmcnt({pendA})")
        m = mf(y)
        if y < 7:
            a.e("s_barrier")
            for x in mixd(m, reads(y+1), 3): a.e(x)
            if y + 3 < 8:
                for x in rdA(2*(y+3)) + rdA(2*(y+3)+1): a.e(x)
                pendA = 8
            else:
                pendA = 0
        else:
            for x in m: a.e(x)
    ph_stamp(a, cfg, 8)
    a.e("s_nop 7"); a.e("s_nop 7")
    pack_tile32(a, ACC1, 8)
    a.e("s_nop 1")
    for g in range(2):
        a.e(f"buffer_store_dwordx4 v[{8+4*g}:{8+4*g+3}], v{PC_ST}, s[24:27], 0 offen offset:{g*32}{cfg.y_st}")
    a.label("L_pc_end")

def gen(cfg):
    a = Asm()
    K = NAME + "_kernel"
    a.raw(HDR.rstrip("\n"))
    a.raw(f"; @launch grid=(256,1,1) block=(512,1,1) lds=163840")
    a.raw('.amdgcn_target "amdgcn-amd-amdhsa--gfx950"')
    a.raw(".text")
    a.raw(f".globl {K}"); a.raw(".p2align 8"); a.raw(f".type {K},@function"); a.label(K)
    a.e("s_cmp_ge_u32 s2, 256")
    a.e("s_cbranch_scc1 L_exit")
    a.e("s_load_dwordx2 s[4:5], s[0:1], 0")
    a.e("s_load_dwordx2 s[6:7], s[0:1], 8")
    a.e("s_load_dwordx2 s[8:9], s[0:1], 16")
    a.e("s_load_dwordx2 s[10:11], s[0:1], 80")
    a.e("s_load_dwordx4 s[44:47], s[0:1], 24")
    a.e("s_load_dwordx4 s[48:51], s[0:1], 56")
    a.e("s_load_dwordx2 s[62:63], s[0:1], 72")
    wave_ids(a)
    ph_init(a, cfg)
    a.e("s_and_b32 s72, s2, 7")
    a.e("s_lshl_b32 s72, s72, 2")
    a.e("s_lshr_b32 s73, s2, 6")
    a.e("s_add_u32 s72, s72, s73")
    a.e("s_bfe_u32 s73, s2, 0x30003")
    a.e("s_bfe_u32 s88, s2, 0x10006")
    a.e("s_lshl_b32 s88, s88, 2")
    a.e("s_lshr_b32 s89, s2, 7")
    a.e("s_lshl_b32 s89, s89, 1")
    a.e("s_add_u32 s88, s88, s89")
    a.e("s_add_u32 s88, s88, s73")
    a.e("s_and_b32 s88, s88, 7")
    if not cfg.yrot_stag: a.e("s_mov_b32 s88, s73")
    a.e("s_mov_b32 s58, 524288")
    a.e("s_mov_b32 s59, 0x00020000")
    a.e("s_cmp_ge_u32 s2, 128")
    a.e("s_cbranch_scc1 L_partb")
    k_big(a, cfg)
    a.label("L_partb")
    k_attn(a, cfg)
    phase_c(a, cfg)
    ph_dump(a, cfg, [(0, 0), (4, 131072), (7, 65536)])
    a.label("L_exit")
    a.e("s_endpgm")
    a.raw('.section .rodata,"a"')
    for l in kdesc(K, 256): a.raw(l)
    return a.text()

def mk(name, cdp=2048, op=1024, **kw):
    global CDP, OP
    CDP, OP = cdp, op
    cfg = Cfg()
    for k, v in kw.items(): setattr(cfg, k, v)
    open(name, "w").write(gen(cfg))

if __name__ == "__main__":
    w=lambda b:("w",b); x=lambda b:("x",b)
    E1 = {0: [w(2)], 1: [x(2)], 2: [w(3)], 3: [x(3)], 4: [w(4)], 5: [x(4)]}
    mk("v10.s")
    mk("q_a.s", ep_overlap=False)
    mk("q_b.s")
    mk("q_c.s", pb_delay=True)
    mk("q_d.s", pb_delay=True, pf_early={-1: [x(0), w(1)], **E1})
    mk("q_e.s", pb_delay=True, pf_early={-1: [x(0), w(1), x(1)], **E1})
    mk("q_f.s", code_pf=True)
    mk("e_base.s", phases=True)
    mk("e_delay.s", phases=True, pb_delay=True)
    mk("e_delay2.s", phases=True, pb_delay=True, pf_early={-1: [x(0), w(1), x(1)], **E1})
```

```python
import sys
from asmlib import *
NAME = "concat_heads__spectral_fnet__sliding_local_dilated__prompt"
HDR = open("cdna_kernels/%s.s.ref" % NAME).read().split("; Override launch")[0]

WS_CD = 0
WS_O = 5 << 20
CDP = 2048
OP = 1024
FSTR = 4352
WS_FC = 8 << 20
WS_FO = WS_FC + 16*FSTR
WS_BYTES = (8 << 20) + 32*FSTR

U = 8192
WD_UNIT = [0,1,2,3, 8,9,10,11, 12,13,14,15, 0,1,2,3]
RING = [4*U, 6*U, 16*U, 18*U]

class Cfg:
    S1 = 5
    SB = 3
    phases = False
    look = 1
    pf_early = {-1: [("x",0)], 0: [("w",2)], 1: [("x",2)], 2: [("w",3)], 3: [("x",3)], 4: [("w",4)], 5: [("x",4)]}
    pf_late = [("w",5),("x",5),("w",6),("x",6),("w",7),("x",7)]
    pf_nt_upto = -1
    pf_weights = False
    flag_at = 0
    poll_sleep = 2
    wo_at = 'late'
    nt_xb0 = False
    code_pf = False
    pb_delay = False
    ep_overlap = True
    ytweak = True
    prio = 0
    fake16 = False
    xrot = 0
    nbx = 0
    out_st = ''
    y_st = ''
    yrot_stag = True
    ld_sc1 = False
    wd_early = False
    st_mode = ' sc1'
    nt_lead_upto = -1

def wave_ids(a):
    a.e("v_lshrrev_b32 v1, 6, v0")
    a.e("s_nop 0")
    a.e("v_readfirstlane_b32 s3, v1")
    a.e("v_and_b32 v1, 63, v0")

def ph_init(a, cfg):
    if not cfg.phases: return
    a.e("v_mov_b32 v240, 0")
    a.e("s_memrealtime s[80:81]")
    a.e("s_memtime s[84:85]")
    a.e("s_waitcnt lgkmcnt(0)")
    a.e("v_writelane_b32 v240, s80, 60")
    a.e("v_writelane_b32 v240, s84, 61")
    a.e("s_mov_b32 s82, 0")
def ph_stamp(a, cfg, idx):
    if not cfg.phases: return
    a.e("s_memtime s[80:81]")
    a.e("s_waitcnt lgkmcnt(0)")
    a.e(f"v_writelane_b32 v240, s80, {idx}")
def ph_rt(a, cfg, idx):
    if not cfg.phases: return
    a.e("s_memrealtime s[80:81]")
    a.e("s_waitcnt lgkmcnt(0)")
    a.e(f"v_writelane_b32 v240, s80, {idx}")
def ph_stamp_seq(a, cfg):
    if not cfg.phases: return
    a.e("s_memtime s[80:81]")
    a.e("s_waitcnt lgkmcnt(0)")
    a.e("v_mov_b32 v242, s80")
    a.e("v_cmp_eq_u32 vcc, s82, v1")
    a.e("s_nop 1")
    a.e("v_cndmask_b32 v240, v240, v242, vcc")
    a.e("s_add_u32 s82, s82, 1")
def ph_dump(a, cfg, waves_offs):
    if not cfg.phases: return
    for wave, off in waves_offs:
        L = a.newlabel("L_pd")
        a.e(f"s_cmp_lg_u32 s3, {wave}")
        a.e(f"s_cbranch_scc1 {L}")
        a.e("s_waitcnt vmcnt(0)")
        a.e("s_memrealtime s[80:81]")
        a.e("s_memtime s[84:85]")
        a.e("s_load_dwordx2 s[86:87], s[0:1], 80")
        a.e("s_waitcnt lgkmcnt(0)")
        a.e("v_writelane_b32 v240, s80, 62")
        a.e("v_writelane_b32 v240, s84, 63")
        a.e(f"s_add_u32 s92, s86, {0x3000000 + off}")
        a.e("s_addc_u32 s93, s87, 0")
        a.e("s_mov_b32 s94, 0x100000")
        a.e("s_mov_b32 s95, 0x00020000")
        a.e("s_lshl_b32 s90, s2, 8")
        a.e("v_lshl_add_u32 v241, v1, 2, s90")
        a.e("buffer_store_dword v240, v241, s[92:95], 0 offen")
        a.label(L)

def pack_tile32(a, acc, tmp, xorreg=None):
    for g in range(4):
        a.e(f"v_cvt_pk_bf16_f32 v{tmp+2*g}, v{acc+4*g}, v{acc+4*g+1}")
        a.e(f"v_cvt_pk_bf16_f32 v{tmp+2*g+1}, v{acc+4*g+2}, v{acc+4*g+3}")
    if xorreg is not None:
        for i in range(8):
            a.e(f"v_xor_b32 v{tmp+i}, s{xorreg}, v{tmp+i}")
    a.e("s_nop 1")
    for g in (0, 2):
        a.e(f"v_permlane32_swap_b32 v{tmp+2*g}, v{tmp+2*g+2}")
        a.e(f"v_permlane32_swap_b32 v{tmp+2*g+1}, v{tmp+2*g+3}")

NONCE_V = 232

def nonce_issue(a):
    a.e("v_mov_b32 v234, 0")
    a.e(f"buffer_load_dwordx2 v[{NONCE_V}:{NONCE_V+1}], v234, s[68:71], 0 offen sc1")
def nonce_get(a):
    L = a.newlabel("L_nn"); D = a.newlabel("L_nd")
    a.label(L)
    a.e("s_waitcnt vmcnt(0)")
    a.e(f"v_readfirstlane_b32 s74, v{NONCE_V}")
    a.e(f"v_readfirstlane_b32 s75, v{NONCE_V+1}")
    a.e("s_nop 0")
    a.e("s_cmp_lg_u32 s74, 0")
    a.e(f"s_cbranch_scc1 {D}")
    a.e(f"buffer_load_dwordx2 v[{NONCE_V}:{NONCE_V+1}], v234, s[68:71], 0 offen sc1")
    a.e(f"s_branch {L}")
    a.label(D)
def flag_store(a, soff_reg):
    a.e("v_mov_b32 v230, s74")
    a.e("v_mov_b32 v231, s75")
    a.e("v_mov_b32 v234, 0")
    a.e("s_mov_b64 exec, 1")
    a.e(f"buffer_store_dwordx2 v[230:231], v234, s[64:67], s{soff_reg} offen sc1")
    a.e("s_mov_b64 exec, -1")
def flag_poll(a, voff, cfg):
    L = a.newlabel("L_poll"); L0 = a.newlabel("L_poll0")
    a.e(f"s_branch {L0}")
    a.label(L)
    if cfg.poll_sleep: a.e(f"s_sleep {cfg.poll_sleep}")
    a.label(L0)
    a.e(f"buffer_load_dwordx2 v[228:229], v{voff}, s[64:67], 0 offen sc1")
    a.e("s_waitcnt vmcnt(0)")
    a.e("v_cmp_eq_u32 s[76:77], s74, v228")
    a.e("v_cmp_eq_u32 s[78:79], s75, v229")
    a.e("s_nop 1")
    a.e("s_and_b64 s[76:77], s[76:77], s[78:79]")
    a.e("s_cmp_eq_u64 s[76:77], -1")
    a.e(f"s_cbranch_scc0 {L}")

PA = 200
def pc_loader_setup(a):
    a.e("s_sub_u32 s18, s3, 4")
    a.e("v_lshrrev_b32 v2, 3, v1")
    a.e("v_and_b32 v3, 7, v1")
    a.e("v_lshrrev_b32 v4, 4, v1")
    a.e("v_xor_b32 v3, v3, v4")
    a.e("v_xor_b32 v5, 4, v3")
    a.e("s_lshl_b32 s19, s18, 4")
    a.e("v_add_u32 v2, s19, v2")
    a.e("s_lshl_b32 s19, s73, 6")
    a.e("v_add_u32 v6, s19, v2")
    a.e("v_lshlrev_b32 v6, 10, v6")
    a.e(f"v_lshl_add_u32 v{PA}, v3, 4, v6")
    a.e(f"v_lshl_add_u32 v{PA+1}, v5, 4, v6")
    a.e(f"v_add_u32 v{PA+1}, {8*1024-1024}, v{PA+1}")
    a.e("s_lshl_b32 s19, s72, 6")
    a.e("v_add_u32 v6, s19, v2")
    a.e(f"s_movk_i32 s19, {CDP}")
    a.e("v_mul_lo_u32 v7, v6, s19")
    a.e(f"v_lshl_add_u32 v{PA+2}, v3, 4, v7")
    a.e(f"v_lshl_add_u32 v{PA+3}, v5, 4, v7")
    a.e(f"v_add_u32 v{PA+3}, {8*CDP-1024}, v{PA+3}")
    a.e("s_lshr_b32 s19, s72, 1")
    a.e(f"s_mul_i32 s22, s19, {FSTR}")
    a.e(f"s_add_u32 s22, s22, {WS_FC}")
    a.e("v_and_b32 v3, 31, v1")
    a.e(f"v_lshl_add_u32 v{PA+8}, v3, 3, s22")
    a.e("s_lshl_b32 s52, s18, 11")

def op_loader_setup(a):
    a.e("s_sub_u32 s18, s3, 4")
    a.e("v_lshrrev_b32 v2, 3, v1")
    a.e("v_and_b32 v3, 7, v1")
    a.e("v_lshrrev_b32 v4, 4, v1")
    a.e("v_xor_b32 v3, v3, v4")
    a.e("v_xor_b32 v5, 4, v3")
    a.e("s_lshl_b32 s19, s18, 5")
    a.e("s_lshl_b32 s22, s15, 7")
    a.e("s_add_u32 s19, s19, s22")
    a.e("v_add_u32 v6, s19, v2")
    a.e(f"s_movk_i32 s19, {OP}")
    a.e("v_mul_lo_u32 v6, v6, s19")
    a.e(f"v_add_u32 v6, {WS_O}, v6")
    a.e("v_lshl_add_u32 v7, v5, 4, v6")
    a.e("v_lshl_add_u32 v6, v3, 4, v6")
    for j in range(4):
        a.e(f"v_add_u32 v{190+j}, {j*8*OP - j*1024}, v{6 if j%2==0 else 7}")
    a.e("s_lshl_b32 s19, s18, 4")
    a.e("v_add_u32 v2, s19, v2")
    a.e("v_and_b32 v3, 7, v1")
    a.e("v_bfe_u32 v4, v1, 4, 1")
    a.e("v_lshlrev_b32 v4, 2, v4")
    a.e("v_xor_b32 v3, v3, v4")
    a.e("v_lshlrev_b32 v6, 10, v2")
    a.e("v_lshl_add_u32 v6, v3, 4, v6")
    a.e("s_lshl_b32 s19, s16, 7")
    a.e(f"v_add_u32 v{PA+6}, s19, v6")
    a.e(f"v_add_u32 v{PA+7}, {8*1024-1024}, v{PA+6}")
    a.e(f"s_mul_i32 s22, s15, {FSTR}")
    a.e(f"s_add_u32 s22, s22, {WS_FO}")
    a.e("v_and_b32 v3, 7, v1")
    a.e(f"v_lshl_add_u32 v{PA+9}, v3, 3, s22")
    srd(a, 36, 48, 49, 512*512*2)

def wo_issue(a, i):
    a.e(f"s_add_u32 s53, s17, {i}")
    a.e("s_and_b32 s53, s53, 7")
    a.e("s_lshl_b32 s53, s53, 16")
    a.e(f"s_add_u32 m0, s52, {(8+i)*U}")
    a.e("s_nop 0")
    a.e(f"buffer_load_dwordx4 v{PA+6}, s[36:39], s53 offen lds")
    a.e(f"buffer_load_dwordx4 v{PA+7}, s[36:39], s53 offen offset:1024 lds")

def wd_issue(a, pos):
    a.e("s_lshl_b32 s53, s88, 1")
    a.e(f"s_add_u32 s53, s53, {pos}")
    a.e("s_bitcmp1_b32 s53, 3")
    a.e("s_cselect_b32 s56, s46, s44")
    a.e("s_cselect_b32 s57, s47, s45")
    a.e("s_and_b32 s53, s53, 7")
    a.e("s_lshl_b32 s53, s53, 7")
    a.e(f"s_add_u32 m0, s52, {WD_UNIT[pos]*U}")
    a.e("s_nop 0")
    a.e(f"buffer_load_dwordx4 v{PA}, s[56:59], s53 offen lds")
    a.e(f"buffer_load_dwordx4 v{PA+1}, s[56:59], s53 offen offset:1024 lds")

def k_big(a, cfg):
    S = cfg.S1; STG = 32768; NST = 32
    assert S == 5
    a.c("---- big GEMM role: xcd=s2&7, i=s2>>3 (0..15)")
    a.e("s_and_b32 s12, s2, 7")
    a.e("s_lshr_b32 s13, s2, 3")
    a.e("s_lshr_b32 s14, s13, 3")
    a.e("s_bfe_u32 s15, s13, 0x10002")
    a.e("s_lshl_b32 s12, s12, 1")
    a.e("s_add_u32 s15, s15, s12")
    a.e("s_and_b32 s16, s13, 3")
    if cfg.nbx: a.e(f"s_xor_b32 s16, s16, {cfg.nbx}")
    a.e("s_lshr_b32 s17, s13, 2")
    a.e("s_add_u32 s17, s17, s16")
    a.e("s_and_b32 s17, s17, 3")
    a.e("s_cmp_ge_u32 s3, 4")
    a.e("s_cbranch_scc0 L_big_cons")
    a.e("s_sub_u32 s18, s3, 4")
    a.e("v_lshrrev_b32 v2, 4, v1")
    a.e("v_and_b32 v3, 15, v1")
    a.e("v_lshlrev_b32 v4, 2, v2")
    a.e("v_xor_b32 v3, v3, v4")
    a.e("s_lshl_b32 s19, s18, 4")
    a.e("v_add_u32 v4, s19, v2")
    a.e("v_lshlrev_b32 v4, 10, v4")
    a.e("v_lshl_add_u32 v4, v3, 4, v4")
    a.e("s_lshl_b32 s19, s16, 8")
    a.e("v_add_u32 v4, s19, v4")
    for j in range(4):
        a.e(f"v_add_u32 v{10+j}, {j*4096 - j*1024}, v4")
    a.e("v_lshrrev_b32 v4, 3, v1")
    a.e("v_and_b32 v3, 7, v1")
    a.e("v_xor_b32 v3, v3, v2")
    a.e("v_xor_b32 v5, 4, v3")
    a.e("s_lshl_b32 s19, s18, 5")
    a.e("s_lshl_b32 s22, s15, 7")
    a.e("s_add_u32 s19, s19, s22")
    a.e("v_add_u32 v4, s19, v4")
    a.e("v_lshlrev_b32 v4, 12, v4")
    a.e("v_lshl_add_u32 v6, v3, 4, v4")
    a.e("v_lshl_add_u32 v7, v5, 4, v4")
    for j in range(4):
        a.e(f"v_add_u32 v{14+j}, {j*8*4096 - j*1024}, v{6 if j%2==0 else 7}")
    L = cfg.look; NF = 4*(8-L)
    a.e(f"v_add_u32 v20, {-L}, v1")
    a.e("v_and_b32 v21, 3, v20")
    a.e("v_and_b32 v22, -4, v20")
    a.e("v_cmp_lt_u32 vcc, s17, v21")
    a.e("s_nop 1")
    a.e("v_subbrev_co_u32 v25, vcc, 0, v21, vcc")
    a.e(f"v_add_u32 v26, {-NF}, v20")
    a.e("v_mul_u32_u24 v27, 11, v26")
    a.e("v_lshrrev_b32 v27, 5, v27")
    a.e("v_mul_u32_u24 v28, 3, v27")
    a.e("v_sub_u32 v28, v26, v28")
    a.e(f"v_lshl_add_u32 v27, v27, 2, {NF}")
    a.e(f"v_cmp_le_u32 vcc, {NF+L}, v1")
    a.e("v_mov_b32 v29, -1")
    a.e("s_nop 0")
    a.e("v_cndmask_b32 v22, v22, v27, vcc")
    a.e("v_cndmask_b32 v25, v25, v28, vcc")
    a.e("v_cndmask_b32 v21, v21, v29, vcc")
    a.e("s_add_u32 s36, s17, 1")
    a.e("v_add_u32 v23, s36, v25")
    a.e("v_and_b32 v23, 3, v23")
    a.e("v_add_u32 v23, v22, v23")
    a.e(f"s_add_u32 s36, s17, {4*L + 32}")
    a.e("v_add_u32 v24, s36, v22")
    a.e("v_cmp_eq_u32 vcc, s17, v21")
    a.e("s_nop 1")
    a.e("v_cndmask_b32 v23, v23, v24, vcc")
    a.e("s_add_u32 s36, s17, 32")
    a.e("v_lshl_add_u32 v24, v1, 2, s36")
    a.e(f"v_cmp_gt_u32 vcc, {L}, v1")
    a.e("s_nop 1")
    a.e("v_cndmask_b32 v23, v23, v24, vcc")
    if cfg.nt_lead_upto >= 0:
        a.e("v_and_b32 v24, 31, v23")
        a.e(f"v_cmp_lt_u32 vcc, {32 + 4*cfg.nt_lead_upto + 3}, v23")
        a.e("s_nop 1")
        a.e("v_cndmask_b32 v23, v23, v24, vcc")
    a.e("s_mov_b32 s36, 0")
    a.e(f"s_mul_i32 s39, s12, {2*cfg.xrot}")
    a.e("s_lshl_b32 s34, s18, 12")
    a.e("s_add_u32 s35, s34, 16384")
    a.e("s_mov_b32 s20, 0")
    def nextk():
        a.e("v_readlane_b32 s37, v23, s36")
        a.e("s_add_u32 s36, s36, 1")
        a.e("s_and_b32 s36, s36, 31")
        a.e("s_add_u32 s38, s37, s39")
        a.e("s_and_b32 s38, s38, 31")
        a.e("s_lshl_b32 s32, s38, 16")
        a.e("s_lshl_b32 s33, s38, 7")
    nextk()
    a.e("s_waitcnt lgkmcnt(0)")
    srd(a, 24, 4, 5, 2048*512*2)
    a.e("s_cmp_eq_u32 s14, 0")
    a.e("s_cselect_b32 s28, s6, s8")
    a.e("s_cselect_b32 s29, s7, s9")
    a.e(f"s_mov_b32 s30, {2048*2048*2}")
    a.e("s_mov_b32 s31, 0x00020000")
    def issue():
        a.e("s_add_u32 m0, s20, s35")
        if cfg.nt_lead_upto >= 0:
            La = a.newlabel("L_nt"); Lb = a.newlabel("L_ntd")
            a.e("s_bitcmp1_b32 s37, 5")
            a.e(f"s_cbranch_scc1 {La}")
            for j in range(4):
                a.e(f"buffer_load_dwordx4 v{14+j}, s[28:31], s33 offen offset:{j*1024} lds")
            a.e(f"s_branch {Lb}")
            a.label(La)
            for j in range(4):
                a.e(f"buffer_load_dwordx4 v{14+j}, s[28:31], s33 offen offset:{j*1024} nt lds")
            a.label(Lb)
        else:
            a.e("s_nop 0")
            for j in range(4):
                a.e(f"buffer_load_dwordx4 v{14+j}, s[28:31], s33 offen offset:{j*1024} lds")
        a.e("s_add_u32 m0, s20, s34")
        a.e("s_nop 0")
        for j in range(4):
            a.e(f"buffer_load_dwordx4 v{10+j}, s[24:27], s32 offen offset:{j*1024} lds")
    def advance():
        nextk()
        a.e(f"s_add_u32 s20, s20, {STG}")
        a.e(f"s_cmp_ge_u32 s20, {STG*S}")
        a.e("s_cselect_b32 s20, 0, s20")
    P = S - 1
    ph_stamp(a, cfg, 32)
    for i in range(P):
        issue(); advance()
        if i == 0: ph_stamp(a, cfg, 33)
    common_srds(a)
    pc_loader_setup(a)
    a.e(f"s_mov_b32 s21, {NST-P}")
    a.label("L_big_ld")
    a.e(f"s_waitcnt vmcnt({8*(P-1)})")
    a.e("s_barrier")
    issue(); advance()
    ph_stamp_seq(a, cfg)
    a.e("s_sub_u32 s21, s21, 1")
    a.e("s_cmp_lg_u32 s21, 0")
    a.e("s_cbranch_scc1 L_big_ld")
    a.e("s_waitcnt vmcnt(24)")
    a.e("s_barrier")
    for pos in (4,5,6,7): wd_issue(a, pos)
    nonce_issue(a)
    ph_stamp_seq(a, cfg)
    a.e("s_waitcnt vmcnt(25)")
    a.e("s_barrier")
    ph_stamp_seq(a, cfg)
    a.e("s_waitcnt vmcnt(17)")
    a.e("s_barrier")
    ph_stamp_seq(a, cfg)
    a.e("s_waitcnt vmcnt(9)")
    a.e("s_barrier")
    ph_stamp_seq(a, cfg)
    for pos in (8,9,10,11,0,1,2,3): wd_issue(a, pos)
    nonce_get(a)
    ph_stamp(a, cfg, 44)
    a.e("s_barrier")
    a.e("s_branch L_y_loader")
    a.label("L_big_cons")
    if cfg.prio: a.e(f"s_setprio {cfg.prio}")
    if cfg.code_pf:
        a.e("s_cmp_ge_u32 s2, 16")
        a.e("s_cbranch_scc1 L_nocpf")
        a.e("s_cmp_eq_u32 s3, 0")
        a.e("s_cbranch_scc1 L_nocpf")
        a.e("s_getpc_b64 s[22:23]")
        a.label("L_pcref")
        a.e(f"s_sub_u32 s22, s22, L_pcref-{NAME}_kernel")
        a.e("s_subb_u32 s23, s23, 0")
        a.e("s_sub_u32 s18, s3, 1")
        a.e("s_lshl_b32 s18, s18, 13")
        a.e("v_lshl_add_u32 v2, v1, 7, s18")
        a.e(f"v_min_u32 v2, L_exit-{NAME}_kernel, v2")
        a.e("global_load_dword v239, v2, s[22:23]")
        a.label("L_nocpf")
    pc_cons_setup(a)
    ACC = 64
    BA, BB = 10, 12
    CA, CB = 16, 18
    a.e("s_and_b32 s18, s3, 1")
    a.e("s_lshr_b32 s19, s3, 1")
    a.e("v_bfe_u32 v2, v1, 2, 2")
    a.e("v_and_b32 v3, 3, v1")
    a.e("v_bfe_u32 v4, v1, 4, 1")
    a.e("v_lshrrev_b32 v5, 5, v1")
    a.e("v_lshlrev_b32 v6, 8, v2")
    a.e("v_lshl_add_u32 v6, v5, 11, v6")
    a.e("v_lshl_add_u32 v6, v4, 5, v6")
    a.e("v_lshl_add_u32 v6, v3, 3, v6")
    a.e("s_lshl_b32 s22, s18, 1")
    for j in range(2):
        a.e(f"s_add_u32 s23, s22, {j}")
        a.e("v_xor_b32 v7, s23, v2")
        a.e(f"v_lshl_add_u32 v{BA+j}, v7, 6, v6")
    a.e("v_and_b32 v2, 31, v1")
    a.e("s_lshl_b32 s22, s19, 6")
    a.e("v_add_u32 v2, s22, v2")
    a.e("v_bfe_u32 v3, v2, 1, 3")
    a.e("v_xor_b32 v3, v3, v5")
    a.e("v_lshlrev_b32 v4, 7, v2")
    a.e("v_add_u32 v4, 16384, v4")
    for ks in range(4):
        a.e(f"v_xor_b32 v6, {ks*2}, v3")
        a.e(f"v_lshl_add_u32 v{BB+ks}, v6, 4, v4")
    a.e("v_and_b32 v2, 31, v1")
    a.e("v_and_b32 v3, 7, v2")
    a.e("v_xor_b32 v3, v3, v5")
    a.e("v_lshlrev_b32 v4, 7, v2")
    a.e("s_lshl_b32 s22, s3, 13")
    a.e(f"s_add_u32 s22, s22, {16*U}")
    a.e("v_add_u32 v4, s22, v4")
    for q in range(4):
        a.e(f"v_xor_b32 v6, {q*2}, v3")
        a.e(f"v_lshl_add_u32 v{24+q}, v6, 4, v4")
    a.e("v_lshrrev_b32 v2, 3, v1")
    a.e("v_and_b32 v3, 7, v1")
    a.e("v_xor_b32 v4, v3, v2")
    a.e("v_lshlrev_b32 v6, 7, v2")
    a.e("v_lshl_add_u32 v6, v4, 4, v6")
    a.e("v_add_u32 v28, s22, v6")
    a.e("s_lshl_b32 s22, s15, 7")
    a.e("s_lshl_b32 s23, s19, 6")
    a.e("s_add_u32 s22, s22, s23")
    a.e("v_add_u32 v2, s22, v2")
    a.e(f"s_movk_i32 s22, {CDP}")
    a.e("v_mul_lo_u32 v2, v2, s22")
    a.e("v_lshl_add_u32 v2, v3, 4, v2")
    a.e("s_lshl_b32 s22, s14, 10")
    a.e("s_lshl_b32 s23, s16, 8")
    a.e("s_add_u32 s22, s22, s23")
    a.e("s_lshl_b32 s23, s18, 7")
    a.e("s_add_u32 s22, s22, s23")
    a.e("v_add_u32 v29, s22, v2")
    for i in range(64):
        a.e(f"v_mov_b32 v{ACC+i}, 0")
    a.e("s_mov_b32 s20, 0")
    def setaddr_l():
        l = [f"v_add_u32 v{CA+j}, s20, v{BA+j}" for j in range(2)] + [f"v_add_u32 v{CB+k}, s20, v{BB+k}" for k in range(4)]
        l += [f"s_add_u32 s20, s20, {STG}", f"s_cmp_ge_u32 s20, {STG*S}", "s_cselect_b32 s20, 0, s20"]
        return l
    def reads(F, ks):
        r = []
        r.append(f"ds_read_b128 v[{F+8}:{F+11}], v{CB+ks}")
        for u in range(2):
            r.append(f"ds_read_b64_tr_b16 v[{F+2*u}:{F+2*u+1}], v{CA} offset:{(ks*16+u*4)*256}")
        r.append(f"ds_read_b128 v[{F+12}:{F+15}], v{CB+ks} offset:4096")
        for u in range(2):
            r.append(f"ds_read_b64_tr_b16 v[{F+4+2*u}:{F+4+2*u+1}], v{CA+1} offset:{(ks*16+u*4)*256}")
        return r
    def mfmas(F):
        m = []
        for (jm, jn) in ((0,0),(0,1),(1,0),(1,1)):
            d = ACC + (jm*2+jn)*16
            if cfg.fake16:
                fk[0] = (fk[0] + 1) % 2
                d2 = d + 8*fk[0]
                m.append(f"v_mfma_f32_16x16x32_bf16 v[{d2}:{d2+3}], v[{F+4*jm}:{F+4*jm+3}], v[{F+8+4*jn}:{F+8+4*jn+3}], v[{d2}:{d2+3}]\n  v_mfma_f32_16x16x32_bf16 v[{d2+4}:{d2+7}], v[{F+4*jm}:{F+4*jm+3}], v[{F+8+4*(1-jn)}:{F+8+4*(1-jn)+3}], v[{d2+4}:{d2+7}]")
            else:
                m.append(f"v_mfma_f32_32x32x16_bf16 v[{d}:{d+15}], v[{F+4*jm}:{F+4*jm+3}], v[{F+8+4*jn}:{F+8+4*jn+3}], v[{d}:{d+15}]")
        return m
    fk = [0]
    FS = [128, 144, 160, 176]
    def mix(m, r, pre=()):
        return [m[0]] + list(pre) + r[0:3] + [m[1]] + r[3:6] + [m[2], m[3]]
    a.e("s_waitcnt lgkmcnt(0)")
    common_srds(a)
    a.e("s_or_b32 s22, s2, s3")
    a.e("s_cmp_lg_u32 s22, 0")
    a.e("s_cbranch_scc1 L_no_pub")
    a.e("s_memrealtime s[22:23]")
    a.e("s_waitcnt lgkmcnt(0)")
    a.e("s_or_b32 s22, s22, 1")
    a.e("v_mov_b32 v230, s22")
    a.e("v_mov_b32 v231, s23")
    a.e("v_mov_b32 v234, 0")
    a.e("s_mov_b64 exec, 1")
    a.e("buffer_store_dwordx2 v[230:231], v234, s[68:71], 0 offen sc1")
    a.e("s_mov_b64 exec, -1")
    a.label("L_no_pub")
    ph_stamp(a, cfg, 0)
    a.e("s_barrier")
    ph_stamp(a, cfg, 1)
    for x in setaddr_l(): a.e(x)
    for x in reads(FS[0], 0): a.e(x)
    for x in reads(FS[1], 1): a.e(x)
    a.e(f"s_mov_b32 s21, {NST-1}")
    a.label("L_big_loop")
    a.e("s_waitcnt lgkmcnt(6)")
    for x in mix(mfmas(FS[0]), reads(FS[2], 2)): a.e(x)
    a.e("s_waitcnt lgkmcnt(6)")
    for x in mix(mfmas(FS[1]), reads(FS[3], 3)): a.e(x)
    a.e("s_waitcnt lgkmcnt(0)")
    for x in mix(mfmas(FS[2]), reads(FS[0], 0), pre=["s_barrier"] + setaddr_l()): a.e(x)
    for x in mix(mfmas(FS[3]), reads(FS[1], 1)): a.e(x)
    a.e("s_sub_u32 s21, s21, 1")
    a.e("s_cmp_lg_u32 s21, 0")
    a.e("s_cbranch_scc1 L_big_loop")
    nonce_issue(a)
    a.e("s_waitcnt lgkmcnt(6)")
    for x in mix(mfmas(FS[0]), reads(FS[2], 2)): a.e(x)
    a.e("s_waitcnt lgkmcnt(6)")
    for x in mix(mfmas(FS[1]), reads(FS[3], 3)): a.e(x)
    a.e("s_cmp_eq_u32 s14, 0")
    a.e("s_cselect_b32 s22, 0, 0x80008000")
    order = [(0,0),(1,0),(0,1),(1,1)]
    def ep_tile(t):
        jm, jn = order[t]
        tmp = 32 + 8*t
        sub = Asm()
        pack_tile32(sub, ACC+(jm*2+jn)*16, tmp, xorreg=22)
        sub.e("s_nop 0")
        for g in range(2):
            sub.e(f"ds_write_b128 v{24+jm*2+g}, v[{tmp+4*g}:{tmp+4*g+3}] offset:{jn*4096}")
        if jm == 1:
            for q in range(4*jn, 4*jn+4):
                sub.e(f"ds_read_b128 v[{128+4*q}:{131+4*q}], v28 offset:{q*1024}")
        return [l.strip() for l in sub.lines]
    m2 = mfmas(FS[2]); m3 = mfmas(FS[3])
    idx = {(0,0):0,(0,1):1,(1,0):2,(1,1):3}
    if cfg.ep_overlap:
        a.e("s_waitcnt lgkmcnt(0)")
        seq = []
        for t in range(4):
            seq += [m2[idx[order[t]]], m3[idx[order[t]]]]
        for x in seq[0:4]: a.e(x)
        a.e(seq[4]); a.e("s_nop 7"); a.e("s_nop 1")
        e0 = ep_tile(0)
        for x in e0[:12]: a.e(x)
        a.e(seq[5])
        for x in e0[12:]: a.e(x)
        a.e(seq[6])
        e1 = ep_tile(1)
        for x in e1[:12]: a.e(x)
        a.e(seq[7])
        for x in e1[12:]: a.e(x)
        ph_stamp(a, cfg, 2)
        for x in ep_tile(2): a.e(x)
        for x in ep_tile(3): a.e(x)
    else:
        a.e("s_waitcnt lgkmcnt(6)")
        for x in m2: a.e(x)
        a.e("s_waitcnt lgkmcnt(0)")
        for x in m3: a.e(x)
        ph_stamp(a, cfg, 2)
        a.e("s_nop 7"); a.e("s_nop 3")
        for t in range(4):
            for x in ep_tile(t): a.e(x)
    ph_stamp(a, cfg, 3)
    a.e("s_mov_b32 s22, 0")
    for q in range(8):
        a.e(f"s_waitcnt lgkmcnt({7-q if q >= 4 else 0 + 8 + 3 - q})") if False else None
    for q in range(8):
        rem = (3 - q) + 8 if q < 4 else 7 - q
        a.e(f"s_waitcnt lgkmcnt({rem})")
        a.e(f"buffer_store_dwordx4 v[{128+4*q}:{131+4*q}], v29, s[64:67], s22 offen{cfg.st_mode}")
        if q < 7: a.e(f"s_add_u32 s22, s22, {8*CDP}")
    ph_stamp(a, cfg, 4)
    a.e("s_lshl_b32 s60, s14, 2")
    a.e("s_add_u32 s60, s60, s16")
    a.e("s_lshl_b32 s60, s60, 2")
    a.e("s_add_u32 s60, s60, s3")
    a.e("s_lshl_b32 s60, s60, 3")
    a.e(f"s_mul_i32 s22, s15, {FSTR}")
    a.e("s_add_u32 s60, s60, s22")
    a.e(f"s_add_u32 s60, s60, {WS_FC}")
    nonce_get(a)
    ph_rt(a, cfg, 36)
    flag_store(a, 60)
    ph_stamp(a, cfg, 5)
    a.e("s_barrier")
    a.e("s_branch L_y_cons")

def common_srds(a):
    srd(a, 64, 10, 11, WS_BYTES)
    srd(a, 68, 62, 63, 256)

def k_attn(a, cfg):
    S = cfg.SB; NST = 8
    AREG = 24576
    STG = AREG + 18*1024
    PITCH = 400
    a.c("---- part B role: xcd=s2&7, i=(s2>>3)-16")
    a.e("s_load_dwordx4 s[40:43], s[0:1], 40")
    a.e("s_and_b32 s12, s2, 7")
    a.e("s_lshr_b32 s13, s2, 3")
    a.e("s_sub_u32 s13, s13, 16")
    a.e("s_lshr_b32 s14, s13, 3")
    a.e("s_lshl_b32 s12, s12, 1")
    a.e("s_add_u32 s15, s12, s14")
    a.e("s_and_b32 s16, s13, 7")
    a.e("s_lshl_b32 s17, s14, 2")
    a.e("s_add_u32 s17, s17, s16")
    a.e("s_and_b32 s17, s17, 7")
    a.e("s_cmp_ge_u32 s3, 4")
    a.e("s_cbranch_scc0 L_att_cons")
    a.e("s_cmp_eq_u32 s3, 7")
    a.e("s_cbranch_scc1 L_att_pf")
    a.e("s_sub_u32 s18, s3, 4")
    a.e("v_lshrrev_b32 v2, 3, v1")
    a.e("v_and_b32 v3, 7, v1")
    a.e("v_bfe_u32 v4, v1, 4, 1")
    a.e("v_lshlrev_b32 v4, 1, v4")
    a.e("v_xor_b32 v3, v3, v4")
    a.e("v_xor_b32 v5, 4, v3")
    a.e("s_mov_b32 s22, 3072")
    a.e("v_mul_lo_u32 v2, v2, s22")
    a.e("s_lshl_b32 s19, s16, 7")
    a.e("s_lshl_b32 s22, s18, 10")
    a.e("s_add_u32 s19, s19, s22")
    a.e("v_add_u32 v2, s19, v2")
    a.e("v_lshl_add_u32 v6, v3, 4, v2")
    a.e("v_lshl_add_u32 v7, v5, 4, v2")
    for p in range(8):
        a.e(f"v_add_u32 v{10+p}, {p*8*3072 - (p%4)*1024}, v{6 if p%2==0 else 7}")
    a.e("v_lshrrev_b32 v2, 3, v1")
    a.e("v_and_b32 v3, 7, v1")
    a.e("v_lshrrev_b32 v4, 4, v1")
    a.e("v_xor_b32 v3, v3, v4")
    a.e("v_xor_b32 v5, 4, v3")
    a.e("s_lshl_b32 s19, s15, 7")
    a.e("s_sub_u32 s19, s19, 16")
    a.e("s_mul_i32 s22, s18, 48")
    a.e("s_add_u32 s19, s19, s22")
    a.e("v_add_u32 v2, s19, v2")
    a.e("v_lshlrev_b32 v2, 10, v2")
    a.e("v_lshl_add_u32 v6, v3, 4, v2")
    a.e("v_lshl_add_u32 v7, v5, 4, v2")
    for j in range(6):
        a.e(f"v_add_u32 v{20+j}, {j*8*1024}, v{6 if j%2==0 else 7}")
    a.e("s_mul_i32 s32, s17, 196608")
    a.e("s_lshl_b32 s33, s17, 7")
    a.e("s_lshl_b32 s34, s18, 13")
    a.e("s_mul_i32 s35, s18, 6144")
    a.e(f"s_add_u32 s35, s35, {AREG}")
    a.e("s_mov_b32 s20, 0")
    a.e("s_waitcnt lgkmcnt(0)")
    srd(a, 24, 42, 43, 512*1536*2)
    srd(a, 28, 40, 41, 2048*512*2)
    def issue(nt=""):
        a.e("s_add_u32 s37, s20, s35")
        for j in range(6):
            a.e(f"s_add_u32 m0, s37, {j*1024}")
            a.e("s_nop 0")
            a.e(f"buffer_load_dwordx4 v{20+j}, s[28:31], s33 offen{nt} lds")
        a.e("s_add_u32 s37, s20, s34")
        for hh in range(2):
            a.e(f"s_add_u32 m0, s37, {hh*4096}")
            a.e("s_nop 0")
            for p in range(4):
                a.e(f"buffer_load_dwordx4 v{10+hh*4+p}, s[24:27], s32 offen offset:{p*1024} lds")
    def advance():
        a.e("s_add_u32 s32, s32, 196608")
        a.e(f"s_cmp_ge_u32 s32, {512*3072}")
        a.e("s_cselect_b32 s32, 0, s32")
        a.e("s_add_u32 s33, s33, 128")
        a.e("s_and_b32 s33, s33, 0x3ff")
        a.e(f"s_add_u32 s20, s20, {STG}")
        a.e(f"s_cmp_ge_u32 s20, {STG*S}")
        a.e("s_cselect_b32 s20, 0, s20")
    P = S - 1
    if cfg.pb_delay: a.e("s_barrier")
    ph_stamp(a, cfg, 32)
    for i in range(P):
        issue(" nt" if (i == 0 and cfg.nt_xb0) else ""); advance()
        if i == 0: ph_stamp(a, cfg, 33)
    a.e(f"s_mov_b32 s21, {NST-P}")
    a.label("L_att_ld")
    a.e(f"s_waitcnt vmcnt({14*(P-1)})")
    a.e("s_barrier")
    issue(); advance()
    a.e("s_sub_u32 s21, s21, 1")
    a.e("s_cmp_lg_u32 s21, 0")
    a.e("s_cbranch_scc1 L_att_ld")
    for i in range(NST-P, NST):
        a.e(f"s_waitcnt vmcnt({14*(NST-1-i)})")
        a.e("s_barrier")
    a.label("L_att_e1")
    a.e("s_barrier")
    pc_loader_setup(a)
    op_loader_setup(a)
    a.e("s_barrier")
    if cfg.wo_at == 'e2':
        for i in range(8): wo_issue(a, i)
    a.e("s_branch L_att_attn")
    a.label("L_att_pf")
    a.e("s_bfe_u32 s18, s13, 0x10002")
    a.e("s_add_u32 s18, s18, s12")
    a.e("s_lshl_b32 s18, s18, 7")
    a.e("s_and_b32 s19, s13, 3")
    a.e("s_lshl_b32 s19, s19, 5")
    a.e("s_add_u32 s18, s18, s19")
    a.e("v_lshrrev_b32 v2, 2, v1")
    a.e("v_add_u32 v2, s18, v2")
    a.e("v_lshlrev_b32 v2, 12, v2")
    a.e("v_and_b32 v3, 3, v1")
    a.e("v_lshl_add_u32 v236, v3, 7, v2")
    a.e("v_add_u32 v237, 0x10000, v236")
    a.e("s_lshl_b32 s18, s13, 4")
    a.e("v_lshrrev_b32 v2, 3, v1")
    a.e("v_add_u32 v2, s18, v2")
    a.e("v_lshlrev_b32 v2, 10, v2")
    a.e("v_and_b32 v3, 7, v1")
    a.e("v_lshl_add_u32 v238, v3, 7, v2")
    a.e("v_add_u32 v239, 0x2000, v238")
    a.e("s_waitcnt lgkmcnt(0)")
    srd(a, 24, 4, 5, 2048*512*2)
    a.e("s_cmp_eq_u32 s14, 0")
    a.e("s_cselect_b32 s28, s6, s8")
    a.e("s_cselect_b32 s29, s7, s9")
    a.e(f"s_mov_b32 s30, {2048*2048*2}")
    a.e("s_mov_b32 s31, 0x00020000")
    a.e("s_lshr_b32 s34, s12, 1")
    a.e(f"s_mul_i32 s34, s34, {cfg.xrot}")
    TD = 244
    tcount = [0]
    def touch(kind, b):
        for h in (0, 1):
            d = TD + (tcount[0] % 8); tcount[0] += 1
            a.e(f"s_add_u32 s33, s34, {b}")
            a.e("s_and_b32 s33, s33, 7")
            if kind == "w":
                a.e("s_lshl_b32 s32, s33, 9")
                a.e(f"buffer_load_dword v{d}, v{236+h}, s[28:31], s32 offen" + (" nt" if b <= cfg.pf_nt_upto else ""))
            else:
                a.e("s_lshl_b32 s32, s33, 18")
                a.e(f"buffer_load_dword v{d}, v{238+h}, s[24:27], s32 offen")
    for (k, b) in cfg.pf_early.get(-1, []): touch(k, b)
    if cfg.pb_delay:
        a.e("s_waitcnt vmcnt(0)")
        a.e("s_barrier")
    for i in range(NST):
        a.e("s_barrier")
        for (k, b) in cfg.pf_early.get(i, []): touch(k, b)
    for (k, b) in cfg.pf_late: touch(k, b)
    if cfg.pf_weights:
        a.e("s_lshl_b32 s22, s13, 15")
        a.e("v_lshl_add_u32 v2, v1, 7, s22")
        for m_ in range(3):
            srd(a, 32, 44+2*m_, 45+2*m_, 512*512*2)
            for q in range(4):
                d = TD + (tcount[0] % 8); tcount[0] += 1
                a.e(f"s_movk_i32 s36, {q*8192}")
                a.e(f"buffer_load_dword v{d}, v2, s[32:35], s36 offen")
    a.e("s_branch L_att_e1")
    a.label("L_att_cons")
    if cfg.prio: a.e(f"s_setprio {cfg.prio}")
    ACC = 128 - 8
    F0, F1 = 24, 72
    BA, BB = 10, 12
    CA, CB = 16, 18
    a.e("v_bfe_u32 v2, v1, 2, 2")
    a.e("v_and_b32 v3, 3, v1")
    a.e("v_lshrrev_b32 v4, 4, v1")
    a.e("v_lshrrev_b32 v5, 1, v2")
    a.e("v_and_b32 v6, 1, v4")
    a.e("v_lshl_or_b32 v5, v6, 1, v5")
    a.e("v_xor_b32 v5, s3, v5")
    a.e("v_lshlrev_b32 v6, 7, v2")
    a.e("v_lshl_add_u32 v6, v4, 10, v6")
    a.e("v_lshl_add_u32 v6, v5, 5, v6")
    a.e(f"v_lshl_add_u32 v{BA}, v3, 3, v6")
    a.e("v_and_b32 v2, 15, v1")
    a.e("v_lshrrev_b32 v3, 1, v2")
    a.e("v_xor_b32 v3, v3, v4")
    a.e("v_lshlrev_b32 v5, 7, v2")
    a.e(f"v_add_u32 v5, {AREG}, v5")
    for ks in range(2):
        a.e(f"v_xor_b32 v6, {ks*4}, v3")
        a.e(f"v_lshl_add_u32 v{BB+ks}, v6, 4, v5")
    a.e(f"s_mov_b32 s22, {PITCH}")
    a.e("v_mul_lo_u32 v8, v2, s22")
    a.e("v_lshl_add_u32 v8, v4, 3, v8")
    a.e("s_lshl_b32 s22, s3, 5")
    a.e("v_add_u32 v8, s22, v8")
    for i in range(4, 108):
        a.e(f"v_mov_b32 v{ACC+i}, 0")
    a.e("s_mov_b32 s20, 0")
    def setaddr():
        a.e(f"v_add_u32 v{CA}, s20, v{BA}")
        for k in range(2): a.e(f"v_add_u32 v{CB+k}, s20, v{BB+k}")
        a.e(f"s_add_u32 s20, s20, {STG}")
        a.e(f"s_cmp_ge_u32 s20, {STG*S}")
        a.e("s_cselect_b32 s20, 0, s20")
    def reads(F, ks):
        r = []
        for seg in range(3):
            for u in range(2):
                r.append(f"ds_read_b64_tr_b16 v[{F+4*seg+2*u}:{F+4*seg+2*u+1}], v{CA} offset:{seg*8192 + (ks*32+u*4)*128}")
        for nt in range(9):
            r.append(f"ds_read_b128 v[{F+12+4*nt}:{F+12+4*nt+3}], v{CB+ks} offset:{nt*2048}")
        return r
    TL = [(nt, seg) for nt in range(9) for seg in range(3) if not (seg == 0 and nt == 0)]
    def mfmas(F):
        m = []
        for (nt, seg) in TL:
            d = ACC + (seg*9+nt)*4
            m.append(f"v_mfma_f32_16x16x32_bf16 v[{d}:{d+3}], v[{F+4*seg}:{F+4*seg+3}], v[{F+12+4*nt}:{F+12+4*nt+3}], v[{d}:{d+3}]")
        return m
    def interleave(m, r):
        out = []
        for i, x in enumerate(m):
            out.append(x)
            if i < len(r): out.append(r[i])
        return out
    a.e("s_waitcnt lgkmcnt(0)")
    ph_stamp(a, cfg, 0)
    if cfg.pb_delay: a.e("s_barrier")
    a.e("s_barrier")
    ph_stamp(a, cfg, 1)
    setaddr()
    for x in reads(F0, 0): a.e(x)
    a.e(f"s_mov_b32 s21, {NST}")
    a.label("L_att_loop")
    a.e("s_waitcnt lgkmcnt(0)")
    for x in interleave(mfmas(F0), reads(F1, 1)): a.e(x)
    a.e("s_waitcnt lgkmcnt(0)")
    a.e("s_sub_u32 s21, s21, 1")
    a.e("s_cmp_eq_u32 s21, 0")
    a.e("s_cbranch_scc1 L_att_last")
    a.e("s_barrier")
    setaddr()
    for x in interleave(mfmas(F1), reads(F0, 0)): a.e(x)
    a.e("s_branch L_att_loop")
    a.label("L_att_last")
    a.e("s_barrier")
    ph_stamp(a, cfg, 2)
    m = mfmas(F1)
    def wr(idx):
        nt, seg = TL[idx]
        d = ACC + (seg*9+nt)*4
        tmp = F0 + 2*(idx % 16)
        return [f"v_cvt_pk_bf16_f32 v{tmp}, v{d}, v{d+1}", f"v_cvt_pk_bf16_f32 v{tmp+1}, v{d+2}, v{d+3}",
                f"ds_write_b64 v8, v[{tmp}:{tmp+1}] offset:{nt*16*PITCH + seg*128}"]
    LAG = 9
    for i, x in enumerate(m):
        a.e(x)
        if i >= LAG:
            for y in wr(i-LAG): a.e(y)
    a.e("s_nop 7")
    for i in range(len(m)-LAG, len(m)):
        for y in wr(i): a.e(y)
    a.e("s_waitcnt lgkmcnt(0)")
    a.e("s_barrier")
    a.label("L_att_attn")
    common_srds(a)
    if cfg.wo_at == 'all8':
        srd(a, 36, 48, 49, 512*512*2)
        a.e("v_lshrrev_b32 v2, 3, v1")
        a.e("v_and_b32 v3, 7, v1")
        a.e("v_bfe_u32 v4, v1, 4, 1")
        a.e("v_lshlrev_b32 v4, 2, v4")
        a.e("v_xor_b32 v3, v3, v4")
        a.e("v_lshlrev_b32 v2, 10, v2")
        a.e("v_lshl_add_u32 v2, v3, 4, v2")
        a.e("s_lshl_b32 s19, s16, 7")
        a.e("v_add_u32 v2, s19, v2")
        a.e("s_add_u32 s53, s17, s3")
        a.e("s_and_b32 s53, s53, 7")
        a.e("s_lshl_b32 s53, s53, 16")
        a.e("s_lshl_b32 s22, s3, 13")
        a.e(f"s_add_u32 s22, s22, {8*U}")
        for p in range(8):
            a.e(f"s_add_u32 m0, s22, {p*1024}")
            a.e(f"s_add_u32 s23, s53, {p*8192}")
            a.e("buffer_load_dwordx4 v2, s[36:39], s23 offen lds")
    nonce_issue(a)
    a.e("s_and_b32 s18, s3, 3")
    a.e("s_lshr_b32 s19, s3, 2")
    a.e("s_lshl_b32 s19, s19, 6")
    a.e("v_add_u32 v2, s19, v1")
    a.e(f"s_mov_b32 s22, {PITCH}")
    a.e("v_mul_lo_u32 v3, v2, s22")
    a.e("s_lshl_b32 s22, s18, 5")
    a.e(f"s_add_u32 s22, s22, {2*PITCH}")
    a.e("v_add_u32 v3, s22, v3")
    Q = 8; KK = 16; VV = 80; LG = 144; O = 160; T = 180
    a.e(f"ds_read_b128 v[{Q}:{Q+3}], v3 offset:{14*PITCH}")
    a.e(f"ds_read_b128 v[{Q+4}:{Q+7}], v3 offset:{14*PITCH+16}")
    for w in range(8):
        a.e(f"ds_read_b128 v[{KK+8*w}:{KK+8*w+3}], v3 offset:{(14-2*w)*PITCH+128}")
        a.e(f"ds_read_b128 v[{KK+8*w+4}:{KK+8*w+7}], v3 offset:{(14-2*w)*PITCH+144}")
    a.e("s_lshl_b32 s22, s15, 7")
    a.e("v_add_u32 v4, s22, v2")
    for w in range(8):
        a.e(f"s_waitcnt lgkmcnt({min(15, 14-2*w)})")
        a.e(f"v_mov_b32 v{LG+w}, 0")
        for i in range(8):
            a.e(f"v_dot2_f32_bf16 v{LG+w}, v{Q+i}, v{KK+8*w+i}, v{LG+w}")
    for w in range(8):
        a.e(f"ds_read_b128 v[{VV+8*w}:{VV+8*w+3}], v3 offset:{(14-2*w)*PITCH+256}")
        a.e(f"ds_read_b128 v[{VV+8*w+4}:{VV+8*w+7}], v3 offset:{(14-2*w)*PITCH+272}")
    a.e("s_nop 3")
    for w in range(0, 8, 2):
        a.e(f"v_cvt_pk_bf16_f32 v{T+w//2}, v{LG+w}, v{LG+w+1}")
    for w in range(0, 8, 2):
        a.e(f"v_lshlrev_b32 v{LG+w}, 16, v{T+w//2}")
        a.e(f"v_and_b32 v{LG+w+1}, 0xffff0000, v{T+w//2}")
    for w in range(8):
        a.e(f"v_mul_f32 v{LG+w}, 0x3e800000, v{LG+w}")
    a.e("v_mov_b32 v5, 0xce6e6b28")
    for w in range(1, 8):
        a.e(f"v_cmp_gt_u32 vcc, {2*w}, v4")
        a.e("s_nop 1")
        a.e(f"v_cndmask_b32 v{LG+w}, v{LG+w}, v5, vcc")
    a.e(f"v_max3_f32 v6, v{LG}, v{LG+1}, v{LG+2}")
    a.e(f"v_max3_f32 v6, v6, v{LG+3}, v{LG+4}")
    a.e(f"v_max3_f32 v6, v6, v{LG+5}, v{LG+6}")
    a.e(f"v_max_f32 v6, v6, v{LG+7}")
    a.e("s_mov_b32 s22, 0x3fb8aa3b")
    for w in range(8):
        a.e(f"v_sub_f32 v{LG+w}, v{LG+w}, v6")
    for w in range(8):
        a.e(f"v_mul_f32 v{LG+w}, s22, v{LG+w}")
    for w in range(8):
        a.e(f"v_exp_f32 v{LG+w}, v{LG+w}")
    a.e("s_nop 0")
    a.e(f"v_add_f32 v6, v{LG}, v{LG+1}")
    for w in range(2, 8):
        a.e(f"v_add_f32 v6, v6, v{LG+w}")
    a.e("v_rcp_f32 v6, v6")
    a.e("s_nop 0")
    for w in range(8):
        a.e(f"v_mul_f32 v{LG+w}, v{LG+w}, v6")
    for w in range(0, 8, 2):
        a.e(f"v_cvt_pk_bf16_f32 v{T+w//2}, v{LG+w}, v{LG+w+1}")
    for w in range(0, 8, 2):
        a.e(f"v_lshlrev_b32 v{LG+w}, 16, v{T+w//2}")
        a.e(f"v_and_b32 v{LG+w+1}, 0xffff0000, v{T+w//2}")
    for w in range(8):
        a.e(f"s_waitcnt lgkmcnt({14-2*w})")
        for i in range(8):
            src = VV+8*w+i
            a.e(f"v_lshlrev_b32 v{T+8}, 16, v{src}")
            a.e(f"v_and_b32 v{T+9}, 0xffff0000, v{src}")
            if w == 0:
                a.e(f"v_mul_f32 v{O+2*i}, v{LG}, v{T+8}")
                a.e(f"v_mul_f32 v{O+2*i+1}, v{LG}, v{T+9}")
            else:
                a.e(f"v_fmac_f32 v{O+2*i}, v{LG+w}, v{T+8}")
                a.e(f"v_fmac_f32 v{O+2*i+1}, v{LG+w}, v{T+9}")
    for i in range(8):
        a.e(f"v_cvt_pk_bf16_f32 v{T+i}, v{O+2*i}, v{O+2*i+1}")
    ph_stamp(a, cfg, 3)
    if cfg.wo_at == 'post':
        a.e("s_cmp_ge_u32 s3, 4")
        a.e("s_cbranch_scc0 L_att_nowo")
        srd(a, 36, 48, 49, 512*512*2)
        for i in range(8): wo_issue(a, i)
        a.label("L_att_nowo")
    a.e("s_movk_i32 s22, 144")
    a.e("v_mul_lo_u32 v3, v2, s22")
    a.e("s_lshl_b32 s22, s18, 5")
    a.e(f"s_add_u32 s22, s22, {16*U}")
    a.e("v_add_u32 v3, s22, v3")
    a.e(f"ds_write_b128 v3, v[{T}:{T+3}]")
    a.e(f"ds_write_b128 v3, v[{T+4}:{T+7}] offset:16")
    a.e("v_lshrrev_b32 v2, 3, v1")
    a.e("s_lshl_b32 s22, s3, 4")
    a.e("v_add_u32 v2, s22, v2")
    a.e("v_and_b32 v3, 7, v1")
    a.e("s_movk_i32 s22, 144")
    a.e("v_mul_lo_u32 v4, v2, s22")
    a.e("v_lshl_add_u32 v4, v3, 4, v4")
    a.e(f"v_add_u32 v4, {16*U}, v4")
    a.e("s_lshl_b32 s22, s15, 7")
    a.e("v_add_u32 v2, s22, v2")
    a.e(f"s_movk_i32 s22, {OP}")
    a.e("v_mul_lo_u32 v2, v2, s22")
    a.e("v_lshl_add_u32 v2, v3, 4, v2")
    a.e("s_lshl_b32 s22, s16, 7")
    a.e(f"s_add_u32 s22, s22, {WS_O}")
    a.e(f"s_add_u32 s23, s22, {8*OP}")
    a.e("s_waitcnt lgkmcnt(0)")
    a.e("s_barrier")
    a.e("ds_read_b128 v[8:11], v4")
    a.e(f"ds_read_b128 v[12:15], v4 offset:{8*144}")
    a.e("s_waitcnt lgkmcnt(1)")
    a.e(f"buffer_store_dwordx4 v[8:11], v2, s[64:67], s22 offen{cfg.st_mode}")
    a.e("s_waitcnt lgkmcnt(0)")
    a.e(f"buffer_store_dwordx4 v[12:15], v2, s[64:67], s23 offen{cfg.st_mode}")
    a.e("s_lshl_b32 s60, s16, 3")
    a.e(f"s_mul_i32 s22, s15, {FSTR}")
    a.e("s_add_u32 s60, s60, s22")
    a.e(f"s_add_u32 s60, s60, {WS_FO}")
    a.e("s_mov_b32 s61, 0")
    nonce_get(a)
    ph_stamp(a, cfg, 4)
    a.e("s_barrier")
    a.e("s_cmp_ge_u32 s3, 4")
    a.e("s_cbranch_scc0 L_op_cons")
    a.e("s_lshl_b32 s54, s52, 1")
    a.e("s_cmp_lg_u32 s3, 4")
    a.e("s_cbranch_scc1 L_op_nofl")
    ph_rt(a, cfg, 34)
    flag_store(a, 60)
    a.label("L_op_nofl")
    if cfg.wo_at == 'late':
        srd(a, 36, 48, 49, 512*512*2)
        for i in range(8): wo_issue(a, i)
    a.e("s_cmp_lg_u32 s3, 4")
    a.e("s_cbranch_scc1 L_op_nopoll")
    flag_poll(a, PA+9, cfg)
    ph_rt(a, cfg, 35)
    a.label("L_op_nopoll")
    a.e("s_waitcnt vmcnt(0)")
    a.e("s_barrier")
    ph_stamp(a, cfg, 45)
    ops = []
    def o_issue(i):
        a.e(f"s_add_u32 s53, s17, {i}")
        a.e("s_and_b32 s53, s53, 7")
        a.e("s_lshl_b32 s53, s53, 7")
        a.e(f"s_add_u32 m0, s54, {(i%4)*2*U}")
        a.e("s_nop 0")
        for j in range(4):
            a.e(f"buffer_load_dwordx4 v{190+j}, s[64:67], s53 offen offset:{j*1024} lds")
    def do(tag):
        if tag[0] == "o": o_issue(tag[1]); ops.append((tag, 4))
        else: wd_issue(a, tag[1]); ops.append((tag, 2))
    def wait_for(tag):
        last = max(i for i, (t, c) in enumerate(ops) if t == tag)
        a.e(f"s_waitcnt vmcnt({sum(c for (t, c) in ops[last+1:])})")
    for i in range(4): do(("o", i))
    sched = {1: [("o",4), ("w",4)], 2: [("o",5), ("w",5)], 3: [("o",6), ("w",6)], 4: [("o",7), ("w",7)],
             5: [("w",8), ("w",0), ("w",1)], 6: [("w",9), ("w",2), ("w",3)], 7: [("w",10)]}
    for n in range(8):
        wait_for(("o", n))
        a.e("s_barrier")
        for tag in sched.get(n, []): do(tag)
        ph_stamp(a, cfg, 46+n)
    a.e("s_barrier")
    wd_issue(a, 11)
    a.e("s_waitcnt vmcnt(0)")
    ph_stamp(a, cfg, 44)
    a.e("s_barrier")
    a.e("s_branch L_y_loader")
    a.label("L_op_cons")
    pc_cons_setup(a)
    OA = 20
    OF = [52, 100]
    a.e("s_lshl_b32 s22, s19, 12")
    for ks in range(4):
        a.e(f"v_add_u32 v{150+ks}, s22, v{PC_B0+ks}")
    a.e(f"v_add_u32 v154, 0x10000, v{PC_T0}")
    a.e("v_and_b32 v2, 31, v1")
    a.e("s_lshl_b32 s22, s15, 7")
    a.e("s_lshl_b32 s23, s19, 6")
    a.e("s_add_u32 s22, s22, s23")
    a.e("v_add_u32 v2, s22, v2")
    a.e("v_lshlrev_b32 v2, 11, v2")
    a.e("v_lshrrev_b32 v3, 5, v1")
    a.e("v_lshl_add_u32 v2, v3, 4, v2")
    a.e("s_lshl_b32 s22, s16, 7")
    a.e("s_lshl_b32 s23, s18, 6")
    a.e("s_add_u32 s22, s22, s23")
    a.e("v_add_u32 v155, s22, v2")
    a.e("v_add_u32 v156, 0x10000, v155")
    srd(a, 24, 50, 51, 2048*1024*2)
    def oreads(n):
        F = OF[n % 2]; r = []
        for ks in range(4):
            for u in range(2):
                r.append(f"ds_read_b64_tr_b16 v[{F+4*ks+2*u}:{F+4*ks+2*u+1}], v154 offset:{n*U + (ks*16+u*4)*128}")
            for jn in range(2):
                d = F + 16 + 4*(ks*2+jn)
                r.append(f"ds_read_b128 v[{d}:{d+3}], v{150+ks} offset:{(n%4)*2*U + jn*4096}")
        return r
    def omf(n):
        F = OF[n % 2]; m = []
        for ks in range(4):
            for jn in range(2):
                acc = OA + 16*jn; b = F + 16 + 4*(ks*2+jn)
                c = "0" if (n == 0 and ks == 0) else f"v[{acc}:{acc+15}]"
                m.append(f"v_mfma_f32_32x32x16_bf16 v[{acc}:{acc+15}], v[{F+4*ks}:{F+4*ks+3}], v[{b}:{b+3}], {c}")
        return m
    a.e("s_barrier")
    a.e("s_barrier")
    for x in oreads(0): a.e(x)
    ph_stamp(a, cfg, 5)
    for n in range(8):
        a.e("s_waitcnt lgkmcnt(0)")
        a.e("s_barrier")
        for x in mixd(omf(n), oreads(n+1) if n < 7 else [], 3): a.e(x)
    a.e("s_nop 7"); a.e("s_nop 7")
    for jn in range(2):
        pack_tile32(a, OA+16*jn, 52+8*jn)
        a.e("s_nop 1")
        for g in range(2):
            a.e(f"buffer_store_dwordx4 v[{52+8*jn+4*g}:{52+8*jn+4*g+3}], v{155+jn}, s[24:27], 0 offen offset:{1024 + g*32}{cfg.out_st}")
    ph_stamp(a, cfg, 6)
    a.e("s_barrier")
    a.e("s_branch L_y_cons")

PC_A0, PC_A1 = 212, 216
PC_B0, PC_B2 = 220, 224
PC_T0, PC_T2 = 236, 237
PC_ST = 238
def pc_cons_setup(a):
    a.e("s_and_b32 s18, s3, 1")
    a.e("s_lshr_b32 s19, s3, 1")
    a.e("v_and_b32 v2, 31, v1")
    a.e("v_bfe_u32 v3, v2, 1, 3")
    a.e("v_lshrrev_b32 v5, 5, v1")
    a.e("v_xor_b32 v3, v3, v5")
    a.e("v_lshlrev_b32 v4, 7, v2")
    a.e("s_lshl_b32 s22, s18, 12")
    a.e("s_lshl_b32 s23, s19, 12")
    for ks in range(4):
        a.e(f"v_xor_b32 v6, {ks*2}, v3")
        a.e("v_lshl_add_u32 v6, v6, 4, v4")
        a.e(f"v_add_u32 v{PC_A0+ks}, s22, v6")
        a.e(f"v_add_u32 v{PC_B0+ks}, s23, v6")
        a.e(f"v_add_u32 v{PC_A1+ks}, 0x10000, v{PC_A0+ks}")
        a.e(f"v_add_u32 v{PC_B2+ks}, 0x20000, v{PC_B0+ks}")
    a.e("s_lshl_b32 s22, s72, 6")
    a.e("s_lshl_b32 s23, s19, 5")
    a.e("s_add_u32 s22, s22, s23")
    a.e("v_add_u32 v6, s22, v2")
    a.e("v_lshlrev_b32 v6, 11, v6")
    a.e("v_lshl_add_u32 v6, v5, 4, v6")
    a.e("s_lshl_b32 s22, s73, 7")
    a.e("s_lshl_b32 s23, s18, 6")
    a.e("s_add_u32 s22, s22, s23")
    a.e(f"v_add_u32 v{PC_ST}, s22, v6")
    a.e("v_bfe_u32 v2, v1, 2, 2")
    a.e("v_and_b32 v3, 3, v1")
    a.e("v_bfe_u32 v4, v1, 4, 1")
    a.e("v_lshlrev_b32 v6, 7, v2")
    a.e("v_lshl_add_u32 v6, v5, 10, v6")
    a.e("v_lshl_add_u32 v6, v4, 5, v6")
    a.e("v_lshl_add_u32 v6, v3, 3, v6")
    a.e("v_lshrrev_b32 v7, 1, v2")
    a.e("v_xor_b32 v7, s18, v7")
    a.e(f"v_lshl_add_u32 v{PC_T0}, v7, 6, v6")
    a.e(f"v_add_u32 v{PC_T2}, 0x20000, v{PC_T0}")

def mixd(m, r, per):
    out = []; r = list(r)
    for x in m:
        out.append(x)
        out += r[:per]; r = r[per:]
    return out + r

def phase_c(a, cfg):
    a.label("L_y_loader")
    a.e("s_add_u32 s54, s52, 8192")
    def issue(y):
        slot = RING[y % 4]
        a.e(f"s_add_u32 s53, s88, {y}")
        a.e("s_and_b32 s53, s53, 7")
        a.e("s_lshl_b32 s53, s53, 8")
        a.e("s_add_u32 s55, s53, 128")
        a.e(f"s_add_u32 m0, s52, {slot}")
        a.e("s_nop 0")
        a.e(f"buffer_load_dwordx4 v{PA+2}, s[64:67], s53 offen lds")
        a.e(f"buffer_load_dwordx4 v{PA+3}, s[64:67], s53 offen offset:1024 lds")
        a.e(f"s_add_u32 m0, s54, {slot}")
        a.e("s_nop 0")
        a.e(f"buffer_load_dwordx4 v{PA+2}, s[64:67], s55 offen lds")
        a.e(f"buffer_load_dwordx4 v{PA+3}, s[64:67], s55 offen offset:1024 lds")
    a.e("s_barrier")
    for pos in (12, 13, 14, 15): wd_issue(a, pos)
    ph_stamp(a, cfg, 40)
    a.e("s_cmp_lg_u32 s3, 4")
    a.e("s_cbranch_scc1 L_y_nopoll")
    ph_rt(a, cfg, 38)
    flag_poll(a, PA+8, cfg)
    ph_rt(a, cfg, 37)
    a.label("L_y_nopoll")
    a.e("s_waitcnt vmcnt(0)")
    a.e("s_barrier")
    ph_stamp(a, cfg, 41)
    for y in range(4): issue(y)
    issued = 4
    for y in range(8):
        a.e(f"s_waitcnt vmcnt({4*(issued-1-y)})")
        a.e("s_barrier")
        if y >= 1 and issued < 8:
            issue(issued); issued += 1
        if y < 6: ph_stamp(a, cfg, 54+y)
    ph_stamp(a, cfg, 42)
    a.e("s_branch L_pc_end")
    a.label("L_y_cons")
    ACC1 = 20
    FS = [52, 84]
    RA = 116
    def rdB(dst, ks, addr):
        base = PC_B0 if addr < 65536 else PC_B2
        off = addr if addr < 65536 else addr - 131072
        return f"ds_read_b128 v[{dst}:{dst+3}], v{base+ks} offset:{off}"
    def rdA(pos):
        addr = WD_UNIT[pos]*U
        base = PC_A0 if addr < 65536 else PC_A1
        off = addr % 65536
        dst = RA + (pos % 6)*16
        return [f"ds_read_b128 v[{dst+4*ks}:{dst+4*ks+3}], v{base+ks} offset:{off}" for ks in range(4)]
    def reads(y):
        F = FS[y % 2]; slot = RING[y % 4]
        return [rdB(F+4*(c*4+ks), ks, slot + c*U) for c in range(2) for ks in range(4)]
    def mf(y):
        F = FS[y % 2]; m = []
        for c_ in range(2):
            ra = RA + ((2*y+c_) % 6)*16
            for ks in range(4):
                c = "0" if (y == 0 and c_ == 0 and ks == 0) else f"v[{ACC1}:{ACC1+15}]"
                b = F + 4*(c_*4+ks)
                m.append(f"v_mfma_f32_32x32x16_bf16 v[{ACC1}:{ACC1+15}], v[{ra+4*ks}:{ra+4*ks+3}], v[{b}:{b+3}], {c}")
        return m
    a.e("s_nop 1")
    for pos in range(6):
        for x in rdA(pos): a.e(x)
    srd(a, 24, 50, 51, 2048*1024*2)
    a.e("s_waitcnt lgkmcnt(0)")
    a.e("s_barrier")
    a.e("s_barrier")
    a.e("s_barrier")
    ph_stamp(a, cfg, 7)
    for x in reads(0): a.e(x)
    pendA = 0
    carry = []
    for y in range(8):
        a.e(f"s_waitcnt lgkmcnt({pendA})")
        m = mf(y)
        if y < 7:
            a.e("s_barrier")
            if cfg.ytweak:
                rb = reads(y+1)
                cur = rdA(2*(y+3)) if y + 3 < 8 else []
                gaps = [rb[0:3], rb[3:6], rb[6:8], carry[0:2], carry[2:4] , cur[0:2], cur[2:4], []]
                for k in range(8):
                    a.e(m[k])
                    for x in gaps[k]: a.e(x)
                pendA = len(carry) + len(cur)
                carry = rdA(2*(y+3)+1) if y + 3 < 8 else []
            else:
                for x in mixd(m, reads(y+1), 3): a.e(x)
                if y + 3 < 8:
                    for x in rdA(2*(y+3)) + rdA(2*(y+3)+1): a.e(x)
                    pendA = 8
                else:
                    pendA = 0
        else:
            for x in m: a.e(x)
    ph_stamp(a, cfg, 8)
    a.e("s_nop 7"); a.e("s_nop 7")
    pack_tile32(a, ACC1, 8)
    a.e("s_nop 1")
    for g in range(2):
        a.e(f"buffer_store_dwordx4 v[{8+4*g}:{8+4*g+3}], v{PC_ST}, s[24:27], 0 offen offset:{g*32}{cfg.y_st}")
    a.label("L_pc_end")

def gen(cfg):
    a = Asm()
    K = NAME + "_kernel"
    a.raw(HDR.rstrip("\n"))
    a.raw(f"; @launch grid=(256,1,1) block=(512,1,1) lds=163840")
    a.raw('.amdgcn_target "amdgcn-amd-amdhsa--gfx950"')
    a.raw(".text")
    a.raw(f".globl {K}"); a.raw(".p2align 8"); a.raw(f".type {K},@function"); a.label(K)
    a.e("s_cmp_ge_u32 s2, 256")
    a.e("s_cbranch_scc1 L_exit")
    a.e("s_load_dwordx2 s[4:5], s[0:1], 0")
    a.e("s_load_dwordx2 s[6:7], s[0:1], 8")
    a.e("s_load_dwordx2 s[8:9], s[0:1], 16")
    a.e("s_load_dwordx2 s[10:11], s[0:1], 80")
    a.e("s_load_dwordx4 s[44:47], s[0:1], 24")
    a.e("s_load_dwordx4 s[48:51], s[0:1], 56")
    a.e("s_load_dwordx2 s[62:63], s[0:1], 72")
    wave_ids(a)
    ph_init(a, cfg)
    a.e("s_and_b32 s72, s2, 7")
    a.e("s_lshl_b32 s72, s72, 2")
    a.e("s_lshr_b32 s73, s2, 6")
    a.e("s_add_u32 s72, s72, s73")
    a.e("s_bfe_u32 s73, s2, 0x30003")
    a.e("s_bfe_u32 s88, s2, 0x10006")
    a.e("s_lshl_b32 s88, s88, 2")
    a.e("s_lshr_b32 s89, s2, 7")
    a.e("s_lshl_b32 s89, s89, 1")
    a.e("s_add_u32 s88, s88, s89")
    a.e("s_add_u32 s88, s88, s73")
    a.e("s_and_b32 s88, s88, 7")
    if not cfg.yrot_stag: a.e("s_mov_b32 s88, s73")
    a.e("s_mov_b32 s58, 524288")
    a.e("s_mov_b32 s59, 0x00020000")
    a.e("s_cmp_ge_u32 s2, 128")
    a.e("s_cbranch_scc1 L_partb")
    k_big(a, cfg)
    a.label("L_partb")
    k_attn(a, cfg)
    phase_c(a, cfg)
    ph_dump(a, cfg, [(0, 0), (4, 131072), (7, 65536)])
    a.label("L_exit")
    a.e("s_endpgm")
    a.raw('.section .rodata,"a"')
    for l in kdesc(K, 256): a.raw(l)
    return a.text()

def mk(name, cdp=2048, op=1024, **kw):
    global CDP, OP
    CDP, OP = cdp, op
    cfg = Cfg()
    for k, v in kw.items(): setattr(cfg, k, v)
    open(name, "w").write(gen(cfg))

if __name__ == "__main__":
    mk("v12.s")
    mk("r_a.s", ytweak=False)
    mk("r_b.s")
    mk("r_c.s", prio=1)
    mk("r_d.s", poll_sleep=1)
    mk("r_e.s", pb_delay=True)
    mk("r_f.s", prio=1, pb_delay=True, poll_sleep=1)
    mk("g_base.s", phases=True)
    mk("g_prio.s", phases=True, prio=1)
```

```python
import sys
from asmlib import *
NAME = "concat_heads__spectral_fnet__sliding_local_dilated__prompt"
HDR = open("cdna_kernels/%s.s.ref" % NAME).read().split("; Override launch")[0]

WS_CD = 0
WS_O = 5 << 20
CDP = 2048
OP = 1024
FSTR = 4352
WS_FC = 8 << 20
WS_FO = WS_FC + 16*FSTR
WS_BYTES = (8 << 20) + 32*FSTR

U = 8192
WD_UNIT = [0,1,2,3, 8,9,10,11, 12,13,14,15, 0,1,2,3]
RING = [4*U, 6*U, 16*U, 18*U]

class Cfg:
    S1 = 5
    SB = 3
    phases = False
    look = 1
    pf_early = {-1: [("x",0)], 0: [("w",2)], 1: [("x",2)], 2: [("w",3)], 3: [("x",3)], 4: [("w",4)], 5: [("x",4)]}
    pf_late = [("w",5),("x",5),("w",6),("x",6),("w",7),("x",7)]
    pf_nt_upto = -1
    pf_weights = False
    flag_at = 0
    poll_sleep = 2
    wo_at = 'late'
    nt_xb0 = False
    code_pf = False
    pb_delay = False
    ep_overlap = True
    ytweak = True
    early_addr = True
    v32 = True
    pf_wo = 0
    prio = 0
    fake16 = False
    xrot = 0
    nbx = 0
    out_st = ''
    y_st = ''
    yrot_stag = True
    ld_sc1 = False
    wd_early = False
    st_mode = ' sc1'
    nt_lead_upto = -1

def wave_ids(a):
    a.e("v_lshrrev_b32 v1, 6, v0")
    a.e("s_nop 0")
    a.e("v_readfirstlane_b32 s3, v1")
    a.e("v_and_b32 v1, 63, v0")

def ph_init(a, cfg):
    if not cfg.phases: return
    a.e("v_mov_b32 v240, 0")
    a.e("s_memrealtime s[80:81]")
    a.e("s_memtime s[84:85]")
    a.e("s_waitcnt lgkmcnt(0)")
    a.e("v_writelane_b32 v240, s80, 60")
    a.e("v_writelane_b32 v240, s84, 61")
    a.e("s_mov_b32 s82, 0")
def ph_stamp(a, cfg, idx):
    if not cfg.phases: return
    a.e("s_memtime s[80:81]")
    a.e("s_waitcnt lgkmcnt(0)")
    a.e(f"v_writelane_b32 v240, s80, {idx}")
def ph_rt(a, cfg, idx):
    if not cfg.phases: return
    a.e("s_memrealtime s[80:81]")
    a.e("s_waitcnt lgkmcnt(0)")
    a.e(f"v_writelane_b32 v240, s80, {idx}")
def ph_stamp_seq(a, cfg):
    if not cfg.phases: return
    a.e("s_memtime s[80:81]")
    a.e("s_waitcnt lgkmcnt(0)")
    a.e("v_mov_b32 v242, s80")
    a.e("v_cmp_eq_u32 vcc, s82, v1")
    a.e("s_nop 1")
    a.e("v_cndmask_b32 v240, v240, v242, vcc")
    a.e("s_add_u32 s82, s82, 1")
def ph_dump(a, cfg, waves_offs):
    if not cfg.phases: return
    for wave, off in waves_offs:
        L = a.newlabel("L_pd")
        a.e(f"s_cmp_lg_u32 s3, {wave}")
        a.e(f"s_cbranch_scc1 {L}")
        a.e("s_waitcnt vmcnt(0)")
        a.e("s_memrealtime s[80:81]")
        a.e("s_memtime s[84:85]")
        a.e("s_load_dwordx2 s[86:87], s[0:1], 80")
        a.e("s_waitcnt lgkmcnt(0)")
        a.e("v_writelane_b32 v240, s80, 62")
        a.e("v_writelane_b32 v240, s84, 63")
        a.e(f"s_add_u32 s92, s86, {0x3000000 + off}")
        a.e("s_addc_u32 s93, s87, 0")
        a.e("s_mov_b32 s94, 0x100000")
        a.e("s_mov_b32 s95, 0x00020000")
        a.e("s_lshl_b32 s90, s2, 8")
        a.e("v_lshl_add_u32 v241, v1, 2, s90")
        a.e("buffer_store_dword v240, v241, s[92:95], 0 offen")
        a.label(L)

def pack_tile32(a, acc, tmp, xorreg=None):
    for g in range(4):
        a.e(f"v_cvt_pk_bf16_f32 v{tmp+2*g}, v{acc+4*g}, v{acc+4*g+1}")
        a.e(f"v_cvt_pk_bf16_f32 v{tmp+2*g+1}, v{acc+4*g+2}, v{acc+4*g+3}")
    if xorreg is not None:
        for i in range(8):
            a.e(f"v_xor_b32 v{tmp+i}, s{xorreg}, v{tmp+i}")
    a.e("s_nop 1")
    for g in (0, 2):
        a.e(f"v_permlane32_swap_b32 v{tmp+2*g}, v{tmp+2*g+2}")
        a.e(f"v_permlane32_swap_b32 v{tmp+2*g+1}, v{tmp+2*g+3}")

NONCE_V = 232

def nonce_issue(a):
    a.e("v_mov_b32 v234, 0")
    a.e(f"buffer_load_dwordx2 v[{NONCE_V}:{NONCE_V+1}], v234, s[68:71], 0 offen sc1")
def nonce_get(a):
    L = a.newlabel("L_nn"); D = a.newlabel("L_nd")
    a.label(L)
    a.e("s_waitcnt vmcnt(0)")
    a.e(f"v_readfirstlane_b32 s74, v{NONCE_V}")
    a.e(f"v_readfirstlane_b32 s75, v{NONCE_V+1}")
    a.e("s_nop 0")
    a.e("s_cmp_lg_u32 s74, 0")
    a.e(f"s_cbranch_scc1 {D}")
    a.e(f"buffer_load_dwordx2 v[{NONCE_V}:{NONCE_V+1}], v234, s[68:71], 0 offen sc1")
    a.e(f"s_branch {L}")
    a.label(D)
def flag_store(a, soff_reg):
    a.e("v_mov_b32 v230, s74")
    a.e("v_mov_b32 v231, s75")
    a.e("v_mov_b32 v234, 0")
    a.e("s_mov_b64 exec, 1")
    a.e(f"buffer_store_dwordx2 v[230:231], v234, s[64:67], s{soff_reg} offen sc1")
    a.e("s_mov_b64 exec, -1")
def flag_poll(a, voff, cfg):
    L = a.newlabel("L_poll"); L0 = a.newlabel("L_poll0")
    a.e(f"s_branch {L0}")
    a.label(L)
    if cfg.poll_sleep: a.e(f"s_sleep {cfg.poll_sleep}")
    a.label(L0)
    a.e(f"buffer_load_dwordx2 v[228:229], v{voff}, s[64:67], 0 offen sc1")
    a.e("s_waitcnt vmcnt(0)")
    a.e("v_cmp_eq_u32 s[76:77], s74, v228")
    a.e("v_cmp_eq_u32 s[78:79], s75, v229")
    a.e("s_nop 1")
    a.e("s_and_b64 s[76:77], s[76:77], s[78:79]")
    a.e("s_cmp_eq_u64 s[76:77], -1")
    a.e(f"s_cbranch_scc0 {L}")

PA = 200
def pc_loader_setup(a):
    a.e("s_sub_u32 s18, s3, 4")
    a.e("v_lshrrev_b32 v2, 3, v1")
    a.e("v_and_b32 v3, 7, v1")
    a.e("v_lshrrev_b32 v4, 4, v1")
    a.e("v_xor_b32 v3, v3, v4")
    a.e("v_xor_b32 v5, 4, v3")
    a.e("s_lshl_b32 s19, s18, 4")
    a.e("v_add_u32 v2, s19, v2")
    a.e("s_lshl_b32 s19, s73, 6")
    a.e("v_add_u32 v6, s19, v2")
    a.e("v_lshlrev_b32 v6, 10, v6")
    a.e(f"v_lshl_add_u32 v{PA}, v3, 4, v6")
    a.e(f"v_lshl_add_u32 v{PA+1}, v5, 4, v6")
    a.e(f"v_add_u32 v{PA+1}, {8*1024-1024}, v{PA+1}")
    a.e("s_lshl_b32 s19, s72, 6")
    a.e("v_add_u32 v6, s19, v2")
    a.e(f"s_movk_i32 s19, {CDP}")
    a.e("v_mul_lo_u32 v7, v6, s19")
    a.e(f"v_lshl_add_u32 v{PA+2}, v3, 4, v7")
    a.e(f"v_lshl_add_u32 v{PA+3}, v5, 4, v7")
    a.e(f"v_add_u32 v{PA+3}, {8*CDP-1024}, v{PA+3}")
    a.e("s_lshr_b32 s19, s72, 1")
    a.e(f"s_mul_i32 s22, s19, {FSTR}")
    a.e(f"s_add_u32 s22, s22, {WS_FC}")
    a.e("v_and_b32 v3, 31, v1")
    a.e(f"v_lshl_add_u32 v{PA+8}, v3, 3, s22")
    a.e("s_lshl_b32 s52, s18, 11")

def op_loader_setup(a):
    a.e("s_sub_u32 s18, s3, 4")
    a.e("v_lshrrev_b32 v2, 3, v1")
    a.e("v_and_b32 v3, 7, v1")
    a.e("v_lshrrev_b32 v4, 4, v1")
    a.e("v_xor_b32 v3, v3, v4")
    a.e("v_xor_b32 v5, 4, v3")
    a.e("s_lshl_b32 s19, s18, 5")
    a.e("s_lshl_b32 s22, s15, 7")
    a.e("s_add_u32 s19, s19, s22")
    a.e("v_add_u32 v6, s19, v2")
    a.e(f"s_movk_i32 s19, {OP}")
    a.e("v_mul_lo_u32 v6, v6, s19")
    a.e(f"v_add_u32 v6, {WS_O}, v6")
    a.e("v_lshl_add_u32 v7, v5, 4, v6")
    a.e("v_lshl_add_u32 v6, v3, 4, v6")
    for j in range(4):
        a.e(f"v_add_u32 v{190+j}, {j*8*OP - j*1024}, v{6 if j%2==0 else 7}")
    a.e("s_lshl_b32 s19, s18, 4")
    a.e("v_add_u32 v2, s19, v2")
    a.e("v_and_b32 v3, 7, v1")
    a.e("v_bfe_u32 v4, v1, 4, 1")
    a.e("v_lshlrev_b32 v4, 2, v4")
    a.e("v_xor_b32 v3, v3, v4")
    a.e("v_lshlrev_b32 v6, 10, v2")
    a.e("v_lshl_add_u32 v6, v3, 4, v6")
    a.e("s_lshl_b32 s19, s16, 7")
    a.e(f"v_add_u32 v{PA+6}, s19, v6")
    a.e(f"v_add_u32 v{PA+7}, {8*1024-1024}, v{PA+6}")
    a.e(f"s_mul_i32 s22, s15, {FSTR}")
    a.e(f"s_add_u32 s22, s22, {WS_FO}")
    a.e("v_and_b32 v3, 7, v1")
    a.e(f"v_lshl_add_u32 v{PA+9}, v3, 3, s22")
    srd(a, 36, 48, 49, 512*512*2)

def wo_issue(a, i):
    a.e(f"s_add_u32 s53, s17, {i}")
    a.e("s_and_b32 s53, s53, 7")
    a.e("s_lshl_b32 s53, s53, 16")
    a.e(f"s_add_u32 m0, s52, {(8+i)*U}")
    a.e("s_nop 0")
    a.e(f"buffer_load_dwordx4 v{PA+6}, s[36:39], s53 offen lds")
    a.e(f"buffer_load_dwordx4 v{PA+7}, s[36:39], s53 offen offset:1024 lds")

def wd_issue(a, pos):
    a.e("s_lshl_b32 s53, s88, 1")
    a.e(f"s_add_u32 s53, s53, {pos}")
    a.e("s_bitcmp1_b32 s53, 3")
    a.e("s_cselect_b32 s56, s46, s44")
    a.e("s_cselect_b32 s57, s47, s45")
    a.e("s_and_b32 s53, s53, 7")
    a.e("s_lshl_b32 s53, s53, 7")
    a.e(f"s_add_u32 m0, s52, {WD_UNIT[pos]*U}")
    a.e("s_nop 0")
    a.e(f"buffer_load_dwordx4 v{PA}, s[56:59], s53 offen lds")
    a.e(f"buffer_load_dwordx4 v{PA+1}, s[56:59], s53 offen offset:1024 lds")

def k_big(a, cfg):
    S = cfg.S1; STG = 32768; NST = 32
    assert S == 5
    a.c("---- big GEMM role: xcd=s2&7, i=s2>>3 (0..15)")
    a.e("s_and_b32 s12, s2, 7")
    a.e("s_lshr_b32 s13, s2, 3")
    a.e("s_lshr_b32 s14, s13, 3")
    a.e("s_bfe_u32 s15, s13, 0x10002")
    a.e("s_lshl_b32 s12, s12, 1")
    a.e("s_add_u32 s15, s15, s12")
    a.e("s_and_b32 s16, s13, 3")
    if cfg.nbx: a.e(f"s_xor_b32 s16, s16, {cfg.nbx}")
    a.e("s_lshr_b32 s17, s13, 2")
    a.e("s_add_u32 s17, s17, s16")
    a.e("s_and_b32 s17, s17, 3")
    a.e("s_cmp_ge_u32 s3, 4")
    a.e("s_cbranch_scc0 L_big_cons")
    a.e("s_sub_u32 s18, s3, 4")
    a.e("v_lshrrev_b32 v2, 4, v1")
    a.e("v_and_b32 v3, 15, v1")
    a.e("v_lshlrev_b32 v4, 2, v2")
    a.e("v_xor_b32 v3, v3, v4")
    a.e("s_lshl_b32 s19, s18, 4")
    a.e("v_add_u32 v4, s19, v2")
    a.e("v_lshlrev_b32 v4, 10, v4")
    a.e("v_lshl_add_u32 v4, v3, 4, v4")
    a.e("s_lshl_b32 s19, s16, 8")
    a.e("v_add_u32 v4, s19, v4")
    for j in range(4):
        a.e(f"v_add_u32 v{10+j}, {j*4096 - j*1024}, v4")
    a.e("v_lshrrev_b32 v4, 3, v1")
    a.e("v_and_b32 v3, 7, v1")
    a.e("v_xor_b32 v3, v3, v2")
    a.e("v_xor_b32 v5, 4, v3")
    a.e("s_lshl_b32 s19, s18, 5")
    a.e("s_lshl_b32 s22, s15, 7")
    a.e("s_add_u32 s19, s19, s22")
    a.e("v_add_u32 v4, s19, v4")
    a.e("v_lshlrev_b32 v4, 12, v4")
    a.e("v_lshl_add_u32 v6, v3, 4, v4")
    a.e("v_lshl_add_u32 v7, v5, 4, v4")
    for j in range(4):
        a.e(f"v_add_u32 v{14+j}, {j*8*4096 - j*1024}, v{6 if j%2==0 else 7}")
    L = cfg.look; NF = 4*(8-L)
    a.e(f"v_add_u32 v20, {-L}, v1")
    a.e("v_and_b32 v21, 3, v20")
    a.e("v_and_b32 v22, -4, v20")
    a.e("v_cmp_lt_u32 vcc, s17, v21")
    a.e("s_nop 1")
    a.e("v_subbrev_co_u32 v25, vcc, 0, v21, vcc")
    a.e(f"v_add_u32 v26, {-NF}, v20")
    a.e("v_mul_u32_u24 v27, 11, v26")
    a.e("v_lshrrev_b32 v27, 5, v27")
    a.e("v_mul_u32_u24 v28, 3, v27")
    a.e("v_sub_u32 v28, v26, v28")
    a.e(f"v_lshl_add_u32 v27, v27, 2, {NF}")
    a.e(f"v_cmp_le_u32 vcc, {NF+L}, v1")
    a.e("v_mov_b32 v29, -1")
    a.e("s_nop 0")
    a.e("v_cndmask_b32 v22, v22, v27, vcc")
    a.e("v_cndmask_b32 v25, v25, v28, vcc")
    a.e("v_cndmask_b32 v21, v21, v29, vcc")
    a.e("s_add_u32 s36, s17, 1")
    a.e("v_add_u32 v23, s36, v25")
    a.e("v_and_b32 v23, 3, v23")
    a.e("v_add_u32 v23, v22, v23")
    a.e(f"s_add_u32 s36, s17, {4*L + 32}")
    a.e("v_add_u32 v24, s36, v22")
    a.e("v_cmp_eq_u32 vcc, s17, v21")
    a.e("s_nop 1")
    a.e("v_cndmask_b32 v23, v23, v24, vcc")
    a.e("s_add_u32 s36, s17, 32")
    a.e("v_lshl_add_u32 v24, v1, 2, s36")
    a.e(f"v_cmp_gt_u32 vcc, {L}, v1")
    a.e("s_nop 1")
    a.e("v_cndmask_b32 v23, v23, v24, vcc")
    if cfg.nt_lead_upto >= 0:
        a.e("v_and_b32 v24, 31, v23")
        a.e(f"v_cmp_lt_u32 vcc, {32 + 4*cfg.nt_lead_upto + 3}, v23")
        a.e("s_nop 1")
        a.e("v_cndmask_b32 v23, v23, v24, vcc")
    a.e("s_mov_b32 s36, 0")
    a.e(f"s_mul_i32 s39, s12, {2*cfg.xrot}")
    a.e("s_lshl_b32 s34, s18, 12")
    a.e("s_add_u32 s35, s34, 16384")
    a.e("s_mov_b32 s20, 0")
    def nextk():
        a.e("v_readlane_b32 s37, v23, s36")
        a.e("s_add_u32 s36, s36, 1")
        a.e("s_and_b32 s36, s36, 31")
        a.e("s_add_u32 s38, s37, s39")
        a.e("s_and_b32 s38, s38, 31")
        a.e("s_lshl_b32 s32, s38, 16")
        a.e("s_lshl_b32 s33, s38, 7")
    nextk()
    a.e("s_waitcnt lgkmcnt(0)")
    srd(a, 24, 4, 5, 2048*512*2)
    a.e("s_cmp_eq_u32 s14, 0")
    a.e("s_cselect_b32 s28, s6, s8")
    a.e("s_cselect_b32 s29, s7, s9")
    a.e(f"s_mov_b32 s30, {2048*2048*2}")
    a.e("s_mov_b32 s31, 0x00020000")
    def issue():
        a.e("s_add_u32 m0, s20, s35")
        if cfg.nt_lead_upto >= 0:
            La = a.newlabel("L_nt"); Lb = a.newlabel("L_ntd")
            a.e("s_bitcmp1_b32 s37, 5")
            a.e(f"s_cbranch_scc1 {La}")
            for j in range(4):
                a.e(f"buffer_load_dwordx4 v{14+j}, s[28:31], s33 offen offset:{j*1024} lds")
            a.e(f"s_branch {Lb}")
            a.label(La)
            for j in range(4):
                a.e(f"buffer_load_dwordx4 v{14+j}, s[28:31], s33 offen offset:{j*1024} nt lds")
            a.label(Lb)
        else:
            a.e("s_nop 0")
            for j in range(4):
                a.e(f"buffer_load_dwordx4 v{14+j}, s[28:31], s33 offen offset:{j*1024} lds")
        a.e("s_add_u32 m0, s20, s34")
        a.e("s_nop 0")
        for j in range(4):
            a.e(f"buffer_load_dwordx4 v{10+j}, s[24:27], s32 offen offset:{j*1024} lds")
    def advance():
        nextk()
        a.e(f"s_add_u32 s20, s20, {STG}")
        a.e(f"s_cmp_ge_u32 s20, {STG*S}")
        a.e("s_cselect_b32 s20, 0, s20")
    P = S - 1
    ph_stamp(a, cfg, 32)
    for i in range(P):
        issue(); advance()
        if i == 0: ph_stamp(a, cfg, 33)
    common_srds(a)
    pc_loader_setup(a)
    a.e(f"s_mov_b32 s21, {NST-P}")
    a.label("L_big_ld")
    a.e(f"s_waitcnt vmcnt({8*(P-1)})")
    a.e("s_barrier")
    issue(); advance()
    ph_stamp_seq(a, cfg)
    a.e("s_sub_u32 s21, s21, 1")
    a.e("s_cmp_lg_u32 s21, 0")
    a.e("s_cbranch_scc1 L_big_ld")
    a.e("s_waitcnt vmcnt(24)")
    a.e("s_barrier")
    for pos in (4,5,6,7): wd_issue(a, pos)
    nonce_issue(a)
    ph_stamp_seq(a, cfg)
    a.e("s_waitcnt vmcnt(25)")
    a.e("s_barrier")
    ph_stamp_seq(a, cfg)
    a.e("s_waitcnt vmcnt(17)")
    a.e("s_barrier")
    ph_stamp_seq(a, cfg)
    a.e("s_waitcnt vmcnt(9)")
    a.e("s_barrier")
    ph_stamp_seq(a, cfg)
    for pos in (8,9,10,11,0,1,2,3): wd_issue(a, pos)
    nonce_get(a)
    ph_stamp(a, cfg, 44)
    a.e("s_barrier")
    a.e("s_branch L_y_loader")
    a.label("L_big_cons")
    if cfg.prio: a.e(f"s_setprio {cfg.prio}")
    if cfg.code_pf:
        a.e("s_cmp_ge_u32 s2, 16")
        a.e("s_cbranch_scc1 L_nocpf")
        a.e("s_cmp_eq_u32 s3, 0")
        a.e("s_cbranch_scc1 L_nocpf")
        a.e("s_getpc_b64 s[22:23]")
        a.label("L_pcref")
        a.e(f"s_sub_u32 s22, s22, L_pcref-{NAME}_kernel")
        a.e("s_subb_u32 s23, s23, 0")
        a.e("s_sub_u32 s18, s3, 1")
        a.e("s_lshl_b32 s18, s18, 13")
        a.e("v_lshl_add_u32 v2, v1, 7, s18")
        a.e(f"v_min_u32 v2, L_exit-{NAME}_kernel, v2")
        a.e("global_load_dword v239, v2, s[22:23]")
        a.label("L_nocpf")
    pc_cons_setup(a)
    ACC = 64
    BA, BB = 10, 12
    CA, CB = 16, 18
    a.e("s_and_b32 s18, s3, 1")
    a.e("s_lshr_b32 s19, s3, 1")
    a.e("v_bfe_u32 v2, v1, 2, 2")
    a.e("v_and_b32 v3, 3, v1")
    a.e("v_bfe_u32 v4, v1, 4, 1")
    a.e("v_lshrrev_b32 v5, 5, v1")
    a.e("v_lshlrev_b32 v6, 8, v2")
    a.e("v_lshl_add_u32 v6, v5, 11, v6")
    a.e("v_lshl_add_u32 v6, v4, 5, v6")
    a.e("v_lshl_add_u32 v6, v3, 3, v6")
    a.e("s_lshl_b32 s22, s18, 1")
    for j in range(2):
        a.e(f"s_add_u32 s23, s22, {j}")
        a.e("v_xor_b32 v7, s23, v2")
        a.e(f"v_lshl_add_u32 v{BA+j}, v7, 6, v6")
    a.e("v_and_b32 v2, 31, v1")
    a.e("s_lshl_b32 s22, s19, 6")
    a.e("v_add_u32 v2, s22, v2")
    a.e("v_bfe_u32 v3, v2, 1, 3")
    a.e("v_xor_b32 v3, v3, v5")
    a.e("v_lshlrev_b32 v4, 7, v2")
    a.e("v_add_u32 v4, 16384, v4")
    for ks in range(4):
        a.e(f"v_xor_b32 v6, {ks*2}, v3")
        a.e(f"v_lshl_add_u32 v{BB+ks}, v6, 4, v4")
    a.e("v_and_b32 v2, 31, v1")
    a.e("v_and_b32 v3, 7, v2")
    a.e("v_xor_b32 v3, v3, v5")
    a.e("v_lshlrev_b32 v4, 7, v2")
    a.e("s_lshl_b32 s22, s3, 13")
    a.e(f"s_add_u32 s22, s22, {16*U}")
    a.e("v_add_u32 v4, s22, v4")
    for q in range(4):
        a.e(f"v_xor_b32 v6, {q*2}, v3")
        a.e(f"v_lshl_add_u32 v{24+q}, v6, 4, v4")
    a.e("v_lshrrev_b32 v2, 3, v1")
    a.e("v_and_b32 v3, 7, v1")
    a.e("v_xor_b32 v4, v3, v2")
    a.e("v_lshlrev_b32 v6, 7, v2")
    a.e("v_lshl_add_u32 v6, v4, 4, v6")
    a.e("v_add_u32 v28, s22, v6")
    a.e("s_lshl_b32 s22, s15, 7")
    a.e("s_lshl_b32 s23, s19, 6")
    a.e("s_add_u32 s22, s22, s23")
    a.e("v_add_u32 v2, s22, v2")
    a.e(f"s_movk_i32 s22, {CDP}")
    a.e("v_mul_lo_u32 v2, v2, s22")
    a.e("v_lshl_add_u32 v2, v3, 4, v2")
    a.e("s_lshl_b32 s22, s14, 10")
    a.e("s_lshl_b32 s23, s16, 8")
    a.e("s_add_u32 s22, s22, s23")
    a.e("s_lshl_b32 s23, s18, 7")
    a.e("s_add_u32 s22, s22, s23")
    a.e("v_add_u32 v29, s22, v2")
    for i in range(64):
        a.e(f"v_mov_b32 v{ACC+i}, 0")
    a.e("s_mov_b32 s20, 0")
    def setaddr_l():
        l = [f"v_add_u32 v{CA+j}, s20, v{BA+j}" for j in range(2)] + [f"v_add_u32 v{CB+k}, s20, v{BB+k}" for k in range(4)]
        l += [f"s_add_u32 s20, s20, {STG}", f"s_cmp_ge_u32 s20, {STG*S}", "s_cselect_b32 s20, 0, s20"]
        return l
    def reads(F, ks):
        r = []
        r.append(f"ds_read_b128 v[{F+8}:{F+11}], v{CB+ks}")
        for u in range(2):
            r.append(f"ds_read_b64_tr_b16 v[{F+2*u}:{F+2*u+1}], v{CA} offset:{(ks*16+u*4)*256}")
        r.append(f"ds_read_b128 v[{F+12}:{F+15}], v{CB+ks} offset:4096")
        for u in range(2):
            r.append(f"ds_read_b64_tr_b16 v[{F+4+2*u}:{F+4+2*u+1}], v{CA+1} offset:{(ks*16+u*4)*256}")
        return r
    def mfmas(F):
        m = []
        for (jm, jn) in ((0,0),(0,1),(1,0),(1,1)):
            d = ACC + (jm*2+jn)*16
            if cfg.fake16:
                fk[0] = (fk[0] + 1) % 2
                d2 = d + 8*fk[0]
                m.append(f"v_mfma_f32_16x16x32_bf16 v[{d2}:{d2+3}], v[{F+4*jm}:{F+4*jm+3}], v[{F+8+4*jn}:{F+8+4*jn+3}], v[{d2}:{d2+3}]\n  v_mfma_f32_16x16x32_bf16 v[{d2+4}:{d2+7}], v[{F+4*jm}:{F+4*jm+3}], v[{F+8+4*(1-jn)}:{F+8+4*(1-jn)+3}], v[{d2+4}:{d2+7}]")
            else:
                m.append(f"v_mfma_f32_32x32x16_bf16 v[{d}:{d+15}], v[{F+4*jm}:{F+4*jm+3}], v[{F+8+4*jn}:{F+8+4*jn+3}], v[{d}:{d+15}]")
        return m
    fk = [0]
    FS = [128, 144, 160, 176]
    def mix(m, r, pre=()):
        return [m[0]] + list(pre) + r[0:3] + [m[1]] + r[3:6] + [m[2], m[3]]
    a.e("s_waitcnt lgkmcnt(0)")
    common_srds(a)
    a.e("s_or_b32 s22, s2, s3")
    a.e("s_cmp_lg_u32 s22, 0")
    a.e("s_cbranch_scc1 L_no_pub")
    a.e("s_memrealtime s[22:23]")
    a.e("s_waitcnt lgkmcnt(0)")
    a.e("s_or_b32 s22, s22, 1")
    a.e("v_mov_b32 v230, s22")
    a.e("v_mov_b32 v231, s23")
    a.e("v_mov_b32 v234, 0")
    a.e("s_mov_b64 exec, 1")
    a.e("buffer_store_dwordx2 v[230:231], v234, s[68:71], 0 offen sc1")
    a.e("s_mov_b64 exec, -1")
    a.label("L_no_pub")
    ph_stamp(a, cfg, 0)
    a.e("s_barrier")
    ph_stamp(a, cfg, 1)
    for x in setaddr_l(): a.e(x)
    for x in reads(FS[0], 0): a.e(x)
    for x in reads(FS[1], 1): a.e(x)
    a.e(f"s_mov_b32 s21, {NST-1}")
    a.label("L_big_loop")
    a.e("s_waitcnt lgkmcnt(6)")
    for x in mix(mfmas(FS[0]), reads(FS[2], 2)): a.e(x)
    a.e("s_waitcnt lgkmcnt(6)")
    if cfg.early_addr:
        m = mfmas(FS[1]); r = reads(FS[3], 3); sa = setaddr_l()
        for x in [m[0]] + r[0:3] + [m[1]] + r[3:6] + [m[2]] + sa[0:5] + [m[3]] + sa[5:] + ["s_sub_u32 s21, s21, 1"]: a.e(x)
        a.e("s_waitcnt lgkmcnt(0)")
        for x in mix(mfmas(FS[2]), reads(FS[0], 0), pre=["s_barrier"]): a.e(x)
        m = mfmas(FS[3]); r = reads(FS[1], 1)
        for x in [m[0]] + r[0:3] + [m[1]] + r[3:6] + [m[2], "s_cmp_lg_u32 s21, 0", m[3]]: a.e(x)
    else:
        for x in mix(mfmas(FS[1]), reads(FS[3], 3)): a.e(x)
        a.e("s_waitcnt lgkmcnt(0)")
        for x in mix(mfmas(FS[2]), reads(FS[0], 0), pre=["s_barrier"] + setaddr_l()): a.e(x)
        for x in mix(mfmas(FS[3]), reads(FS[1], 1)): a.e(x)
        a.e("s_sub_u32 s21, s21, 1")
        a.e("s_cmp_lg_u32 s21, 0")
    a.e("s_cbranch_scc1 L_big_loop")
    nonce_issue(a)
    a.e("s_waitcnt lgkmcnt(6)")
    for x in mix(mfmas(FS[0]), reads(FS[2], 2)): a.e(x)
    a.e("s_waitcnt lgkmcnt(6)")
    for x in mix(mfmas(FS[1]), reads(FS[3], 3)): a.e(x)
    a.e("s_cmp_eq_u32 s14, 0")
    a.e("s_cselect_b32 s22, 0, 0x80008000")
    order = [(0,0),(1,0),(0,1),(1,1)]
    def ep_tile(t):
        jm, jn = order[t]
        tmp = 32 + 8*t
        sub = Asm()
        pack_tile32(sub, ACC+(jm*2+jn)*16, tmp, xorreg=22)
        sub.e("s_nop 0")
        for g in range(2):
            sub.e(f"ds_write_b128 v{24+jm*2+g}, v[{tmp+4*g}:{tmp+4*g+3}] offset:{jn*4096}")
        if jm == 1:
            for q in range(4*jn, 4*jn+4):
                sub.e(f"ds_read_b128 v[{128+4*q}:{131+4*q}], v28 offset:{q*1024}")
        return [l.strip() for l in sub.lines]
    m2 = mfmas(FS[2]); m3 = mfmas(FS[3])
    idx = {(0,0):0,(0,1):1,(1,0):2,(1,1):3}
    if cfg.ep_overlap:
        a.e("s_waitcnt lgkmcnt(0)")
        seq = []
        for t in range(4):
            seq += [m2[idx[order[t]]], m3[idx[order[t]]]]
        for x in seq[0:4]: a.e(x)
        a.e(seq[4]); a.e("s_nop 7"); a.e("s_nop 1")
        e0 = ep_tile(0)
        for x in e0[:12]: a.e(x)
        a.e(seq[5])
        for x in e0[12:]: a.e(x)
        a.e(seq[6])
        e1 = ep_tile(1)
        for x in e1[:12]: a.e(x)
        a.e(seq[7])
        for x in e1[12:]: a.e(x)
        ph_stamp(a, cfg, 2)
        for x in ep_tile(2): a.e(x)
        for x in ep_tile(3): a.e(x)
    else:
        a.e("s_waitcnt lgkmcnt(6)")
        for x in m2: a.e(x)
        a.e("s_waitcnt lgkmcnt(0)")
        for x in m3: a.e(x)
        ph_stamp(a, cfg, 2)
        a.e("s_nop 7"); a.e("s_nop 3")
        for t in range(4):
            for x in ep_tile(t): a.e(x)
    ph_stamp(a, cfg, 3)
    a.e("s_mov_b32 s22, 0")
    for q in range(8):
        a.e(f"s_waitcnt lgkmcnt({7-q if q >= 4 else 0 + 8 + 3 - q})") if False else None
    for q in range(8):
        rem = (3 - q) + 8 if q < 4 else 7 - q
        a.e(f"s_waitcnt lgkmcnt({rem})")
        a.e(f"buffer_store_dwordx4 v[{128+4*q}:{131+4*q}], v29, s[64:67], s22 offen{cfg.st_mode}")
        if q < 7: a.e(f"s_add_u32 s22, s22, {8*CDP}")
    ph_stamp(a, cfg, 4)
    a.e("s_lshl_b32 s60, s14, 2")
    a.e("s_add_u32 s60, s60, s16")
    a.e("s_lshl_b32 s60, s60, 2")
    a.e("s_add_u32 s60, s60, s3")
    a.e("s_lshl_b32 s60, s60, 3")
    a.e(f"s_mul_i32 s22, s15, {FSTR}")
    a.e("s_add_u32 s60, s60, s22")
    a.e(f"s_add_u32 s60, s60, {WS_FC}")
    nonce_get(a)
    ph_rt(a, cfg, 36)
    flag_store(a, 60)
    ph_stamp(a, cfg, 5)
    a.e("s_barrier")
    a.e("s_branch L_y_cons")

def common_srds(a):
    srd(a, 64, 10, 11, WS_BYTES)
    srd(a, 68, 62, 63, 256)

def k_attn(a, cfg):
    S = cfg.SB; NST = 8
    AREG = 24576
    STG = AREG + 18*1024
    PITCH = 528 if cfg.v32 else 400
    a.c("---- part B role: xcd=s2&7, i=(s2>>3)-16")
    a.e("s_load_dwordx4 s[40:43], s[0:1], 40")
    a.e("s_and_b32 s12, s2, 7")
    a.e("s_lshr_b32 s13, s2, 3")
    a.e("s_sub_u32 s13, s13, 16")
    a.e("s_lshr_b32 s14, s13, 3")
    a.e("s_lshl_b32 s12, s12, 1")
    a.e("s_add_u32 s15, s12, s14")
    a.e("s_and_b32 s16, s13, 7")
    a.e("s_lshl_b32 s17, s14, 2")
    a.e("s_add_u32 s17, s17, s16")
    a.e("s_and_b32 s17, s17, 7")
    a.e("s_cmp_ge_u32 s3, 4")
    a.e("s_cbranch_scc0 L_att_cons")
    a.e("s_cmp_eq_u32 s3, 7")
    a.e("s_cbranch_scc1 L_att_pf")
    a.e("s_sub_u32 s18, s3, 4")
    a.e("v_lshrrev_b32 v2, 3, v1")
    a.e("v_and_b32 v3, 7, v1")
    a.e("v_bfe_u32 v4, v1, 4, 1")
    a.e("v_lshlrev_b32 v4, 1, v4")
    a.e("v_xor_b32 v3, v3, v4")
    a.e("v_xor_b32 v5, 4, v3")
    a.e("s_mov_b32 s22, 3072")
    a.e("v_mul_lo_u32 v2, v2, s22")
    a.e("s_lshl_b32 s19, s16, 7")
    a.e("s_lshl_b32 s22, s18, 10")
    a.e("s_add_u32 s19, s19, s22")
    a.e("v_add_u32 v2, s19, v2")
    a.e("v_lshl_add_u32 v6, v3, 4, v2")
    a.e("v_lshl_add_u32 v7, v5, 4, v2")
    for p in range(8):
        a.e(f"v_add_u32 v{10+p}, {p*8*3072 - (p%4)*1024}, v{6 if p%2==0 else 7}")
    a.e("v_lshrrev_b32 v2, 3, v1")
    a.e("v_and_b32 v3, 7, v1")
    a.e("v_lshrrev_b32 v4, 4, v1")
    a.e("v_xor_b32 v3, v3, v4")
    a.e("v_xor_b32 v5, 4, v3")
    a.e("s_lshl_b32 s19, s15, 7")
    a.e("s_sub_u32 s19, s19, 16")
    a.e("s_mul_i32 s22, s18, 48")
    a.e("s_add_u32 s19, s19, s22")
    a.e("v_add_u32 v2, s19, v2")
    a.e("v_lshlrev_b32 v2, 10, v2")
    a.e("v_lshl_add_u32 v6, v3, 4, v2")
    a.e("v_lshl_add_u32 v7, v5, 4, v2")
    for j in range(6):
        a.e(f"v_add_u32 v{20+j}, {j*8*1024}, v{6 if j%2==0 else 7}")
    a.e("s_mul_i32 s32, s17, 196608")
    a.e("s_lshl_b32 s33, s17, 7")
    a.e("s_lshl_b32 s34, s18, 13")
    a.e("s_mul_i32 s35, s18, 6144")
    a.e(f"s_add_u32 s35, s35, {AREG}")
    a.e("s_mov_b32 s20, 0")
    a.e("s_waitcnt lgkmcnt(0)")
    srd(a, 24, 42, 43, 512*1536*2)
    srd(a, 28, 40, 41, 2048*512*2)
    def issue(nt=""):
        a.e("s_add_u32 s37, s20, s35")
        for j in range(6):
            a.e(f"s_add_u32 m0, s37, {j*1024}")
            a.e("s_nop 0")
            a.e(f"buffer_load_dwordx4 v{20+j}, s[28:31], s33 offen{nt} lds")
        a.e("s_add_u32 s37, s20, s34")
        for hh in range(2):
            a.e(f"s_add_u32 m0, s37, {hh*4096}")
            a.e("s_nop 0")
            for p in range(4):
                a.e(f"buffer_load_dwordx4 v{10+hh*4+p}, s[24:27], s32 offen offset:{p*1024} lds")
    def advance():
        a.e("s_add_u32 s32, s32, 196608")
        a.e(f"s_cmp_ge_u32 s32, {512*3072}")
        a.e("s_cselect_b32 s32, 0, s32")
        a.e("s_add_u32 s33, s33, 128")
        a.e("s_and_b32 s33, s33, 0x3ff")
        a.e(f"s_add_u32 s20, s20, {STG}")
        a.e(f"s_cmp_ge_u32 s20, {STG*S}")
        a.e("s_cselect_b32 s20, 0, s20")
    P = S - 1
    if cfg.pb_delay: a.e("s_barrier")
    ph_stamp(a, cfg, 32)
    for i in range(P):
        issue(" nt" if (i == 0 and cfg.nt_xb0) else ""); advance()
        if i == 0: ph_stamp(a, cfg, 33)
    a.e(f"s_mov_b32 s21, {NST-P}")
    a.label("L_att_ld")
    a.e(f"s_waitcnt vmcnt({14*(P-1)})")
    a.e("s_barrier")
    issue(); advance()
    a.e("s_sub_u32 s21, s21, 1")
    a.e("s_cmp_lg_u32 s21, 0")
    a.e("s_cbranch_scc1 L_att_ld")
    for i in range(NST-P, NST):
        a.e(f"s_waitcnt vmcnt({14*(NST-1-i)})")
        a.e("s_barrier")
    a.label("L_att_e1")
    a.e("s_barrier")
    pc_loader_setup(a)
    op_loader_setup(a)
    a.e("s_barrier")
    if cfg.wo_at == 'e2':
        for i in range(8): wo_issue(a, i)
    a.e("s_branch L_att_attn")
    a.label("L_att_pf")
    a.e("s_bfe_u32 s18, s13, 0x10002")
    a.e("s_add_u32 s18, s18, s12")
    a.e("s_lshl_b32 s18, s18, 7")
    a.e("s_and_b32 s19, s13, 3")
    a.e("s_lshl_b32 s19, s19, 5")
    a.e("s_add_u32 s18, s18, s19")
    a.e("v_lshrrev_b32 v2, 2, v1")
    a.e("v_add_u32 v2, s18, v2")
    a.e("v_lshlrev_b32 v2, 12, v2")
    a.e("v_and_b32 v3, 3, v1")
    a.e("v_lshl_add_u32 v236, v3, 7, v2")
    a.e("v_add_u32 v237, 0x10000, v236")
    a.e("s_lshl_b32 s18, s13, 4")
    a.e("v_lshrrev_b32 v2, 3, v1")
    a.e("v_add_u32 v2, s18, v2")
    a.e("v_lshlrev_b32 v2, 10, v2")
    a.e("v_and_b32 v3, 7, v1")
    a.e("v_lshl_add_u32 v238, v3, 7, v2")
    a.e("v_add_u32 v239, 0x2000, v238")
    a.e("s_waitcnt lgkmcnt(0)")
    srd(a, 24, 4, 5, 2048*512*2)
    a.e("s_cmp_eq_u32 s14, 0")
    a.e("s_cselect_b32 s28, s6, s8")
    a.e("s_cselect_b32 s29, s7, s9")
    a.e(f"s_mov_b32 s30, {2048*2048*2}")
    a.e("s_mov_b32 s31, 0x00020000")
    a.e("s_lshr_b32 s34, s12, 1")
    a.e(f"s_mul_i32 s34, s34, {cfg.xrot}")
    TD = 244
    tcount = [0]
    def touch(kind, b):
        for h in (0, 1):
            d = TD + (tcount[0] % 8); tcount[0] += 1
            a.e(f"s_add_u32 s33, s34, {b}")
            a.e("s_and_b32 s33, s33, 7")
            if kind == "w":
                a.e("s_lshl_b32 s32, s33, 9")
                a.e(f"buffer_load_dword v{d}, v{236+h}, s[28:31], s32 offen" + (" nt" if b <= cfg.pf_nt_upto else ""))
            else:
                a.e("s_lshl_b32 s32, s33, 18")
                a.e(f"buffer_load_dword v{d}, v{238+h}, s[24:27], s32 offen")
    for (k, b) in cfg.pf_early.get(-1, []): touch(k, b)
    if cfg.pb_delay:
        a.e("s_waitcnt vmcnt(0)")
        a.e("s_barrier")
    for i in range(NST):
        a.e("s_barrier")
        for (k, b) in cfg.pf_early.get(i, []): touch(k, b)
        if cfg.pf_wo and i == cfg.pf_wo:
            srd(a, 36, 48, 49, 512*512*2)
            a.e("s_lshl_b32 s22, s13, 15")
            a.e("v_lshl_add_u32 v2, v1, 7, s22")
            for q in range(4):
                d = TD + (tcount[0] % 8); tcount[0] += 1
                a.e(f"s_movk_i32 s32, {q*8192}")
                a.e(f"buffer_load_dword v{d}, v2, s[36:39], s32 offen")
    for (k, b) in cfg.pf_late: touch(k, b)
    if cfg.pf_weights:
        a.e("s_lshl_b32 s22, s13, 15")
        a.e("v_lshl_add_u32 v2, v1, 7, s22")
        for m_ in range(3):
            srd(a, 32, 44+2*m_, 45+2*m_, 512*512*2)
            for q in range(4):
                d = TD + (tcount[0] % 8); tcount[0] += 1
                a.e(f"s_movk_i32 s36, {q*8192}")
                a.e(f"buffer_load_dword v{d}, v2, s[32:35], s36 offen")
    a.e("s_branch L_att_e1")
    a.label("L_att_cons")
    if cfg.prio: a.e(f"s_setprio {cfg.prio}")
    ACC = 128 - 8
    F0, F1 = 24, 72
    BA, BB = 10, 12
    CA, CB = 16, 18
    a.e("v_bfe_u32 v2, v1, 2, 2")
    a.e("v_and_b32 v3, 3, v1")
    a.e("v_lshrrev_b32 v4, 4, v1")
    a.e("v_lshrrev_b32 v5, 1, v2")
    a.e("v_and_b32 v6, 1, v4")
    a.e("v_lshl_or_b32 v5, v6, 1, v5")
    a.e("v_xor_b32 v5, s3, v5")
    a.e("v_lshlrev_b32 v6, 7, v2")
    a.e("v_lshl_add_u32 v6, v4, 10, v6")
    a.e("v_lshl_add_u32 v6, v5, 5, v6")
    a.e(f"v_lshl_add_u32 v{BA}, v3, 3, v6")
    a.e("v_and_b32 v2, 15, v1")
    a.e("v_lshrrev_b32 v3, 1, v2")
    a.e("v_xor_b32 v3, v3, v4")
    a.e("v_lshlrev_b32 v5, 7, v2")
    a.e(f"v_add_u32 v5, {AREG}, v5")
    for ks in range(2):
        a.e(f"v_xor_b32 v6, {ks*4}, v3")
        a.e(f"v_lshl_add_u32 v{BB+ks}, v6, 4, v5")
    a.e(f"s_mov_b32 s22, {PITCH}")
    a.e("v_mul_lo_u32 v8, v2, s22")
    a.e("v_lshl_add_u32 v8, v4, 3, v8")
    a.e("v_lshl_add_u32 v9, v4, 3, v8")
    a.e("s_lshl_b32 s22, s3, 5")
    a.e("v_add_u32 v8, s22, v8")
    a.e("s_lshl_b32 s22, s3, 6")
    a.e("v_add_u32 v9, s22, v9")
    for i in range(4, 108):
        a.e(f"v_mov_b32 v{ACC+i}, 0")
    a.e("s_mov_b32 s20, 0")
    def setaddr():
        a.e(f"v_add_u32 v{CA}, s20, v{BA}")
        for k in range(2): a.e(f"v_add_u32 v{CB+k}, s20, v{BB+k}")
        a.e(f"s_add_u32 s20, s20, {STG}")
        a.e(f"s_cmp_ge_u32 s20, {STG*S}")
        a.e("s_cselect_b32 s20, 0, s20")
    def reads(F, ks):
        r = []
        for seg in range(3):
            for u in range(2):
                r.append(f"ds_read_b64_tr_b16 v[{F+4*seg+2*u}:{F+4*seg+2*u+1}], v{CA} offset:{seg*8192 + (ks*32+u*4)*128}")
        for nt in range(9):
            r.append(f"ds_read_b128 v[{F+12+4*nt}:{F+12+4*nt+3}], v{CB+ks} offset:{nt*2048}")
        return r
    TL = [(nt, seg) for nt in range(9) for seg in range(3) if not (seg == 0 and nt == 0)]
    def mfmas(F):
        m = []
        for (nt, seg) in TL:
            d = ACC + (seg*9+nt)*4
            m.append(f"v_mfma_f32_16x16x32_bf16 v[{d}:{d+3}], v[{F+4*seg}:{F+4*seg+3}], v[{F+12+4*nt}:{F+12+4*nt+3}], v[{d}:{d+3}]")
        return m
    def interleave(m, r):
        out = []
        for i, x in enumerate(m):
            out.append(x)
            if i < len(r): out.append(r[i])
        return out
    a.e("s_waitcnt lgkmcnt(0)")
    ph_stamp(a, cfg, 0)
    if cfg.pb_delay: a.e("s_barrier")
    a.e("s_barrier")
    ph_stamp(a, cfg, 1)
    setaddr()
    for x in reads(F0, 0): a.e(x)
    a.e(f"s_mov_b32 s21, {NST}")
    a.label("L_att_loop")
    a.e("s_waitcnt lgkmcnt(0)")
    for x in interleave(mfmas(F0), reads(F1, 1)): a.e(x)
    a.e("s_waitcnt lgkmcnt(0)")
    a.e("s_sub_u32 s21, s21, 1")
    a.e("s_cmp_eq_u32 s21, 0")
    a.e("s_cbranch_scc1 L_att_last")
    a.e("s_barrier")
    setaddr()
    for x in interleave(mfmas(F1), reads(F0, 0)): a.e(x)
    a.e("s_branch L_att_loop")
    a.label("L_att_last")
    a.e("s_barrier")
    ph_stamp(a, cfg, 2)
    m = mfmas(F1)
    a.e(f"v_add_u32 v6, {4*16*PITCH}, v8")
    a.e(f"v_add_u32 v7, {4*16*PITCH}, v9")
    def wr(idx):
        nt, seg = TL[idx]
        d = ACC + (seg*9+nt)*4
        if seg == 2 and cfg.v32:
            tmp = F0 + 32 + 4*(nt % 4)
            t2 = F0 + 2*(idx % 16)
            return [f"v_cvt_pk_bf16_f32 v{t2}, v{d}, v{d+1}", f"v_cvt_pk_bf16_f32 v{t2+1}, v{d+2}, v{d+3}",
                    f"v_lshlrev_b32 v{tmp}, 16, v{t2}", f"v_and_b32 v{tmp+1}, 0xffff0000, v{t2}",
                    f"v_lshlrev_b32 v{tmp+2}, 16, v{t2+1}", f"v_and_b32 v{tmp+3}, 0xffff0000, v{t2+1}",
                    f"ds_write_b128 v{9 if nt < 4 else 7}, v[{tmp}:{tmp+3}] offset:{(nt%4 if nt >= 4 else nt)*16*PITCH + (nt//8)*4*16*PITCH + 256}"]
        tmp = F0 + 2*(idx % 16)
        return [f"v_cvt_pk_bf16_f32 v{tmp}, v{d}, v{d+1}", f"v_cvt_pk_bf16_f32 v{tmp+1}, v{d+2}, v{d+3}",
                f"ds_write_b64 v{8 if nt < 4 else 6}, v[{tmp}:{tmp+1}] offset:{(nt%4 if nt >= 4 else nt)*16*PITCH + (nt//8)*4*16*PITCH + seg*128}"]
    LAG = 9
    for i, x in enumerate(m):
        a.e(x)
        if i >= LAG:
            for y in wr(i-LAG): a.e(y)
    a.e("s_nop 7")
    for i in range(len(m)-LAG, len(m)):
        for y in wr(i): a.e(y)
    a.e("s_waitcnt lgkmcnt(0)")
    a.e("s_barrier")
    a.label("L_att_attn")
    common_srds(a)
    if cfg.wo_at == 'all8':
        srd(a, 36, 48, 49, 512*512*2)
        a.e("v_lshrrev_b32 v2, 3, v1")
        a.e("v_and_b32 v3, 7, v1")
        a.e("v_bfe_u32 v4, v1, 4, 1")
        a.e("v_lshlrev_b32 v4, 2, v4")
        a.e("v_xor_b32 v3, v3, v4")
        a.e("v_lshlrev_b32 v2, 10, v2")
        a.e("v_lshl_add_u32 v2, v3, 4, v2")
        a.e("s_lshl_b32 s19, s16, 7")
        a.e("v_add_u32 v2, s19, v2")
        a.e("s_add_u32 s53, s17, s3")
        a.e("s_and_b32 s53, s53, 7")
        a.e("s_lshl_b32 s53, s53, 16")
        a.e("s_lshl_b32 s22, s3, 13")
        a.e(f"s_add_u32 s22, s22, {8*U}")
        for p in range(8):
            a.e(f"s_add_u32 m0, s22, {p*1024}")
            a.e(f"s_add_u32 s23, s53, {p*8192}")
            a.e("buffer_load_dwordx4 v2, s[36:39], s23 offen lds")
    nonce_issue(a)
    a.e("s_and_b32 s18, s3, 3")
    a.e("s_lshr_b32 s19, s3, 2")
    a.e("s_lshl_b32 s19, s19, 6")
    a.e("v_add_u32 v2, s19, v1")
    a.e(f"s_mov_b32 s22, {PITCH}")
    a.e("v_mul_lo_u32 v3, v2, s22")
    a.e("s_lshl_b32 s22, s18, 5")
    a.e(f"s_add_u32 s22, s22, {2*PITCH}")
    a.e("v_add_u32 v3, s22, v3")
    Q = 8; KK = 16; VV = 80; LG = 144; O = 160; T = 180
    a.e(f"ds_read_b128 v[{Q}:{Q+3}], v3 offset:{14*PITCH}")
    a.e(f"ds_read_b128 v[{Q+4}:{Q+7}], v3 offset:{14*PITCH+16}")
    for w in range(8):
        a.e(f"ds_read_b128 v[{KK+8*w}:{KK+8*w+3}], v3 offset:{(14-2*w)*PITCH+128}")
        a.e(f"ds_read_b128 v[{KK+8*w+4}:{KK+8*w+7}], v3 offset:{(14-2*w)*PITCH+144}")
    a.e("s_lshl_b32 s22, s15, 7")
    a.e("v_add_u32 v4, s22, v2")
    for w in range(8):
        a.e(f"s_waitcnt lgkmcnt({min(15, 14-2*w)})")
        a.e(f"v_mov_b32 v{LG+w}, 0")
        for i in range(8):
            a.e(f"v_dot2_f32_bf16 v{LG+w}, v{Q+i}, v{KK+8*w+i}, v{LG+w}")
    if cfg.v32:
        a.e("s_lshl_b32 s22, s18, 5")
        a.e("v_add_u32 v7, s22, v3")
        def vreads(w):
            base = VV + 16*(w % 4) if w < 4 else KK + 16*(w % 4)
            return [f"ds_read_b128 v[{base+4*i}:{base+4*i+3}], v7 offset:{(14-2*w)*PITCH+256+16*i}" for i in range(4)]
        for w in range(3):
            for x in vreads(w): a.e(x)
    else:
        for w in range(8):
            a.e(f"ds_read_b128 v[{VV+8*w}:{VV+8*w+3}], v3 offset:{(14-2*w)*PITCH+256}")
            a.e(f"ds_read_b128 v[{VV+8*w+4}:{VV+8*w+7}], v3 offset:{(14-2*w)*PITCH+272}")
    a.e("s_nop 3")
    for w in range(0, 8, 2):
        a.e(f"v_cvt_pk_bf16_f32 v{T+w//2}, v{LG+w}, v{LG+w+1}")
    for w in range(0, 8, 2):
        a.e(f"v_lshlrev_b32 v{LG+w}, 16, v{T+w//2}")
        a.e(f"v_and_b32 v{LG+w+1}, 0xffff0000, v{T+w//2}")
    for w in range(8):
        a.e(f"v_mul_f32 v{LG+w}, 0x3e800000, v{LG+w}")
    a.e("v_mov_b32 v5, 0xce6e6b28")
    for w in range(1, 8):
        a.e(f"v_cmp_gt_u32 vcc, {2*w}, v4")
        a.e("s_nop 1")
        a.e(f"v_cndmask_b32 v{LG+w}, v{LG+w}, v5, vcc")
    a.e(f"v_max3_f32 v6, v{LG}, v{LG+1}, v{LG+2}")
    a.e(f"v_max3_f32 v6, v6, v{LG+3}, v{LG+4}")
    a.e(f"v_max3_f32 v6, v6, v{LG+5}, v{LG+6}")
    a.e(f"v_max_f32 v6, v6, v{LG+7}")
    a.e("s_mov_b32 s22, 0x3fb8aa3b")
    for w in range(8):
        a.e(f"v_sub_f32 v{LG+w}, v{LG+w}, v6")
    for w in range(8):
        a.e(f"v_mul_f32 v{LG+w}, s22, v{LG+w}")
    for w in range(8):
        a.e(f"v_exp_f32 v{LG+w}, v{LG+w}")
    a.e("s_nop 0")
    a.e(f"v_add_f32 v6, v{LG}, v{LG+1}")
    for w in range(2, 8):
        a.e(f"v_add_f32 v6, v6, v{LG+w}")
    a.e("v_rcp_f32 v6, v6")
    a.e("s_nop 0")
    for w in range(8):
        a.e(f"v_mul_f32 v{LG+w}, v{LG+w}, v6")
    for w in range(0, 8, 2):
        a.e(f"v_cvt_pk_bf16_f32 v{T+w//2}, v{LG+w}, v{LG+w+1}")
    for w in range(0, 8, 2):
        a.e(f"v_lshlrev_b32 v{LG+w}, 16, v{T+w//2}")
        a.e(f"v_and_b32 v{LG+w+1}, 0xffff0000, v{T+w//2}")
    if cfg.v32:
        for w in range(8):
            if w + 3 < 8:
                a.e("s_waitcnt lgkmcnt(8)")
                for x in vreads(w+3): a.e(x)
            else:
                a.e(f"s_waitcnt lgkmcnt({4*(7-w)})")
            base = VV + 16*(w % 4) if w < 4 else KK + 16*(w % 4)
            p = LG + (w & ~1)
            sel = "op_sel:[1,0,0] op_sel_hi:[1,1,1]" if (w & 1) else "op_sel:[0,0,0] op_sel_hi:[0,1,1]"
            for i in range(8):
                if w == 0:
                    a.e(f"v_pk_mul_f32 v[{O+2*i}:{O+2*i+1}], v[{p}:{p+1}], v[{base+2*i}:{base+2*i+1}] op_sel:[0,0] op_sel_hi:[0,1]")
                else:
                    a.e(f"v_pk_fma_f32 v[{O+2*i}:{O+2*i+1}], v[{p}:{p+1}], v[{base+2*i}:{base+2*i+1}], v[{O+2*i}:{O+2*i+1}] {sel}")
    else:
      for w in range(8):
        a.e(f"s_waitcnt lgkmcnt({14-2*w})")
        for i in range(8):
            src = VV+8*w+i
            a.e(f"v_lshlrev_b32 v{T+8}, 16, v{src}")
            a.e(f"v_and_b32 v{T+9}, 0xffff0000, v{src}")
            if w == 0:
                a.e(f"v_mul_f32 v{O+2*i}, v{LG}, v{T+8}")
                a.e(f"v_mul_f32 v{O+2*i+1}, v{LG}, v{T+9}")
            else:
                a.e(f"v_fmac_f32 v{O+2*i}, v{LG+w}, v{T+8}")
                a.e(f"v_fmac_f32 v{O+2*i+1}, v{LG+w}, v{T+9}")
    for i in range(8):
        a.e(f"v_cvt_pk_bf16_f32 v{T+i}, v{O+2*i}, v{O+2*i+1}")
    ph_stamp(a, cfg, 3)
    if cfg.wo_at == 'post':
        a.e("s_cmp_ge_u32 s3, 4")
        a.e("s_cbranch_scc0 L_att_nowo")
        srd(a, 36, 48, 49, 512*512*2)
        for i in range(8): wo_issue(a, i)
        a.label("L_att_nowo")
    a.e("s_movk_i32 s22, 144")
    a.e("v_mul_lo_u32 v3, v2, s22")
    a.e("s_lshl_b32 s22, s18, 5")
    a.e(f"s_add_u32 s22, s22, {16*U}")
    a.e("v_add_u32 v3, s22, v3")
    a.e(f"ds_write_b128 v3, v[{T}:{T+3}]")
    a.e(f"ds_write_b128 v3, v[{T+4}:{T+7}] offset:16")
    a.e("v_lshrrev_b32 v2, 3, v1")
    a.e("s_lshl_b32 s22, s3, 4")
    a.e("v_add_u32 v2, s22, v2")
    a.e("v_and_b32 v3, 7, v1")
    a.e("s_movk_i32 s22, 144")
    a.e("v_mul_lo_u32 v4, v2, s22")
    a.e("v_lshl_add_u32 v4, v3, 4, v4")
    a.e(f"v_add_u32 v4, {16*U}, v4")
    a.e("s_lshl_b32 s22, s15, 7")
    a.e("v_add_u32 v2, s22, v2")
    a.e(f"s_movk_i32 s22, {OP}")
    a.e("v_mul_lo_u32 v2, v2, s22")
    a.e("v_lshl_add_u32 v2, v3, 4, v2")
    a.e("s_lshl_b32 s22, s16, 7")
    a.e(f"s_add_u32 s22, s22, {WS_O}")
    a.e(f"s_add_u32 s23, s22, {8*OP}")
    a.e("s_waitcnt lgkmcnt(0)")
    a.e("s_barrier")
    a.e("ds_read_b128 v[8:11], v4")
    a.e(f"ds_read_b128 v[12:15], v4 offset:{8*144}")
    a.e("s_waitcnt lgkmcnt(1)")
    a.e(f"buffer_store_dwordx4 v[8:11], v2, s[64:67], s22 offen{cfg.st_mode}")
    a.e("s_waitcnt lgkmcnt(0)")
    a.e(f"buffer_store_dwordx4 v[12:15], v2, s[64:67], s23 offen{cfg.st_mode}")
    a.e("s_lshl_b32 s60, s16, 3")
    a.e(f"s_mul_i32 s22, s15, {FSTR}")
    a.e("s_add_u32 s60, s60, s22")
    a.e(f"s_add_u32 s60, s60, {WS_FO}")
    a.e("s_mov_b32 s61, 0")
    nonce_get(a)
    ph_stamp(a, cfg, 4)
    a.e("s_barrier")
    a.e("s_cmp_ge_u32 s3, 4")
    a.e("s_cbranch_scc0 L_op_cons")
    a.e("s_lshl_b32 s54, s52, 1")
    a.e("s_cmp_lg_u32 s3, 4")
    a.e("s_cbranch_scc1 L_op_nofl")
    ph_rt(a, cfg, 34)
    flag_store(a, 60)
    a.label("L_op_nofl")
    if cfg.wo_at == 'late':
        srd(a, 36, 48, 49, 512*512*2)
        for i in range(8): wo_issue(a, i)
    a.e("s_cmp_lg_u32 s3, 4")
    a.e("s_cbranch_scc1 L_op_nopoll")
    flag_poll(a, PA+9, cfg)
    ph_rt(a, cfg, 35)
    a.label("L_op_nopoll")
    a.e("s_waitcnt vmcnt(0)")
    a.e("s_barrier")
    ph_stamp(a, cfg, 45)
    ops = []
    def o_issue(i):
        a.e(f"s_add_u32 s53, s17, {i}")
        a.e("s_and_b32 s53, s53, 7")
        a.e("s_lshl_b32 s53, s53, 7")
        a.e(f"s_add_u32 m0, s54, {(i%4)*2*U}")
        a.e("s_nop 0")
        for j in range(4):
            a.e(f"buffer_load_dwordx4 v{190+j}, s[64:67], s53 offen offset:{j*1024} lds")
    def do(tag):
        if tag[0] == "o": o_issue(tag[1]); ops.append((tag, 4))
        else: wd_issue(a, tag[1]); ops.append((tag, 2))
    def wait_for(tag):
        last = max(i for i, (t, c) in enumerate(ops) if t == tag)
        a.e(f"s_waitcnt vmcnt({sum(c for (t, c) in ops[last+1:])})")
    for i in range(4): do(("o", i))
    sched = {1: [("o",4), ("w",4)], 2: [("o",5), ("w",5)], 3: [("o",6), ("w",6)], 4: [("o",7), ("w",7)],
             5: [("w",8), ("w",0), ("w",1)], 6: [("w",9), ("w",2), ("w",3)], 7: [("w",10)]}
    for n in range(8):
        wait_for(("o", n))
        a.e("s_barrier")
        for tag in sched.get(n, []): do(tag)
        ph_stamp(a, cfg, 46+n)
    a.e("s_barrier")
    wd_issue(a, 11)
    a.e("s_waitcnt vmcnt(0)")
    ph_stamp(a, cfg, 44)
    a.e("s_barrier")
    a.e("s_branch L_y_loader")
    a.label("L_op_cons")
    pc_cons_setup(a)
    OA = 20
    OF = [52, 100]
    a.e("s_lshl_b32 s22, s19, 12")
    for ks in range(4):
        a.e(f"v_add_u32 v{150+ks}, s22, v{PC_B0+ks}")
    a.e(f"v_add_u32 v154, 0x10000, v{PC_T0}")
    a.e("v_and_b32 v2, 31, v1")
    a.e("s_lshl_b32 s22, s15, 7")
    a.e("s_lshl_b32 s23, s19, 6")
    a.e("s_add_u32 s22, s22, s23")
    a.e("v_add_u32 v2, s22, v2")
    a.e("v_lshlrev_b32 v2, 11, v2")
    a.e("v_lshrrev_b32 v3, 5, v1")
    a.e("v_lshl_add_u32 v2, v3, 4, v2")
    a.e("s_lshl_b32 s22, s16, 7")
    a.e("s_lshl_b32 s23, s18, 6")
    a.e("s_add_u32 s22, s22, s23")
    a.e("v_add_u32 v155, s22, v2")
    a.e("v_add_u32 v156, 0x10000, v155")
    srd(a, 24, 50, 51, 2048*1024*2)
    def oreads(n):
        F = OF[n % 2]; r = []
        for ks in range(4):
            for u in range(2):
                r.append(f"ds_read_b64_tr_b16 v[{F+4*ks+2*u}:{F+4*ks+2*u+1}], v154 offset:{n*U + (ks*16+u*4)*128}")
            for jn in range(2):
                d = F + 16 + 4*(ks*2+jn)
                r.append(f"ds_read_b128 v[{d}:{d+3}], v{150+ks} offset:{(n%4)*2*U + jn*4096}")
        return r
    def omf(n):
        F = OF[n % 2]; m = []
        for ks in range(4):
            for jn in range(2):
                acc = OA + 16*jn; b = F + 16 + 4*(ks*2+jn)
                c = "0" if (n == 0 and ks == 0) else f"v[{acc}:{acc+15}]"
                m.append(f"v_mfma_f32_32x32x16_bf16 v[{acc}:{acc+15}], v[{F+4*ks}:{F+4*ks+3}], v[{b}:{b+3}], {c}")
        return m
    a.e("s_barrier")
    a.e("s_barrier")
    for x in oreads(0): a.e(x)
    ph_stamp(a, cfg, 5)
    for n in range(8):
        a.e("s_waitcnt lgkmcnt(0)")
        a.e("s_barrier")
        for x in mixd(omf(n), oreads(n+1) if n < 7 else [], 3): a.e(x)
    a.e("s_nop 7"); a.e("s_nop 7")
    for jn in range(2):
        pack_tile32(a, OA+16*jn, 52+8*jn)
        a.e("s_nop 1")
        for g in range(2):
            a.e(f"buffer_store_dwordx4 v[{52+8*jn+4*g}:{52+8*jn+4*g+3}], v{155+jn}, s[24:27], 0 offen offset:{1024 + g*32}{cfg.out_st}")
    ph_stamp(a, cfg, 6)
    a.e("s_barrier")
    a.e("s_branch L_y_cons")

PC_A0, PC_A1 = 212, 216
PC_B0, PC_B2 = 220, 224
PC_T0, PC_T2 = 236, 237
PC_ST = 238
def pc_cons_setup(a):
    a.e("s_and_b32 s18, s3, 1")
    a.e("s_lshr_b32 s19, s3, 1")
    a.e("v_and_b32 v2, 31, v1")
    a.e("v_bfe_u32 v3, v2, 1, 3")
    a.e("v_lshrrev_b32 v5, 5, v1")
    a.e("v_xor_b32 v3, v3, v5")
    a.e("v_lshlrev_b32 v4, 7, v2")
    a.e("s_lshl_b32 s22, s18, 12")
    a.e("s_lshl_b32 s23, s19, 12")
    for ks in range(4):
        a.e(f"v_xor_b32 v6, {ks*2}, v3")
        a.e("v_lshl_add_u32 v6, v6, 4, v4")
        a.e(f"v_add_u32 v{PC_A0+ks}, s22, v6")
        a.e(f"v_add_u32 v{PC_B0+ks}, s23, v6")
        a.e(f"v_add_u32 v{PC_A1+ks}, 0x10000, v{PC_A0+ks}")
        a.e(f"v_add_u32 v{PC_B2+ks}, 0x20000, v{PC_B0+ks}")
    a.e("s_lshl_b32 s22, s72, 6")
    a.e("s_lshl_b32 s23, s19, 5")
    a.e("s_add_u32 s22, s22, s23")
    a.e("v_add_u32 v6, s22, v2")
    a.e("v_lshlrev_b32 v6, 11, v6")
    a.e("v_lshl_add_u32 v6, v5, 4, v6")
    a.e("s_lshl_b32 s22, s73, 7")
    a.e("s_lshl_b32 s23, s18, 6")
    a.e("s_add_u32 s22, s22, s23")
    a.e(f"v_add_u32 v{PC_ST}, s22, v6")
    a.e("v_bfe_u32 v2, v1, 2, 2")
    a.e("v_and_b32 v3, 3, v1")
    a.e("v_bfe_u32 v4, v1, 4, 1")
    a.e("v_lshlrev_b32 v6, 7, v2")
    a.e("v_lshl_add_u32 v6, v5, 10, v6")
    a.e("v_lshl_add_u32 v6, v4, 5, v6")
    a.e("v_lshl_add_u32 v6, v3, 3, v6")
    a.e("v_lshrrev_b32 v7, 1, v2")
    a.e("v_xor_b32 v7, s18, v7")
    a.e(f"v_lshl_add_u32 v{PC_T0}, v7, 6, v6")
    a.e(f"v_add_u32 v{PC_T2}, 0x20000, v{PC_T0}")

def mixd(m, r, per):
    out = []; r = list(r)
    for x in m:
        out.append(x)
        out += r[:per]; r = r[per:]
    return out + r

def phase_c(a, cfg):
    a.label("L_y_loader")
    a.e("s_add_u32 s54, s52, 8192")
    def issue(y):
        slot = RING[y % 4]
        a.e(f"s_add_u32 s53, s88, {y}")
        a.e("s_and_b32 s53, s53, 7")
        a.e("s_lshl_b32 s53, s53, 8")
        a.e("s_add_u32 s55, s53, 128")
        a.e(f"s_add_u32 m0, s52, {slot}")
        a.e("s_nop 0")
        a.e(f"buffer_load_dwordx4 v{PA+2}, s[64:67], s53 offen lds")
        a.e(f"buffer_load_dwordx4 v{PA+3}, s[64:67], s53 offen offset:1024 lds")
        a.e(f"s_add_u32 m0, s54, {slot}")
        a.e("s_nop 0")
        a.e(f"buffer_load_dwordx4 v{PA+2}, s[64:67], s55 offen lds")
        a.e(f"buffer_load_dwordx4 v{PA+3}, s[64:67], s55 offen offset:1024 lds")
    a.e("s_barrier")
    for pos in (12, 13, 14, 15): wd_issue(a, pos)
    ph_stamp(a, cfg, 40)
    a.e("s_cmp_lg_u32 s3, 4")
    a.e("s_cbranch_scc1 L_y_nopoll")
    ph_rt(a, cfg, 38)
    flag_poll(a, PA+8, cfg)
    ph_rt(a, cfg, 37)
    a.label("L_y_nopoll")
    a.e("s_waitcnt vmcnt(0)")
    a.e("s_barrier")
    ph_stamp(a, cfg, 41)
    for y in range(4): issue(y)
    issued = 4
    for y in range(8):
        a.e(f"s_waitcnt vmcnt({4*(issued-1-y)})")
        a.e("s_barrier")
        if y >= 1 and issued < 8:
            issue(issued); issued += 1
        if y < 6: ph_stamp(a, cfg, 54+y)
    ph_stamp(a, cfg, 42)
    a.e("s_branch L_pc_end")
    a.label("L_y_cons")
    ACC1 = 20
    FS = [52, 84]
    RA = 116
    def rdB(dst, ks, addr):
        base = PC_B0 if addr < 65536 else PC_B2
        off = addr if addr < 65536 else addr - 131072
        return f"ds_read_b128 v[{dst}:{dst+3}], v{base+ks} offset:{off}"
    def rdA(pos):
        addr = WD_UNIT[pos]*U
        base = PC_A0 if addr < 65536 else PC_A1
        off = addr % 65536
        dst = RA + (pos % 6)*16
        return [f"ds_read_b128 v[{dst+4*ks}:{dst+4*ks+3}], v{base+ks} offset:{off}" for ks in range(4)]
    def reads(y):
        F = FS[y % 2]; slot = RING[y % 4]
        return [rdB(F+4*(c*4+ks), ks, slot + c*U) for c in range(2) for ks in range(4)]
    def mf(y):
        F = FS[y % 2]; m = []
        for c_ in range(2):
            ra = RA + ((2*y+c_) % 6)*16
            for ks in range(4):
                c = "0" if (y == 0 and c_ == 0 and ks == 0) else f"v[{ACC1}:{ACC1+15}]"
                b = F + 4*(c_*4+ks)
                m.append(f"v_mfma_f32_32x32x16_bf16 v[{ACC1}:{ACC1+15}], v[{ra+4*ks}:{ra+4*ks+3}], v[{b}:{b+3}], {c}")
        return m
    a.e("s_nop 1")
    for pos in range(6):
        for x in rdA(pos): a.e(x)
    srd(a, 24, 50, 51, 2048*1024*2)
    a.e("s_waitcnt lgkmcnt(0)")
    a.e("s_barrier")
    a.e("s_barrier")
    a.e("s_barrier")
    ph_stamp(a, cfg, 7)
    for x in reads(0): a.e(x)
    pendA = 0
    carry = []
    for y in range(8):
        a.e(f"s_waitcnt lgkmcnt({pendA})")
        m = mf(y)
        if y < 7:
            a.e("s_barrier")
            if cfg.ytweak:
                rb = reads(y+1)
                cur = rdA(2*(y+3)) if y + 3 < 8 else []
                gaps = [rb[0:3], rb[3:6], rb[6:8], carry[0:2], carry[2:4] , cur[0:2], cur[2:4], []]
                for k in range(8):
                    a.e(m[k])
                    for x in gaps[k]: a.e(x)
                pendA = len(carry) + len(cur)
                carry = rdA(2*(y+3)+1) if y + 3 < 8 else []
            else:
                for x in mixd(m, reads(y+1), 3): a.e(x)
                if y + 3 < 8:
                    for x in rdA(2*(y+3)) + rdA(2*(y+3)+1): a.e(x)
                    pendA = 8
                else:
                    pendA = 0
        else:
            for x in m: a.e(x)
    ph_stamp(a, cfg, 8)
    a.e("s_nop 7"); a.e("s_nop 7")
    pack_tile32(a, ACC1, 8)
    a.e("s_nop 1")
    for g in range(2):
        a.e(f"buffer_store_dwordx4 v[{8+4*g}:{8+4*g+3}], v{PC_ST}, s[24:27], 0 offen offset:{g*32}{cfg.y_st}")
    a.label("L_pc_end")

def gen(cfg):
    a = Asm()
    K = NAME + "_kernel"
    a.raw(HDR.rstrip("\n"))
    a.raw(f"; @launch grid=(256,1,1) block=(512,1,1) lds=163840")
    a.raw('.amdgcn_target "amdgcn-amd-amdhsa--gfx950"')
    a.raw(".text")
    a.raw(f".globl {K}"); a.raw(".p2align 8"); a.raw(f".type {K},@function"); a.label(K)
    a.e("s_cmp_ge_u32 s2, 256")
    a.e("s_cbranch_scc1 L_exit")
    a.e("s_load_dwordx2 s[4:5], s[0:1], 0")
    a.e("s_load_dwordx2 s[6:7], s[0:1], 8")
    a.e("s_load_dwordx2 s[8:9], s[0:1], 16")
    a.e("s_load_dwordx2 s[10:11], s[0:1], 80")
    a.e("s_load_dwordx4 s[44:47], s[0:1], 24")
    a.e("s_load_dwordx4 s[48:51], s[0:1], 56")
    a.e("s_load_dwordx2 s[62:63], s[0:1], 72")
    wave_ids(a)
    ph_init(a, cfg)
    a.e("s_and_b32 s72, s2, 7")
    a.e("s_lshl_b32 s72, s72, 2")
    a.e("s_lshr_b32 s73, s2, 6")
    a.e("s_add_u32 s72, s72, s73")
    a.e("s_bfe_u32 s73, s2, 0x30003")
    a.e("s_bfe_u32 s88, s2, 0x10006")
    a.e("s_lshl_b32 s88, s88, 2")
    a.e("s_lshr_b32 s89, s2, 7")
    a.e("s_lshl_b32 s89, s89, 1")
    a.e("s_add_u32 s88, s88, s89")
    a.e("s_add_u32 s88, s88, s73")
    a.e("s_and_b32 s88, s88, 7")
    if not cfg.yrot_stag: a.e("s_mov_b32 s88, s73")
    a.e("s_mov_b32 s58, 524288")
    a.e("s_mov_b32 s59, 0x00020000")
    a.e("s_cmp_ge_u32 s2, 128")
    a.e("s_cbranch_scc1 L_partb")
    k_big(a, cfg)
    a.label("L_partb")
    k_attn(a, cfg)
    phase_c(a, cfg)
    ph_dump(a, cfg, [(0, 0), (4, 131072), (7, 65536)])
    a.label("L_exit")
    a.e("s_endpgm")
    a.raw('.section .rodata,"a"')
    for l in kdesc(K, 256): a.raw(l)
    return a.text()

def mk(name, cdp=2048, op=1024, **kw):
    global CDP, OP
    CDP, OP = cdp, op
    cfg = Cfg()
    for k, v in kw.items(): setattr(cfg, k, v)
    open(name, "w").write(gen(cfg))

if __name__ == "__main__":
    mk("v14.s")
    mk("i_base.s", phases=True)
    mk("i_wo6.s", phases=True, pf_wo=6)
    mk("i_old.s", phases=True, v32=False)
```

```python
import sys
from asmlib import *
NAME = "concat_heads__spectral_fnet__sliding_local_dilated__prompt"
HDR = open("cdna_kernels/%s.s.ref" % NAME).read().split("; Override launch")[0]

WS_CD = 0
WS_O = 5 << 20
CDP = 2048
OP = 1024
FSTR = 4352
WS_FC = 8 << 20
WS_FO = WS_FC + 16*FSTR
WS_BYTES = (8 << 20) + 32*FSTR

U = 8192
WD_UNIT = [0,1,2,3, 8,9,10,11, 12,13,14,15, 0,1,2,3]
RING = [4*U, 6*U, 16*U, 18*U]

DOC = """
Single fused kernel, 256 workgroups x 8 waves (waves 0-3 MFMA consumers, waves 4-7 LDS-DMA loaders), one WG per CU.
 Part A is re-associated:  c = Ws_re @ x, d = Ws_im @ x (big GEMM, K=2048), then y = [c | -d] @ [Wd_re | Wd_im]^T (K=1024).
 WG 0..127   : 128x128 tile of c / -d (5-slot LDS ring, staggered K order so every L2 line is first-touched by one sharer),
               tile published to d_ws with write-through stores + per-wave flag.
 WG 128..255 : QKV GEMM for 128(+16 halo) rows x 4 heads, dilated sliding-window attention (bf16 roundings as the reference),
               o published the same way, then a 128x64 tile of o @ wo; wave 7 also touches Ws / x lines ahead of the big GEMM.
 every WG    : 64x64 tile of y once the 8 producing tiles of its row block are flagged (Wd tile preloaded into LDS).
 Hand-off flags live in d_ws and carry a per-launch tag that WG 0 publishes through d_debug.
 Generated by a Python script (hand-written instruction templates).
"""

class Cfg:
    S1 = 5
    SB = 3
    phases = False
    look = 1
    pf_early = {-1: [("x",0)], 0: [("w",2)], 1: [("x",2)], 2: [("w",3)], 3: [("x",3)], 4: [("w",4)], 5: [("x",4)]}
    pf_late = [("w",5),("x",5),("w",6),("x",6),("w",7),("x",7)]
    pf_nt_upto = -1
    pf_weights = False
    flag_at = 0
    poll_sleep = 2
    wo_at = 'late'
    nt_xb0 = False
    code_pf = False
    pb_delay = False
    ep_overlap = True
    ytweak = True
    early_addr = True
    v32 = True
    pf_wo = 0
    out_stage = True
    prio = 0
    fake16 = False
    xrot = 0
    nbx = 0
    out_st = ''
    y_st = ''
    yrot_stag = True
    ld_sc1 = False
    wd_early = False
    st_mode = ' sc1'
    nt_lead_upto = -1

def wave_ids(a):
    a.e("v_lshrrev_b32 v1, 6, v0")
    a.e("s_nop 0")
    a.e("v_readfirstlane_b32 s3, v1")
    a.e("v_and_b32 v1, 63, v0")

def ph_init(a, cfg):
    if not cfg.phases: return
    a.e("v_mov_b32 v240, 0")
    a.e("s_memrealtime s[80:81]")
    a.e("s_memtime s[84:85]")
    a.e("s_waitcnt lgkmcnt(0)")
    a.e("v_writelane_b32 v240, s80, 60")
    a.e("v_writelane_b32 v240, s84, 61")
    a.e("s_mov_b32 s82, 0")
def ph_stamp(a, cfg, idx):
    if not cfg.phases: return
    a.e("s_memtime s[80:81]")
    a.e("s_waitcnt lgkmcnt(0)")
    a.e(f"v_writelane_b32 v240, s80, {idx}")
def ph_rt(a, cfg, idx):
    if not cfg.phases: return
    a.e("s_memrealtime s[80:81]")
    a.e("s_waitcnt lgkmcnt(0)")
    a.e(f"v_writelane_b32 v240, s80, {idx}")
def ph_stamp_seq(a, cfg):
    if not cfg.phases: return
    a.e("s_memtime s[80:81]")
    a.e("s_waitcnt lgkmcnt(0)")
    a.e("v_mov_b32 v242, s80")
    a.e("v_cmp_eq_u32 vcc, s82, v1")
    a.e("s_nop 1")
    a.e("v_cndmask_b32 v240, v240, v242, vcc")
    a.e("s_add_u32 s82, s82, 1")
def ph_dump(a, cfg, waves_offs):
    if not cfg.phases: return
    for wave, off in waves_offs:
        L = a.newlabel("L_pd")
        a.e(f"s_cmp_lg_u32 s3, {wave}")
        a.e(f"s_cbranch_scc1 {L}")
        a.e("s_waitcnt vmcnt(0)")
        a.e("s_memrealtime s[80:81]")
        a.e("s_memtime s[84:85]")
        a.e("s_load_dwordx2 s[86:87], s[0:1], 80")
        a.e("s_waitcnt lgkmcnt(0)")
        a.e("v_writelane_b32 v240, s80, 62")
        a.e("v_writelane_b32 v240, s84, 63")
        a.e(f"s_add_u32 s92, s86, {0x3000000 + off}")
        a.e("s_addc_u32 s93, s87, 0")
        a.e("s_mov_b32 s94, 0x100000")
        a.e("s_mov_b32 s95, 0x00020000")
        a.e("s_lshl_b32 s90, s2, 8")
        a.e("v_lshl_add_u32 v241, v1, 2, s90")
        a.e("buffer_store_dword v240, v241, s[92:95], 0 offen")
        a.label(L)

def pack_tile32(a, acc, tmp, xorreg=None):
    for g in range(4):
        a.e(f"v_cvt_pk_bf16_f32 v{tmp+2*g}, v{acc+4*g}, v{acc+4*g+1}")
        a.e(f"v_cvt_pk_bf16_f32 v{tmp+2*g+1}, v{acc+4*g+2}, v{acc+4*g+3}")
    if xorreg is not None:
        for i in range(8):
            a.e(f"v_xor_b32 v{tmp+i}, s{xorreg}, v{tmp+i}")
    a.e("s_nop 1")
    for g in (0, 2):
        a.e(f"v_permlane32_swap_b32 v{tmp+2*g}, v{tmp+2*g+2}")
        a.e(f"v_permlane32_swap_b32 v{tmp+2*g+1}, v{tmp+2*g+3}")

NONCE_V = 232

def nonce_issue(a):
    a.e("v_mov_b32 v234, 0")
    a.e(f"buffer_load_dwordx2 v[{NONCE_V}:{NONCE_V+1}], v234, s[68:71], 0 offen sc1")
def nonce_get(a):
    L = a.newlabel("L_nn"); D = a.newlabel("L_nd")
    a.label(L)
    a.e("s_waitcnt vmcnt(0)")
    a.e(f"v_readfirstlane_b32 s74, v{NONCE_V}")
    a.e(f"v_readfirstlane_b32 s75, v{NONCE_V+1}")
    a.e("s_nop 0")
    a.e("s_cmp_lg_u32 s74, 0")
    a.e(f"s_cbranch_scc1 {D}")
    a.e(f"buffer_load_dwordx2 v[{NONCE_V}:{NONCE_V+1}], v234, s[68:71], 0 offen sc1")
    a.e(f"s_branch {L}")
    a.label(D)
def flag_store(a, soff_reg):
    a.e("v_mov_b32 v230, s74")
    a.e("v_mov_b32 v231, s75")
    a.e("v_mov_b32 v234, 0")
    a.e("s_mov_b64 exec, 1")
    a.e(f"buffer_store_dwordx2 v[230:231], v234, s[64:67], s{soff_reg} offen sc1")
    a.e("s_mov_b64 exec, -1")
def flag_poll(a, voff, cfg):
    L = a.newlabel("L_poll"); L0 = a.newlabel("L_poll0")
    a.e(f"s_branch {L0}")
    a.label(L)
    if cfg.poll_sleep: a.e(f"s_sleep {cfg.poll_sleep}")
    a.label(L0)
    a.e(f"buffer_load_dwordx2 v[228:229], v{voff}, s[64:67], 0 offen sc1")
    a.e("s_waitcnt vmcnt(0)")
    a.e("v_cmp_eq_u32 s[76:77], s74, v228")
    a.e("v_cmp_eq_u32 s[78:79], s75, v229")
    a.e("s_nop 1")
    a.e("s_and_b64 s[76:77], s[76:77], s[78:79]")
    a.e("s_cmp_eq_u64 s[76:77], -1")
    a.e(f"s_cbranch_scc0 {L}")

PA = 200
def pc_loader_setup(a):
    a.e("s_sub_u32 s18, s3, 4")
    a.e("v_lshrrev_b32 v2, 3, v1")
    a.e("v_and_b32 v3, 7, v1")
    a.e("v_lshrrev_b32 v4, 4, v1")
    a.e("v_xor_b32 v3, v3, v4")
    a.e("v_xor_b32 v5, 4, v3")
    a.e("s_lshl_b32 s19, s18, 4")
    a.e("v_add_u32 v2, s19, v2")
    a.e("s_lshl_b32 s19, s73, 6")
    a.e("v_add_u32 v6, s19, v2")
    a.e("v_lshlrev_b32 v6, 10, v6")
    a.e(f"v_lshl_add_u32 v{PA}, v3, 4, v6")
    a.e(f"v_lshl_add_u32 v{PA+1}, v5, 4, v6")
    a.e(f"v_add_u32 v{PA+1}, {8*1024-1024}, v{PA+1}")
    a.e("s_lshl_b32 s19, s72, 6")
    a.e("v_add_u32 v6, s19, v2")
    a.e(f"s_movk_i32 s19, {CDP}")
    a.e("v_mul_lo_u32 v7, v6, s19")
    a.e(f"v_lshl_add_u32 v{PA+2}, v3, 4, v7")
    a.e(f"v_lshl_add_u32 v{PA+3}, v5, 4, v7")
    a.e(f"v_add_u32 v{PA+3}, {8*CDP-1024}, v{PA+3}")
    a.e("s_lshr_b32 s19, s72, 1")
    a.e(f"s_mul_i32 s22, s19, {FSTR}")
    a.e(f"s_add_u32 s22, s22, {WS_FC}")
    a.e("v_and_b32 v3, 31, v1")
    a.e(f"v_lshl_add_u32 v{PA+8}, v3, 3, s22")
    a.e("s_lshl_b32 s52, s18, 11")

def op_loader_setup(a):
    a.e("s_sub_u32 s18, s3, 4")
    a.e("v_lshrrev_b32 v2, 3, v1")
    a.e("v_and_b32 v3, 7, v1")
    a.e("v_lshrrev_b32 v4, 4, v1")
    a.e("v_xor_b32 v3, v3, v4")
    a.e("v_xor_b32 v5, 4, v3")
    a.e("s_lshl_b32 s19, s18, 5")
    a.e("s_lshl_b32 s22, s15, 7")
    a.e("s_add_u32 s19, s19, s22")
    a.e("v_add_u32 v6, s19, v2")
    a.e(f"s_movk_i32 s19, {OP}")
    a.e("v_mul_lo_u32 v6, v6, s19")
    a.e(f"v_add_u32 v6, {WS_O}, v6")
    a.e("v_lshl_add_u32 v7, v5, 4, v6")
    a.e("v_lshl_add_u32 v6, v3, 4, v6")
    for j in range(4):
        a.e(f"v_add_u32 v{190+j}, {j*8*OP - j*1024}, v{6 if j%2==0 else 7}")
    a.e("s_lshl_b32 s19, s18, 4")
    a.e("v_add_u32 v2, s19, v2")
    a.e("v_and_b32 v3, 7, v1")
    a.e("v_bfe_u32 v4, v1, 4, 1")
    a.e("v_lshlrev_b32 v4, 2, v4")
    a.e("v_xor_b32 v3, v3, v4")
    a.e("v_lshlrev_b32 v6, 10, v2")
    a.e("v_lshl_add_u32 v6, v3, 4, v6")
    a.e("s_lshl_b32 s19, s16, 7")
    a.e(f"v_add_u32 v{PA+6}, s19, v6")
    a.e(f"v_add_u32 v{PA+7}, {8*1024-1024}, v{PA+6}")
    a.e(f"s_mul_i32 s22, s15, {FSTR}")
    a.e(f"s_add_u32 s22, s22, {WS_FO}")
    a.e("v_and_b32 v3, 7, v1")
    a.e(f"v_lshl_add_u32 v{PA+9}, v3, 3, s22")
    srd(a, 36, 48, 49, 512*512*2)

def wo_issue(a, i):
    a.e(f"s_add_u32 s53, s17, {i}")
    a.e("s_and_b32 s53, s53, 7")
    a.e("s_lshl_b32 s53, s53, 16")
    a.e(f"s_add_u32 m0, s52, {(8+i)*U}")
    a.e("s_nop 0")
    a.e(f"buffer_load_dwordx4 v{PA+6}, s[36:39], s53 offen lds")
    a.e(f"buffer_load_dwordx4 v{PA+7}, s[36:39], s53 offen offset:1024 lds")

def wd_issue(a, pos):
    a.e("s_lshl_b32 s53, s88, 1")
    a.e(f"s_add_u32 s53, s53, {pos}")
    a.e("s_bitcmp1_b32 s53, 3")
    a.e("s_cselect_b32 s56, s46, s44")
    a.e("s_cselect_b32 s57, s47, s45")
    a.e("s_and_b32 s53, s53, 7")
    a.e("s_lshl_b32 s53, s53, 7")
    a.e(f"s_add_u32 m0, s52, {WD_UNIT[pos]*U}")
    a.e("s_nop 0")
    a.e(f"buffer_load_dwordx4 v{PA}, s[56:59], s53 offen lds")
    a.e(f"buffer_load_dwordx4 v{PA+1}, s[56:59], s53 offen offset:1024 lds")

def k_big(a, cfg):
    S = cfg.S1; STG = 32768; NST = 32
    assert S == 5
    a.c("---- big GEMM role: xcd=s2&7, i=s2>>3 (0..15)")
    a.e("s_and_b32 s12, s2, 7")
    a.e("s_lshr_b32 s13, s2, 3")
    a.e("s_lshr_b32 s14, s13, 3")
    a.e("s_bfe_u32 s15, s13, 0x10002")
    a.e("s_lshl_b32 s12, s12, 1")
    a.e("s_add_u32 s15, s15, s12")
    a.e("s_and_b32 s16, s13, 3")
    if cfg.nbx: a.e(f"s_xor_b32 s16, s16, {cfg.nbx}")
    a.e("s_lshr_b32 s17, s13, 2")
    a.e("s_add_u32 s17, s17, s16")
    a.e("s_and_b32 s17, s17, 3")
    a.e("s_cmp_ge_u32 s3, 4")
    a.e("s_cbranch_scc0 L_big_cons")
    a.e("s_sub_u32 s18, s3, 4")
    a.e("v_lshrrev_b32 v2, 4, v1")
    a.e("v_and_b32 v3, 15, v1")
    a.e("v_lshlrev_b32 v4, 2, v2")
    a.e("v_xor_b32 v3, v3, v4")
    a.e("s_lshl_b32 s19, s18, 4")
    a.e("v_add_u32 v4, s19, v2")
    a.e("v_lshlrev_b32 v4, 10, v4")
    a.e("v_lshl_add_u32 v4, v3, 4, v4")
    a.e("s_lshl_b32 s19, s16, 8")
    a.e("v_add_u32 v4, s19, v4")
    for j in range(4):
        a.e(f"v_add_u32 v{10+j}, {j*4096 - j*1024}, v4")
    a.e("v_lshrrev_b32 v4, 3, v1")
    a.e("v_and_b32 v3, 7, v1")
    a.e("v_xor_b32 v3, v3, v2")
    a.e("v_xor_b32 v5, 4, v3")
    a.e("s_lshl_b32 s19, s18, 5")
    a.e("s_lshl_b32 s22, s15, 7")
    a.e("s_add_u32 s19, s19, s22")
    a.e("v_add_u32 v4, s19, v4")
    a.e("v_lshlrev_b32 v4, 12, v4")
    a.e("v_lshl_add_u32 v6, v3, 4, v4")
    a.e("v_lshl_add_u32 v7, v5, 4, v4")
    for j in range(4):
        a.e(f"v_add_u32 v{14+j}, {j*8*4096 - j*1024}, v{6 if j%2==0 else 7}")
    L = cfg.look; NF = 4*(8-L)
    a.e(f"v_add_u32 v20, {-L}, v1")
    a.e("v_and_b32 v21, 3, v20")
    a.e("v_and_b32 v22, -4, v20")
    a.e("v_cmp_lt_u32 vcc, s17, v21")
    a.e("s_nop 1")
    a.e("v_subbrev_co_u32 v25, vcc, 0, v21, vcc")
    a.e(f"v_add_u32 v26, {-NF}, v20")
    a.e("v_mul_u32_u24 v27, 11, v26")
    a.e("v_lshrrev_b32 v27, 5, v27")
    a.e("v_mul_u32_u24 v28, 3, v27")
    a.e("v_sub_u32 v28, v26, v28")
    a.e(f"v_lshl_add_u32 v27, v27, 2, {NF}")
    a.e(f"v_cmp_le_u32 vcc, {NF+L}, v1")
    a.e("v_mov_b32 v29, -1")
    a.e("s_nop 0")
    a.e("v_cndmask_b32 v22, v22, v27, vcc")
    a.e("v_cndmask_b32 v25, v25, v28, vcc")
    a.e("v_cndmask_b32 v21, v21, v29, vcc")
    a.e("s_add_u32 s36, s17, 1")
    a.e("v_add_u32 v23, s36, v25")
    a.e("v_and_b32 v23, 3, v23")
    a.e("v_add_u32 v23, v22, v23")
    a.e(f"s_add_u32 s36, s17, {4*L + 32}")
    a.e("v_add_u32 v24, s36, v22")
    a.e("v_cmp_eq_u32 vcc, s17, v21")
    a.e("s_nop 1")
    a.e("v_cndmask_b32 v23, v23, v24, vcc")
    a.e("s_add_u32 s36, s17, 32")
    a.e("v_lshl_add_u32 v24, v1, 2, s36")
    a.e(f"v_cmp_gt_u32 vcc, {L}, v1")
    a.e("s_nop 1")
    a.e("v_cndmask_b32 v23, v23, v24, vcc")
    if cfg.nt_lead_upto >= 0:
        a.e("v_and_b32 v24, 31, v23")
        a.e(f"v_cmp_lt_u32 vcc, {32 + 4*cfg.nt_lead_upto + 3}, v23")
        a.e("s_nop 1")
        a.e("v_cndmask_b32 v23, v23, v24, vcc")
    a.e("s_mov_b32 s36, 0")
    a.e(f"s_mul_i32 s39, s12, {2*cfg.xrot}")
    a.e("s_lshl_b32 s34, s18, 12")
    a.e("s_add_u32 s35, s34, 16384")
    a.e("s_mov_b32 s20, 0")
    def nextk():
        a.e("v_readlane_b32 s37, v23, s36")
        a.e("s_add_u32 s36, s36, 1")
        a.e("s_and_b32 s36, s36, 31")
        a.e("s_add_u32 s38, s37, s39")
        a.e("s_and_b32 s38, s38, 31")
        a.e("s_lshl_b32 s32, s38, 16")
        a.e("s_lshl_b32 s33, s38, 7")
    nextk()
    a.e("s_waitcnt lgkmcnt(0)")
    srd(a, 24, 4, 5, 2048*512*2)
    a.e("s_cmp_eq_u32 s14, 0")
    a.e("s_cselect_b32 s28, s6, s8")
    a.e("s_cselect_b32 s29, s7, s9")
    a.e(f"s_mov_b32 s30, {2048*2048*2}")
    a.e("s_mov_b32 s31, 0x00020000")
    def issue():
        a.e("s_add_u32 m0, s20, s35")
        if cfg.nt_lead_upto >= 0:
            La = a.newlabel("L_nt"); Lb = a.newlabel("L_ntd")
            a.e("s_bitcmp1_b32 s37, 5")
            a.e(f"s_cbranch_scc1 {La}")
            for j in range(4):
                a.e(f"buffer_load_dwordx4 v{14+j}, s[28:31], s33 offen offset:{j*1024} lds")
            a.e(f"s_branch {Lb}")
            a.label(La)
            for j in range(4):
                a.e(f"buffer_load_dwordx4 v{14+j}, s[28:31], s33 offen offset:{j*1024} nt lds")
            a.label(Lb)
        else:
            a.e("s_nop 0")
            for j in range(4):
                a.e(f"buffer_load_dwordx4 v{14+j}, s[28:31], s33 offen offset:{j*1024} lds")
        a.e("s_add_u32 m0, s20, s34")
        a.e("s_nop 0")
        for j in range(4):
            a.e(f"buffer_load_dwordx4 v{10+j}, s[24:27], s32 offen offset:{j*1024} lds")
    def advance():
        nextk()
        a.e(f"s_add_u32 s20, s20, {STG}")
        a.e(f"s_cmp_ge_u32 s20, {STG*S}")
        a.e("s_cselect_b32 s20, 0, s20")
    P = S - 1
    ph_stamp(a, cfg, 32)
    for i in range(P):
        issue(); advance()
        if i == 0: ph_stamp(a, cfg, 33)
    common_srds(a)
    pc_loader_setup(a)
    a.e(f"s_mov_b32 s21, {NST-P}")
    a.label("L_big_ld")
    a.e(f"s_waitcnt vmcnt({8*(P-1)})")
    a.e("s_barrier")
    issue(); advance()
    ph_stamp_seq(a, cfg)
    a.e("s_sub_u32 s21, s21, 1")
    a.e("s_cmp_lg_u32 s21, 0")
    a.e("s_cbranch_scc1 L_big_ld")
    a.e("s_waitcnt vmcnt(24)")
    a.e("s_barrier")
    for pos in (4,5,6,7): wd_issue(a, pos)
    nonce_issue(a)
    ph_stamp_seq(a, cfg)
    a.e("s_waitcnt vmcnt(25)")
    a.e("s_barrier")
    ph_stamp_seq(a, cfg)
    a.e("s_waitcnt vmcnt(17)")
    a.e("s_barrier")
    ph_stamp_seq(a, cfg)
    a.e("s_waitcnt vmcnt(9)")
    a.e("s_barrier")
    ph_stamp_seq(a, cfg)
    for pos in (8,9,10,11,0,1,2,3): wd_issue(a, pos)
    nonce_get(a)
    ph_stamp(a, cfg, 44)
    a.e("s_barrier")
    a.e("s_branch L_y_loader")
    a.label("L_big_cons")
    if cfg.prio: a.e(f"s_setprio {cfg.prio}")
    if cfg.code_pf:
        a.e("s_cmp_ge_u32 s2, 16")
        a.e("s_cbranch_scc1 L_nocpf")
        a.e("s_cmp_eq_u32 s3, 0")
        a.e("s_cbranch_scc1 L_nocpf")
        a.e("s_getpc_b64 s[22:23]")
        a.label("L_pcref")
        a.e(f"s_sub_u32 s22, s22, L_pcref-{NAME}_kernel")
        a.e("s_subb_u32 s23, s23, 0")
        a.e("s_sub_u32 s18, s3, 1")
        a.e("s_lshl_b32 s18, s18, 13")
        a.e("v_lshl_add_u32 v2, v1, 7, s18")
        a.e(f"v_min_u32 v2, L_exit-{NAME}_kernel, v2")
        a.e("global_load_dword v239, v2, s[22:23]")
        a.label("L_nocpf")
    pc_cons_setup(a)
    ACC = 64
    BA, BB = 10, 12
    CA, CB = 16, 18
    a.e("s_and_b32 s18, s3, 1")
    a.e("s_lshr_b32 s19, s3, 1")
    a.e("v_bfe_u32 v2, v1, 2, 2")
    a.e("v_and_b32 v3, 3, v1")
    a.e("v_bfe_u32 v4, v1, 4, 1")
    a.e("v_lshrrev_b32 v5, 5, v1")
    a.e("v_lshlrev_b32 v6, 8, v2")
    a.e("v_lshl_add_u32 v6, v5, 11, v6")
    a.e("v_lshl_add_u32 v6, v4, 5, v6")
    a.e("v_lshl_add_u32 v6, v3, 3, v6")
    a.e("s_lshl_b32 s22, s18, 1")
    for j in range(2):
        a.e(f"s_add_u32 s23, s22, {j}")
        a.e("v_xor_b32 v7, s23, v2")
        a.e(f"v_lshl_add_u32 v{BA+j}, v7, 6, v6")
    a.e("v_and_b32 v2, 31, v1")
    a.e("s_lshl_b32 s22, s19, 6")
    a.e("v_add_u32 v2, s22, v2")
    a.e("v_bfe_u32 v3, v2, 1, 3")
    a.e("v_xor_b32 v3, v3, v5")
    a.e("v_lshlrev_b32 v4, 7, v2")
    a.e("v_add_u32 v4, 16384, v4")
    for ks in range(4):
        a.e(f"v_xor_b32 v6, {ks*2}, v3")
        a.e(f"v_lshl_add_u32 v{BB+ks}, v6, 4, v4")
    a.e("v_and_b32 v2, 31, v1")
    a.e("v_and_b32 v3, 7, v2")
    a.e("v_xor_b32 v3, v3, v5")
    a.e("v_lshlrev_b32 v4, 7, v2")
    a.e("s_lshl_b32 s22, s3, 13")
    a.e(f"s_add_u32 s22, s22, {16*U}")
    a.e("v_add_u32 v4, s22, v4")
    for q in range(4):
        a.e(f"v_xor_b32 v6, {q*2}, v3")
        a.e(f"v_lshl_add_u32 v{24+q}, v6, 4, v4")
    a.e("v_lshrrev_b32 v2, 3, v1")
    a.e("v_and_b32 v3, 7, v1")
    a.e("v_xor_b32 v4, v3, v2")
    a.e("v_lshlrev_b32 v6, 7, v2")
    a.e("v_lshl_add_u32 v6, v4, 4, v6")
    a.e("v_add_u32 v28, s22, v6")
    a.e("s_lshl_b32 s22, s15, 7")
    a.e("s_lshl_b32 s23, s19, 6")
    a.e("s_add_u32 s22, s22, s23")
    a.e("v_add_u32 v2, s22, v2")
    a.e(f"s_movk_i32 s22, {CDP}")
    a.e("v_mul_lo_u32 v2, v2, s22")
    a.e("v_lshl_add_u32 v2, v3, 4, v2")
    a.e("s_lshl_b32 s22, s14, 10")
    a.e("s_lshl_b32 s23, s16, 8")
    a.e("s_add_u32 s22, s22, s23")
    a.e("s_lshl_b32 s23, s18, 7")
    a.e("s_add_u32 s22, s22, s23")
    a.e("v_add_u32 v29, s22, v2")
    for i in range(64):
        a.e(f"v_mov_b32 v{ACC+i}, 0")
    a.e("s_mov_b32 s20, 0")
    def setaddr_l():
        l = [f"v_add_u32 v{CA+j}, s20, v{BA+j}" for j in range(2)] + [f"v_add_u32 v{CB+k}, s20, v{BB+k}" for k in range(4)]
        l += [f"s_add_u32 s20, s20, {STG}", f"s_cmp_ge_u32 s20, {STG*S}", "s_cselect_b32 s20, 0, s20"]
        return l
    def reads(F, ks):
        r = []
        r.append(f"ds_read_b128 v[{F+8}:{F+11}], v{CB+ks}")
        for u in range(2):
            r.append(f"ds_read_b64_tr_b16 v[{F+2*u}:{F+2*u+1}], v{CA} offset:{(ks*16+u*4)*256}")
        r.append(f"ds_read_b128 v[{F+12}:{F+15}], v{CB+ks} offset:4096")
        for u in range(2):
            r.append(f"ds_read_b64_tr_b16 v[{F+4+2*u}:{F+4+2*u+1}], v{CA+1} offset:{(ks*16+u*4)*256}")
        return r
    def mfmas(F):
        m = []
        for (jm, jn) in ((0,0),(0,1),(1,0),(1,1)):
            d = ACC + (jm*2+jn)*16
            if cfg.fake16:
                fk[0] = (fk[0] + 1) % 2
                d2 = d + 8*fk[0]
                m.append(f"v_mfma_f32_16x16x32_bf16 v[{d2}:{d2+3}], v[{F+4*jm}:{F+4*jm+3}], v[{F+8+4*jn}:{F+8+4*jn+3}], v[{d2}:{d2+3}]\n  v_mfma_f32_16x16x32_bf16 v[{d2+4}:{d2+7}], v[{F+4*jm}:{F+4*jm+3}], v[{F+8+4*(1-jn)}:{F+8+4*(1-jn)+3}], v[{d2+4}:{d2+7}]")
            else:
                m.append(f"v_mfma_f32_32x32x16_bf16 v[{d}:{d+15}], v[{F+4*jm}:{F+4*jm+3}], v[{F+8+4*jn}:{F+8+4*jn+3}], v[{d}:{d+15}]")
        return m
    fk = [0]
    FS = [128, 144, 160, 176]
    def mix(m, r, pre=()):
        return [m[0]] + list(pre) + r[0:3] + [m[1]] + r[3:6] + [m[2], m[3]]
    a.e("s_waitcnt lgkmcnt(0)")
    common_srds(a)
    a.e("s_or_b32 s22, s2, s3")
    a.e("s_cmp_lg_u32 s22, 0")
    a.e("s_cbranch_scc1 L_no_pub")
    a.e("s_memrealtime s[22:23]")
    a.e("s_waitcnt lgkmcnt(0)")
    a.e("s_or_b32 s22, s22, 1")
    a.e("v_mov_b32 v230, s22")
    a.e("v_mov_b32 v231, s23")
    a.e("v_mov_b32 v234, 0")
    a.e("s_mov_b64 exec, 1")
    a.e("buffer_store_dwordx2 v[230:231], v234, s[68:71], 0 offen sc1")
    a.e("s_mov_b64 exec, -1")
    a.label("L_no_pub")
    ph_stamp(a, cfg, 0)
    a.e("s_barrier")
    ph_stamp(a, cfg, 1)
    for x in setaddr_l(): a.e(x)
    for x in reads(FS[0], 0): a.e(x)
    for x in reads(FS[1], 1): a.e(x)
    a.e(f"s_mov_b32 s21, {NST-1}")
    a.label("L_big_loop")
    a.e("s_waitcnt lgkmcnt(6)")
    for x in mix(mfmas(FS[0]), reads(FS[2], 2)): a.e(x)
    a.e("s_waitcnt lgkmcnt(6)")
    if cfg.early_addr:
        m = mfmas(FS[1]); r = reads(FS[3], 3); sa = setaddr_l()
        for x in [m[0]] + r[0:3] + [m[1]] + r[3:6] + [m[2]] + sa[0:5] + [m[3]] + sa[5:] + ["s_sub_u32 s21, s21, 1"]: a.e(x)
        a.e("s_waitcnt lgkmcnt(0)")
        for x in mix(mfmas(FS[2]), reads(FS[0], 0), pre=["s_barrier"]): a.e(x)
        m = mfmas(FS[3]); r = reads(FS[1], 1)
        for x in [m[0]] + r[0:3] + [m[1]] + r[3:6] + [m[2], "s_cmp_lg_u32 s21, 0", m[3]]: a.e(x)
    else:
        for x in mix(mfmas(FS[1]), reads(FS[3], 3)): a.e(x)
        a.e("s_waitcnt lgkmcnt(0)")
        for x in mix(mfmas(FS[2]), reads(FS[0], 0), pre=["s_barrier"] + setaddr_l()): a.e(x)
        for x in mix(mfmas(FS[3]), reads(FS[1], 1)): a.e(x)
        a.e("s_sub_u32 s21, s21, 1")
        a.e("s_cmp_lg_u32 s21, 0")
    a.e("s_cbranch_scc1 L_big_loop")
    nonce_issue(a)
    a.e("s_waitcnt lgkmcnt(6)")
    for x in mix(mfmas(FS[0]), reads(FS[2], 2)): a.e(x)
    a.e("s_waitcnt lgkmcnt(6)")
    for x in mix(mfmas(FS[1]), reads(FS[3], 3)): a.e(x)
    a.e("s_cmp_eq_u32 s14, 0")
    a.e("s_cselect_b32 s22, 0, 0x80008000")
    order = [(0,0),(1,0),(0,1),(1,1)]
    def ep_tile(t):
        jm, jn = order[t]
        tmp = 32 + 8*t
        sub = Asm()
        pack_tile32(sub, ACC+(jm*2+jn)*16, tmp, xorreg=22)
        sub.e("s_nop 0")
        for g in range(2):
            sub.e(f"ds_write_b128 v{24+jm*2+g}, v[{tmp+4*g}:{tmp+4*g+3}] offset:{jn*4096}")
        if jm == 1:
            for q in range(4*jn, 4*jn+4):
                sub.e(f"ds_read_b128 v[{128+4*q}:{131+4*q}], v28 offset:{q*1024}")
        return [l.strip() for l in sub.lines]
    m2 = mfmas(FS[2]); m3 = mfmas(FS[3])
    idx = {(0,0):0,(0,1):1,(1,0):2,(1,1):3}
    if cfg.ep_overlap:
        a.e("s_waitcnt lgkmcnt(0)")
        seq = []
        for t in range(4):
            seq += [m2[idx[order[t]]], m3[idx[order[t]]]]
        for x in seq[0:4]: a.e(x)
        a.e(seq[4]); a.e("s_nop 7"); a.e("s_nop 1")
        e0 = ep_tile(0)
        for x in e0[:12]: a.e(x)
        a.e(seq[5])
        for x in e0[12:]: a.e(x)
        a.e(seq[6])
        e1 = ep_tile(1)
        for x in e1[:12]: a.e(x)
        a.e(seq[7])
        for x in e1[12:]: a.e(x)
        ph_stamp(a, cfg, 2)
        for x in ep_tile(2): a.e(x)
        for x in ep_tile(3): a.e(x)
    else:
        a.e("s_waitcnt lgkmcnt(6)")
        for x in m2: a.e(x)
        a.e("s_waitcnt lgkmcnt(0)")
        for x in m3: a.e(x)
        ph_stamp(a, cfg, 2)
        a.e("s_nop 7"); a.e("s_nop 3")
        for t in range(4):
            for x in ep_tile(t): a.e(x)
    ph_stamp(a, cfg, 3)
    a.e("s_mov_b32 s22, 0")
    for q in range(8):
        a.e(f"s_waitcnt lgkmcnt({7-q if q >= 4 else 0 + 8 + 3 - q})") if False else None
    for q in range(8):
        rem = (3 - q) + 8 if q < 4 else 7 - q
        a.e(f"s_waitcnt lgkmcnt({rem})")
        a.e(f"buffer_store_dwordx4 v[{128+4*q}:{131+4*q}], v29, s[64:67], s22 offen{cfg.st_mode}")
        if q < 7: a.e(f"s_add_u32 s22, s22, {8*CDP}")
    ph_stamp(a, cfg, 4)
    a.e("s_lshl_b32 s60, s14, 2")
    a.e("s_add_u32 s60, s60, s16")
    a.e("s_lshl_b32 s60, s60, 2")
    a.e("s_add_u32 s60, s60, s3")
    a.e("s_lshl_b32 s60, s60, 3")
    a.e(f"s_mul_i32 s22, s15, {FSTR}")
    a.e("s_add_u32 s60, s60, s22")
    a.e(f"s_add_u32 s60, s60, {WS_FC}")
    nonce_get(a)
    ph_rt(a, cfg, 36)
    flag_store(a, 60)
    ph_stamp(a, cfg, 5)
    a.e("s_barrier")
    a.e("s_branch L_y_cons")

def common_srds(a):
    srd(a, 64, 10, 11, WS_BYTES)
    srd(a, 68, 62, 63, 256)

def k_attn(a, cfg):
    S = cfg.SB; NST = 8
    AREG = 24576
    STG = AREG + 18*1024
    PITCH = 528 if cfg.v32 else 400
    a.c("---- part B role: xcd=s2&7, i=(s2>>3)-16")
    a.e("s_load_dwordx4 s[40:43], s[0:1], 40")
    a.e("s_and_b32 s12, s2, 7")
    a.e("s_lshr_b32 s13, s2, 3")
    a.e("s_sub_u32 s13, s13, 16")
    a.e("s_lshr_b32 s14, s13, 3")
    a.e("s_lshl_b32 s12, s12, 1")
    a.e("s_add_u32 s15, s12, s14")
    a.e("s_and_b32 s16, s13, 7")
    a.e("s_lshl_b32 s17, s14, 2")
    a.e("s_add_u32 s17, s17, s16")
    a.e("s_and_b32 s17, s17, 7")
    a.e("s_cmp_ge_u32 s3, 4")
    a.e("s_cbranch_scc0 L_att_cons")
    a.e("s_cmp_eq_u32 s3, 7")
    a.e("s_cbranch_scc1 L_att_pf")
    a.e("s_sub_u32 s18, s3, 4")
    a.e("v_lshrrev_b32 v2, 3, v1")
    a.e("v_and_b32 v3, 7, v1")
    a.e("v_bfe_u32 v4, v1, 4, 1")
    a.e("v_lshlrev_b32 v4, 1, v4")
    a.e("v_xor_b32 v3, v3, v4")
    a.e("v_xor_b32 v5, 4, v3")
    a.e("s_mov_b32 s22, 3072")
    a.e("v_mul_lo_u32 v2, v2, s22")
    a.e("s_lshl_b32 s19, s16, 7")
    a.e("s_lshl_b32 s22, s18, 10")
    a.e("s_add_u32 s19, s19, s22")
    a.e("v_add_u32 v2, s19, v2")
    a.e("v_lshl_add_u32 v6, v3, 4, v2")
    a.e("v_lshl_add_u32 v7, v5, 4, v2")
    for p in range(8):
        a.e(f"v_add_u32 v{10+p}, {p*8*3072 - (p%4)*1024}, v{6 if p%2==0 else 7}")
    a.e("v_lshrrev_b32 v2, 3, v1")
    a.e("v_and_b32 v3, 7, v1")
    a.e("v_lshrrev_b32 v4, 4, v1")
    a.e("v_xor_b32 v3, v3, v4")
    a.e("v_xor_b32 v5, 4, v3")
    a.e("s_lshl_b32 s19, s15, 7")
    a.e("s_sub_u32 s19, s19, 16")
    a.e("s_mul_i32 s22, s18, 48")
    a.e("s_add_u32 s19, s19, s22")
    a.e("v_add_u32 v2, s19, v2")
    a.e("v_lshlrev_b32 v2, 10, v2")
    a.e("v_lshl_add_u32 v6, v3, 4, v2")
    a.e("v_lshl_add_u32 v7, v5, 4, v2")
    for j in range(6):
        a.e(f"v_add_u32 v{20+j}, {j*8*1024}, v{6 if j%2==0 else 7}")
    a.e("s_mul_i32 s32, s17, 196608")
    a.e("s_lshl_b32 s33, s17, 7")
    a.e("s_lshl_b32 s34, s18, 13")
    a.e("s_mul_i32 s35, s18, 6144")
    a.e(f"s_add_u32 s35, s35, {AREG}")
    a.e("s_mov_b32 s20, 0")
    a.e("s_waitcnt lgkmcnt(0)")
    srd(a, 24, 42, 43, 512*1536*2)
    srd(a, 28, 40, 41, 2048*512*2)
    def issue(nt=""):
        a.e("s_add_u32 s37, s20, s35")
        for j in range(6):
            a.e(f"s_add_u32 m0, s37, {j*1024}")
            a.e("s_nop 0")
            a.e(f"buffer_load_dwordx4 v{20+j}, s[28:31], s33 offen{nt} lds")
        a.e("s_add_u32 s37, s20, s34")
        for hh in range(2):
            a.e(f"s_add_u32 m0, s37, {hh*4096}")
            a.e("s_nop 0")
            for p in range(4):
                a.e(f"buffer_load_dwordx4 v{10+hh*4+p}, s[24:27], s32 offen offset:{p*1024} lds")
    def advance():
        a.e("s_add_u32 s32, s32, 196608")
        a.e(f"s_cmp_ge_u32 s32, {512*3072}")
        a.e("s_cselect_b32 s32, 0, s32")
        a.e("s_add_u32 s33, s33, 128")
        a.e("s_and_b32 s33, s33, 0x3ff")
        a.e(f"s_add_u32 s20, s20, {STG}")
        a.e(f"s_cmp_ge_u32 s20, {STG*S}")
        a.e("s_cselect_b32 s20, 0, s20")
    P = S - 1
    if cfg.pb_delay: a.e("s_barrier")
    ph_stamp(a, cfg, 32)
    for i in range(P):
        issue(" nt" if (i == 0 and cfg.nt_xb0) else ""); advance()
        if i == 0: ph_stamp(a, cfg, 33)
    a.e(f"s_mov_b32 s21, {NST-P}")
    a.label("L_att_ld")
    a.e(f"s_waitcnt vmcnt({14*(P-1)})")
    a.e("s_barrier")
    issue(); advance()
    a.e("s_sub_u32 s21, s21, 1")
    a.e("s_cmp_lg_u32 s21, 0")
    a.e("s_cbranch_scc1 L_att_ld")
    for i in range(NST-P, NST):
        a.e(f"s_waitcnt vmcnt({14*(NST-1-i)})")
        a.e("s_barrier")
    a.label("L_att_e1")
    a.e("s_barrier")
    pc_loader_setup(a)
    op_loader_setup(a)
    a.e("s_barrier")
    if cfg.wo_at == 'e2':
        for i in range(8): wo_issue(a, i)
    a.e("s_branch L_att_attn")
    a.label("L_att_pf")
    a.e("s_bfe_u32 s18, s13, 0x10002")
    a.e("s_add_u32 s18, s18, s12")
    a.e("s_lshl_b32 s18, s18, 7")
    a.e("s_and_b32 s19, s13, 3")
    a.e("s_lshl_b32 s19, s19, 5")
    a.e("s_add_u32 s18, s18, s19")
    a.e("v_lshrrev_b32 v2, 2, v1")
    a.e("v_add_u32 v2, s18, v2")
    a.e("v_lshlrev_b32 v2, 12, v2")
    a.e("v_and_b32 v3, 3, v1")
    a.e("v_lshl_add_u32 v236, v3, 7, v2")
    a.e("v_add_u32 v237, 0x10000, v236")
    a.e("s_lshl_b32 s18, s13, 4")
    a.e("v_lshrrev_b32 v2, 3, v1")
    a.e("v_add_u32 v2, s18, v2")
    a.e("v_lshlrev_b32 v2, 10, v2")
    a.e("v_and_b32 v3, 7, v1")
    a.e("v_lshl_add_u32 v238, v3, 7, v2")
    a.e("v_add_u32 v239, 0x2000, v238")
    a.e("s_waitcnt lgkmcnt(0)")
    srd(a, 24, 4, 5, 2048*512*2)
    a.e("s_cmp_eq_u32 s14, 0")
    a.e("s_cselect_b32 s28, s6, s8")
    a.e("s_cselect_b32 s29, s7, s9")
    a.e(f"s_mov_b32 s30, {2048*2048*2}")
    a.e("s_mov_b32 s31, 0x00020000")
    a.e("s_lshr_b32 s34, s12, 1")
    a.e(f"s_mul_i32 s34, s34, {cfg.xrot}")
    TD = 244
    tcount = [0]
    def touch(kind, b):
        for h in (0, 1):
            d = TD + (tcount[0] % 8); tcount[0] += 1
            a.e(f"s_add_u32 s33, s34, {b}")
            a.e("s_and_b32 s33, s33, 7")
            if kind == "w":
                a.e("s_lshl_b32 s32, s33, 9")
                a.e(f"buffer_load_dword v{d}, v{236+h}, s[28:31], s32 offen" + (" nt" if b <= cfg.pf_nt_upto else ""))
            else:
                a.e("s_lshl_b32 s32, s33, 18")
                a.e(f"buffer_load_dword v{d}, v{238+h}, s[24:27], s32 offen")
    for (k, b) in cfg.pf_early.get(-1, []): touch(k, b)
    if cfg.pb_delay:
        a.e("s_waitcnt vmcnt(0)")
        a.e("s_barrier")
    for i in range(NST):
        a.e("s_barrier")
        for (k, b) in cfg.pf_early.get(i, []): touch(k, b)
        if cfg.pf_wo and i == cfg.pf_wo:
            srd(a, 36, 48, 49, 512*512*2)
            a.e("s_lshl_b32 s22, s13, 15")
            a.e("v_lshl_add_u32 v2, v1, 7, s22")
            for q in range(4):
                d = TD + (tcount[0] % 8); tcount[0] += 1
                a.e(f"s_movk_i32 s32, {q*8192}")
                a.e(f"buffer_load_dword v{d}, v2, s[36:39], s32 offen")
    for (k, b) in cfg.pf_late: touch(k, b)
    if cfg.pf_weights:
        a.e("s_lshl_b32 s22, s13, 15")
        a.e("v_lshl_add_u32 v2, v1, 7, s22")
        for m_ in range(3):
            srd(a, 32, 44+2*m_, 45+2*m_, 512*512*2)
            for q in range(4):
                d = TD + (tcount[0] % 8); tcount[0] += 1
                a.e(f"s_movk_i32 s36, {q*8192}")
                a.e(f"buffer_load_dword v{d}, v2, s[32:35], s36 offen")
    a.e("s_branch L_att_e1")
    a.label("L_att_cons")
    if cfg.prio: a.e(f"s_setprio {cfg.prio}")
    ACC = 128 - 8
    F0, F1 = 24, 72
    BA, BB = 10, 12
    CA, CB = 16, 18
    a.e("v_bfe_u32 v2, v1, 2, 2")
    a.e("v_and_b32 v3, 3, v1")
    a.e("v_lshrrev_b32 v4, 4, v1")
    a.e("v_lshrrev_b32 v5, 1, v2")
    a.e("v_and_b32 v6, 1, v4")
    a.e("v_lshl_or_b32 v5, v6, 1, v5")
    a.e("v_xor_b32 v5, s3, v5")
    a.e("v_lshlrev_b32 v6, 7, v2")
    a.e("v_lshl_add_u32 v6, v4, 10, v6")
    a.e("v_lshl_add_u32 v6, v5, 5, v6")
    a.e(f"v_lshl_add_u32 v{BA}, v3, 3, v6")
    a.e("v_and_b32 v2, 15, v1")
    a.e("v_lshrrev_b32 v3, 1, v2")
    a.e("v_xor_b32 v3, v3, v4")
    a.e("v_lshlrev_b32 v5, 7, v2")
    a.e(f"v_add_u32 v5, {AREG}, v5")
    for ks in range(2):
        a.e(f"v_xor_b32 v6, {ks*4}, v3")
        a.e(f"v_lshl_add_u32 v{BB+ks}, v6, 4, v5")
    a.e(f"s_mov_b32 s22, {PITCH}")
    a.e("v_mul_lo_u32 v8, v2, s22")
    a.e("v_lshl_add_u32 v8, v4, 3, v8")
    a.e("v_lshl_add_u32 v9, v4, 3, v8")
    a.e("s_lshl_b32 s22, s3, 5")
    a.e("v_add_u32 v8, s22, v8")
    a.e("s_lshl_b32 s22, s3, 6")
    a.e("v_add_u32 v9, s22, v9")
    for i in range(4, 108):
        a.e(f"v_mov_b32 v{ACC+i}, 0")
    a.e("s_mov_b32 s20, 0")
    def setaddr():
        a.e(f"v_add_u32 v{CA}, s20, v{BA}")
        for k in range(2): a.e(f"v_add_u32 v{CB+k}, s20, v{BB+k}")
        a.e(f"s_add_u32 s20, s20, {STG}")
        a.e(f"s_cmp_ge_u32 s20, {STG*S}")
        a.e("s_cselect_b32 s20, 0, s20")
    def reads(F, ks):
        r = []
        for seg in range(3):
            for u in range(2):
                r.append(f"ds_read_b64_tr_b16 v[{F+4*seg+2*u}:{F+4*seg+2*u+1}], v{CA} offset:{seg*8192 + (ks*32+u*4)*128}")
        for nt in range(9):
            r.append(f"ds_read_b128 v[{F+12+4*nt}:{F+12+4*nt+3}], v{CB+ks} offset:{nt*2048}")
        return r
    TL = [(nt, seg) for nt in range(9) for seg in range(3) if not (seg == 0 and nt == 0)]
    def mfmas(F):
        m = []
        for (nt, seg) in TL:
            d = ACC + (seg*9+nt)*4
            m.append(f"v_mfma_f32_16x16x32_bf16 v[{d}:{d+3}], v[{F+4*seg}:{F+4*seg+3}], v[{F+12+4*nt}:{F+12+4*nt+3}], v[{d}:{d+3}]")
        return m
    def interleave(m, r):
        out = []
        for i, x in enumerate(m):
            out.append(x)
            if i < len(r): out.append(r[i])
        return out
    a.e("s_waitcnt lgkmcnt(0)")
    ph_stamp(a, cfg, 0)
    if cfg.pb_delay: a.e("s_barrier")
    a.e("s_barrier")
    ph_stamp(a, cfg, 1)
    setaddr()
    for x in reads(F0, 0): a.e(x)
    a.e(f"s_mov_b32 s21, {NST}")
    a.label("L_att_loop")
    a.e("s_waitcnt lgkmcnt(0)")
    for x in interleave(mfmas(F0), reads(F1, 1)): a.e(x)
    a.e("s_waitcnt lgkmcnt(0)")
    a.e("s_sub_u32 s21, s21, 1")
    a.e("s_cmp_eq_u32 s21, 0")
    a.e("s_cbranch_scc1 L_att_last")
    a.e("s_barrier")
    setaddr()
    for x in interleave(mfmas(F1), reads(F0, 0)): a.e(x)
    a.e("s_branch L_att_loop")
    a.label("L_att_last")
    a.e("s_barrier")
    ph_stamp(a, cfg, 2)
    m = mfmas(F1)
    a.e(f"v_add_u32 v6, {4*16*PITCH}, v8")
    a.e(f"v_add_u32 v7, {4*16*PITCH}, v9")
    def wr(idx):
        nt, seg = TL[idx]
        d = ACC + (seg*9+nt)*4
        if seg == 2 and cfg.v32:
            tmp = F0 + 32 + 4*(nt % 4)
            t2 = F0 + 2*(idx % 16)
            return [f"v_cvt_pk_bf16_f32 v{t2}, v{d}, v{d+1}", f"v_cvt_pk_bf16_f32 v{t2+1}, v{d+2}, v{d+3}",
                    f"v_lshlrev_b32 v{tmp}, 16, v{t2}", f"v_and_b32 v{tmp+1}, 0xffff0000, v{t2}",
                    f"v_lshlrev_b32 v{tmp+2}, 16, v{t2+1}", f"v_and_b32 v{tmp+3}, 0xffff0000, v{t2+1}",
                    f"ds_write_b128 v{9 if nt < 4 else 7}, v[{tmp}:{tmp+3}] offset:{(nt%4 if nt >= 4 else nt)*16*PITCH + (nt//8)*4*16*PITCH + 256}"]
        tmp = F0 + 2*(idx % 16)
        return [f"v_cvt_pk_bf16_f32 v{tmp}, v{d}, v{d+1}", f"v_cvt_pk_bf16_f32 v{tmp+1}, v{d+2}, v{d+3}",
                f"ds_write_b64 v{8 if nt < 4 else 6}, v[{tmp}:{tmp+1}] offset:{(nt%4 if nt >= 4 else nt)*16*PITCH + (nt//8)*4*16*PITCH + seg*128}"]
    LAG = 9
    for i, x in enumerate(m):
        a.e(x)
        if i >= LAG:
            for y in wr(i-LAG): a.e(y)
    a.e("s_nop 7")
    for i in range(len(m)-LAG, len(m)):
        for y in wr(i): a.e(y)
    a.e("s_waitcnt lgkmcnt(0)")
    a.e("s_barrier")
    a.label("L_att_attn")
    common_srds(a)
    if cfg.wo_at == 'all8':
        srd(a, 36, 48, 49, 512*512*2)
        a.e("v_lshrrev_b32 v2, 3, v1")
        a.e("v_and_b32 v3, 7, v1")
        a.e("v_bfe_u32 v4, v1, 4, 1")
        a.e("v_lshlrev_b32 v4, 2, v4")
        a.e("v_xor_b32 v3, v3, v4")
        a.e("v_lshlrev_b32 v2, 10, v2")
        a.e("v_lshl_add_u32 v2, v3, 4, v2")
        a.e("s_lshl_b32 s19, s16, 7")
        a.e("v_add_u32 v2, s19, v2")
        a.e("s_add_u32 s53, s17, s3")
        a.e("s_and_b32 s53, s53, 7")
        a.e("s_lshl_b32 s53, s53, 16")
        a.e("s_lshl_b32 s22, s3, 13")
        a.e(f"s_add_u32 s22, s22, {8*U}")
        for p in range(8):
            a.e(f"s_add_u32 m0, s22, {p*1024}")
            a.e(f"s_add_u32 s23, s53, {p*8192}")
            a.e("buffer_load_dwordx4 v2, s[36:39], s23 offen lds")
    nonce_issue(a)
    a.e("s_and_b32 s18, s3, 3")
    a.e("s_lshr_b32 s19, s3, 2")
    a.e("s_lshl_b32 s19, s19, 6")
    a.e("v_add_u32 v2, s19, v1")
    a.e(f"s_mov_b32 s22, {PITCH}")
    a.e("v_mul_lo_u32 v3, v2, s22")
    a.e("s_lshl_b32 s22, s18, 5")
    a.e(f"s_add_u32 s22, s22, {2*PITCH}")
    a.e("v_add_u32 v3, s22, v3")
    Q = 8; KK = 16; VV = 80; LG = 144; O = 160; T = 180
    a.e(f"ds_read_b128 v[{Q}:{Q+3}], v3 offset:{14*PITCH}")
    a.e(f"ds_read_b128 v[{Q+4}:{Q+7}], v3 offset:{14*PITCH+16}")
    for w in range(8):
        a.e(f"ds_read_b128 v[{KK+8*w}:{KK+8*w+3}], v3 offset:{(14-2*w)*PITCH+128}")
        a.e(f"ds_read_b128 v[{KK+8*w+4}:{KK+8*w+7}], v3 offset:{(14-2*w)*PITCH+144}")
    a.e("s_lshl_b32 s22, s15, 7")
    a.e("v_add_u32 v4, s22, v2")
    for w in range(8):
        a.e(f"s_waitcnt lgkmcnt({min(15, 14-2*w)})")
        a.e(f"v_mov_b32 v{LG+w}, 0")
        for i in range(8):
            a.e(f"v_dot2_f32_bf16 v{LG+w}, v{Q+i}, v{KK+8*w+i}, v{LG+w}")
    if cfg.v32:
        a.e("s_lshl_b32 s22, s18, 5")
        a.e("v_add_u32 v7, s22, v3")
        def vreads(w):
            base = VV + 16*(w % 4) if w < 4 else KK + 16*(w % 4)
            return [f"ds_read_b128 v[{base+4*i}:{base+4*i+3}], v7 offset:{(14-2*w)*PITCH+256+16*i}" for i in range(4)]
        for w in range(3):
            for x in vreads(w): a.e(x)
    else:
        for w in range(8):
            a.e(f"ds_read_b128 v[{VV+8*w}:{VV+8*w+3}], v3 offset:{(14-2*w)*PITCH+256}")
            a.e(f"ds_read_b128 v[{VV+8*w+4}:{VV+8*w+7}], v3 offset:{(14-2*w)*PITCH+272}")
    a.e("s_nop 3")
    for w in range(0, 8, 2):
        a.e(f"v_cvt_pk_bf16_f32 v{T+w//2}, v{LG+w}, v{LG+w+1}")
    for w in range(0, 8, 2):
        a.e(f"v_lshlrev_b32 v{LG+w}, 16, v{T+w//2}")
        a.e(f"v_and_b32 v{LG+w+1}, 0xffff0000, v{T+w//2}")
    for w in range(8):
        a.e(f"v_mul_f32 v{LG+w}, 0x3e800000, v{LG+w}")
    a.e("v_mov_b32 v5, 0xce6e6b28")
    for w in range(1, 8):
        a.e(f"v_cmp_gt_u32 vcc, {2*w}, v4")
        a.e("s_nop 1")
        a.e(f"v_cndmask_b32 v{LG+w}, v{LG+w}, v5, vcc")
    a.e(f"v_max3_f32 v6, v{LG}, v{LG+1}, v{LG+2}")
    a.e(f"v_max3_f32 v6, v6, v{LG+3}, v{LG+4}")
    a.e(f"v_max3_f32 v6, v6, v{LG+5}, v{LG+6}")
    a.e(f"v_max_f32 v6, v6, v{LG+7}")
    a.e("s_mov_b32 s22, 0x3fb8aa3b")
    for w in range(8):
        a.e(f"v_sub_f32 v{LG+w}, v{LG+w}, v6")
    for w in range(8):
        a.e(f"v_mul_f32 v{LG+w}, s22, v{LG+w}")
    for w in range(8):
        a.e(f"v_exp_f32 v{LG+w}, v{LG+w}")
    a.e("s_nop 0")
    a.e(f"v_add_f32 v6, v{LG}, v{LG+1}")
    for w in range(2, 8):
        a.e(f"v_add_f32 v6, v6, v{LG+w}")
    a.e("v_rcp_f32 v6, v6")
    a.e("s_nop 0")
    for w in range(8):
        a.e(f"v_mul_f32 v{LG+w}, v{LG+w}, v6")
    for w in range(0, 8, 2):
        a.e(f"v_cvt_pk_bf16_f32 v{T+w//2}, v{LG+w}, v{LG+w+1}")
    for w in range(0, 8, 2):
        a.e(f"v_lshlrev_b32 v{LG+w}, 16, v{T+w//2}")
        a.e(f"v_and_b32 v{LG+w+1}, 0xffff0000, v{T+w//2}")
    if cfg.v32:
        for w in range(8):
            if w + 3 < 8:
                a.e("s_waitcnt lgkmcnt(8)")
                for x in vreads(w+3): a.e(x)
            else:
                a.e(f"s_waitcnt lgkmcnt({4*(7-w)})")
            base = VV + 16*(w % 4) if w < 4 else KK + 16*(w % 4)
            p = LG + (w & ~1)
            sel = "op_sel:[1,0,0] op_sel_hi:[1,1,1]" if (w & 1) else "op_sel:[0,0,0] op_sel_hi:[0,1,1]"
            for i in range(8):
                if w == 0:
                    a.e(f"v_pk_mul_f32 v[{O+2*i}:{O+2*i+1}], v[{p}:{p+1}], v[{base+2*i}:{base+2*i+1}] op_sel:[0,0] op_sel_hi:[0,1]")
                else:
                    a.e(f"v_pk_fma_f32 v[{O+2*i}:{O+2*i+1}], v[{p}:{p+1}], v[{base+2*i}:{base+2*i+1}], v[{O+2*i}:{O+2*i+1}] {sel}")
    else:
      for w in range(8):
        a.e(f"s_waitcnt lgkmcnt({14-2*w})")
        for i in range(8):
            src = VV+8*w+i
            a.e(f"v_lshlrev_b32 v{T+8}, 16, v{src}")
            a.e(f"v_and_b32 v{T+9}, 0xffff0000, v{src}")
            if w == 0:
                a.e(f"v_mul_f32 v{O+2*i}, v{LG}, v{T+8}")
                a.e(f"v_mul_f32 v{O+2*i+1}, v{LG}, v{T+9}")
            else:
                a.e(f"v_fmac_f32 v{O+2*i}, v{LG+w}, v{T+8}")
                a.e(f"v_fmac_f32 v{O+2*i+1}, v{LG+w}, v{T+9}")
    for i in range(8):
        a.e(f"v_cvt_pk_bf16_f32 v{T+i}, v{O+2*i}, v{O+2*i+1}")
    ph_stamp(a, cfg, 3)
    if cfg.wo_at == 'post':
        a.e("s_cmp_ge_u32 s3, 4")
        a.e("s_cbranch_scc0 L_att_nowo")
        srd(a, 36, 48, 49, 512*512*2)
        for i in range(8): wo_issue(a, i)
        a.label("L_att_nowo")
    a.e("s_movk_i32 s22, 144")
    a.e("v_mul_lo_u32 v3, v2, s22")
    a.e("s_lshl_b32 s22, s18, 5")
    a.e(f"s_add_u32 s22, s22, {16*U}")
    a.e("v_add_u32 v3, s22, v3")
    a.e(f"ds_write_b128 v3, v[{T}:{T+3}]")
    a.e(f"ds_write_b128 v3, v[{T+4}:{T+7}] offset:16")
    a.e("v_lshrrev_b32 v2, 3, v1")
    a.e("s_lshl_b32 s22, s3, 4")
    a.e("v_add_u32 v2, s22, v2")
    a.e("v_and_b32 v3, 7, v1")
    a.e("s_movk_i32 s22, 144")
    a.e("v_mul_lo_u32 v4, v2, s22")
    a.e("v_lshl_add_u32 v4, v3, 4, v4")
    a.e(f"v_add_u32 v4, {16*U}, v4")
    a.e("s_lshl_b32 s22, s15, 7")
    a.e("v_add_u32 v2, s22, v2")
    a.e(f"s_movk_i32 s22, {OP}")
    a.e("v_mul_lo_u32 v2, v2, s22")
    a.e("v_lshl_add_u32 v2, v3, 4, v2")
    a.e("s_lshl_b32 s22, s16, 7")
    a.e(f"s_add_u32 s22, s22, {WS_O}")
    a.e(f"s_add_u32 s23, s22, {8*OP}")
    a.e("s_waitcnt lgkmcnt(0)")
    a.e("s_barrier")
    a.e("ds_read_b128 v[8:11], v4")
    a.e(f"ds_read_b128 v[12:15], v4 offset:{8*144}")
    a.e("s_waitcnt lgkmcnt(1)")
    a.e(f"buffer_store_dwordx4 v[8:11], v2, s[64:67], s22 offen{cfg.st_mode}")
    a.e("s_waitcnt lgkmcnt(0)")
    a.e(f"buffer_store_dwordx4 v[12:15], v2, s[64:67], s23 offen{cfg.st_mode}")
    a.e("s_lshl_b32 s60, s16, 3")
    a.e(f"s_mul_i32 s22, s15, {FSTR}")
    a.e("s_add_u32 s60, s60, s22")
    a.e(f"s_add_u32 s60, s60, {WS_FO}")
    a.e("s_mov_b32 s61, 0")
    nonce_get(a)
    ph_stamp(a, cfg, 4)
    a.e("s_barrier")
    a.e("s_cmp_ge_u32 s3, 4")
    a.e("s_cbranch_scc0 L_op_cons")
    a.e("s_lshl_b32 s54, s52, 1")
    a.e("s_cmp_lg_u32 s3, 4")
    a.e("s_cbranch_scc1 L_op_nofl")
    ph_rt(a, cfg, 34)
    flag_store(a, 60)
    a.label("L_op_nofl")
    if cfg.wo_at == 'late':
        srd(a, 36, 48, 49, 512*512*2)
        for i in range(8): wo_issue(a, i)
    a.e("s_cmp_lg_u32 s3, 4")
    a.e("s_cbranch_scc1 L_op_nopoll")
    flag_poll(a, PA+9, cfg)
    ph_rt(a, cfg, 35)
    a.label("L_op_nopoll")
    a.e("s_waitcnt vmcnt(0)")
    a.e("s_barrier")
    ph_stamp(a, cfg, 45)
    ops = []
    def o_issue(i):
        a.e(f"s_add_u32 s53, s17, {i}")
        a.e("s_and_b32 s53, s53, 7")
        a.e("s_lshl_b32 s53, s53, 7")
        a.e(f"s_add_u32 m0, s54, {(i%4)*2*U}")
        a.e("s_nop 0")
        for j in range(4):
            a.e(f"buffer_load_dwordx4 v{190+j}, s[64:67], s53 offen offset:{j*1024} lds")
    def do(tag):
        if tag[0] == "o": o_issue(tag[1]); ops.append((tag, 4))
        else: wd_issue(a, tag[1]); ops.append((tag, 2))
    def wait_for(tag):
        last = max(i for i, (t, c) in enumerate(ops) if t == tag)
        a.e(f"s_waitcnt vmcnt({sum(c for (t, c) in ops[last+1:])})")
    for i in range(4): do(("o", i))
    sched = {1: [("o",4), ("w",4)], 2: [("o",5), ("w",5)], 3: [("o",6), ("w",6)], 4: [("o",7), ("w",7)],
             5: [("w",8), ("w",0), ("w",1)], 6: [("w",9), ("w",2), ("w",3)], 7: [("w",10)]}
    for n in range(8):
        wait_for(("o", n))
        a.e("s_barrier")
        for tag in sched.get(n, []): do(tag)
        ph_stamp(a, cfg, 46+n)
    a.e("s_barrier")
    wd_issue(a, 11)
    a.e("s_waitcnt vmcnt(0)")
    ph_stamp(a, cfg, 44)
    a.e("s_barrier")
    a.e("s_branch L_y_loader")
    a.label("L_op_cons")
    pc_cons_setup(a)
    OA = 20
    OF = [52, 100]
    a.e("s_lshl_b32 s22, s19, 12")
    for ks in range(4):
        a.e(f"v_add_u32 v{150+ks}, s22, v{PC_B0+ks}")
    a.e(f"v_add_u32 v154, 0x10000, v{PC_T0}")
    a.e("v_and_b32 v2, 31, v1")
    a.e("s_lshl_b32 s22, s15, 7")
    a.e("s_lshl_b32 s23, s19, 6")
    a.e("s_add_u32 s22, s22, s23")
    a.e("v_add_u32 v2, s22, v2")
    a.e("v_lshlrev_b32 v2, 11, v2")
    a.e("v_lshrrev_b32 v3, 5, v1")
    a.e("v_lshl_add_u32 v2, v3, 4, v2")
    a.e("s_lshl_b32 s22, s16, 7")
    a.e("s_lshl_b32 s23, s18, 6")
    a.e("s_add_u32 s22, s22, s23")
    a.e("v_add_u32 v155, s22, v2")
    a.e("v_add_u32 v156, 0x10000, v155")
    srd(a, 24, 50, 51, 2048*1024*2)
    def oreads(n):
        F = OF[n % 2]; r = []
        for ks in range(4):
            for u in range(2):
                r.append(f"ds_read_b64_tr_b16 v[{F+4*ks+2*u}:{F+4*ks+2*u+1}], v154 offset:{n*U + (ks*16+u*4)*128}")
            for jn in range(2):
                d = F + 16 + 4*(ks*2+jn)
                r.append(f"ds_read_b128 v[{d}:{d+3}], v{150+ks} offset:{(n%4)*2*U + jn*4096}")
        return r
    def omf(n):
        F = OF[n % 2]; m = []
        for ks in range(4):
            for jn in range(2):
                acc = OA + 16*jn; b = F + 16 + 4*(ks*2+jn)
                c = "0" if (n == 0 and ks == 0) else f"v[{acc}:{acc+15}]"
                m.append(f"v_mfma_f32_32x32x16_bf16 v[{acc}:{acc+15}], v[{F+4*ks}:{F+4*ks+3}], v[{b}:{b+3}], {c}")
        return m
    a.e("s_barrier")
    a.e("s_barrier")
    for x in oreads(0): a.e(x)
    ph_stamp(a, cfg, 5)
    for n in range(8):
        a.e("s_waitcnt lgkmcnt(0)")
        a.e("s_barrier")
        for x in mixd(omf(n), oreads(n+1) if n < 7 else [], 3): a.e(x)
    if cfg.out_stage:
        a.e("v_and_b32 v2, 31, v1")
        a.e("v_and_b32 v3, 7, v2")
        a.e("v_lshrrev_b32 v4, 5, v1")
        a.e("v_xor_b32 v3, v3, v4")
        a.e("s_lshl_b32 s22, s18, 2")
        a.e("v_xor_b32 v3, s22, v3")
        a.e("v_lshlrev_b32 v4, 7, v2")
        a.e("s_lshl_b32 s22, s19, 13")
        a.e(f"s_add_u32 s22, s22, {4*U}")
        a.e("v_add_u32 v4, s22, v4")
        a.e("v_lshl_add_u32 v5, v3, 4, v4")
        a.e("v_xor_b32 v3, 2, v3")
        a.e("v_lshl_add_u32 v6, v3, 4, v4")
        a.e("v_lshrrev_b32 v2, 3, v1")
        a.e("v_and_b32 v3, 7, v1")
        a.e("v_xor_b32 v4, v3, v2")
        a.e("v_lshlrev_b32 v7, 7, v2")
        a.e("v_lshl_add_u32 v7, v4, 4, v7")
        a.e("s_lshl_b32 s22, s3, 12")
        a.e(f"s_add_u32 s22, s22, {4*U}")
        a.e("v_add_u32 v7, s22, v7")
        a.e("s_lshl_b32 s22, s15, 7")
        a.e("s_lshl_b32 s23, s3, 5")
        a.e("s_add_u32 s22, s22, s23")
        a.e("v_add_u32 v2, s22, v2")
        a.e("v_lshlrev_b32 v2, 11, v2")
        a.e("v_lshl_add_u32 v2, v3, 4, v2")
        for jn in range(2):
            pack_tile32(a, OA+16*jn, 52+8*jn)
            a.e("s_nop 0")
            for g in range(2):
                a.e(f"ds_write_b128 v{5+g}, v[{52+8*jn+4*g}:{52+8*jn+4*g+3}] offset:{jn*4096}")
        a.e("s_waitcnt lgkmcnt(0)")
        ph_stamp(a, cfg, 6)
        a.e("s_barrier")
        for q in range(4):
            a.e(f"ds_read_b128 v[{52+4*q}:{55+4*q}], v7 offset:{q*1024}")
        a.e("s_lshl_b32 s22, s16, 7")
        a.e("s_add_u32 s22, s22, 1024")
        for q in range(4):
            a.e(f"s_waitcnt lgkmcnt({3-q})")
            a.e(f"buffer_store_dwordx4 v[{52+4*q}:{55+4*q}], v2, s[24:27], s22 offen{cfg.out_st}")
            if q < 3: a.e("s_add_u32 s22, s22, 16384")
    else:
        a.e("s_nop 7"); a.e("s_nop 7")
        for jn in range(2):
            pack_tile32(a, OA+16*jn, 52+8*jn)
            a.e("s_nop 1")
            for g in range(2):
                a.e(f"buffer_store_dwordx4 v[{52+8*jn+4*g}:{52+8*jn+4*g+3}], v{155+jn}, s[24:27], 0 offen offset:{1024 + g*32}{cfg.out_st}")
        ph_stamp(a, cfg, 6)
        a.e("s_barrier")
    a.e("s_branch L_y_cons")

PC_A0, PC_A1 = 212, 216
PC_B0, PC_B2 = 220, 224
PC_T0, PC_T2 = 236, 237
PC_ST = 238
def pc_cons_setup(a):
    a.e("s_and_b32 s18, s3, 1")
    a.e("s_lshr_b32 s19, s3, 1")
    a.e("v_and_b32 v2, 31, v1")
    a.e("v_bfe_u32 v3, v2, 1, 3")
    a.e("v_lshrrev_b32 v5, 5, v1")
    a.e("v_xor_b32 v3, v3, v5")
    a.e("v_lshlrev_b32 v4, 7, v2")
    a.e("s_lshl_b32 s22, s18, 12")
    a.e("s_lshl_b32 s23, s19, 12")
    for ks in range(4):
        a.e(f"v_xor_b32 v6, {ks*2}, v3")
        a.e("v_lshl_add_u32 v6, v6, 4, v4")
        a.e(f"v_add_u32 v{PC_A0+ks}, s22, v6")
        a.e(f"v_add_u32 v{PC_B0+ks}, s23, v6")
        a.e(f"v_add_u32 v{PC_A1+ks}, 0x10000, v{PC_A0+ks}")
        a.e(f"v_add_u32 v{PC_B2+ks}, 0x20000, v{PC_B0+ks}")
    a.e("s_lshl_b32 s22, s72, 6")
    a.e("s_lshl_b32 s23, s19, 5")
    a.e("s_add_u32 s22, s22, s23")
    a.e("v_add_u32 v6, s22, v2")
    a.e("v_lshlrev_b32 v6, 11, v6")
    a.e("v_lshl_add_u32 v6, v5, 4, v6")
    a.e("s_lshl_b32 s22, s73, 7")
    a.e("s_lshl_b32 s23, s18, 6")
    a.e("s_add_u32 s22, s22, s23")
    a.e(f"v_add_u32 v{PC_ST}, s22, v6")
    a.e("v_bfe_u32 v2, v1, 2, 2")
    a.e("v_and_b32 v3, 3, v1")
    a.e("v_bfe_u32 v4, v1, 4, 1")
    a.e("v_lshlrev_b32 v6, 7, v2")
    a.e("v_lshl_add_u32 v6, v5, 10, v6")
    a.e("v_lshl_add_u32 v6, v4, 5, v6")
    a.e("v_lshl_add_u32 v6, v3, 3, v6")
    a.e("v_lshrrev_b32 v7, 1, v2")
    a.e("v_xor_b32 v7, s18, v7")
    a.e(f"v_lshl_add_u32 v{PC_T0}, v7, 6, v6")
    a.e(f"v_add_u32 v{PC_T2}, 0x20000, v{PC_T0}")

def mixd(m, r, per):
    out = []; r = list(r)
    for x in m:
        out.append(x)
        out += r[:per]; r = r[per:]
    return out + r

def phase_c(a, cfg):
    a.label("L_y_loader")
    a.e("s_add_u32 s54, s52, 8192")
    def issue(y):
        slot = RING[y % 4]
        a.e(f"s_add_u32 s53, s88, {y}")
        a.e("s_and_b32 s53, s53, 7")
        a.e("s_lshl_b32 s53, s53, 8")
        a.e("s_add_u32 s55, s53, 128")
        a.e(f"s_add_u32 m0, s52, {slot}")
        a.e("s_nop 0")
        a.e(f"buffer_load_dwordx4 v{PA+2}, s[64:67], s53 offen lds")
        a.e(f"buffer_load_dwordx4 v{PA+3}, s[64:67], s53 offen offset:1024 lds")
        a.e(f"s_add_u32 m0, s54, {slot}")
        a.e("s_nop 0")
        a.e(f"buffer_load_dwordx4 v{PA+2}, s[64:67], s55 offen lds")
        a.e(f"buffer_load_dwordx4 v{PA+3}, s[64:67], s55 offen offset:1024 lds")
    a.e("s_barrier")
    for pos in (12, 13, 14, 15): wd_issue(a, pos)
    ph_stamp(a, cfg, 40)
    a.e("s_cmp_lg_u32 s3, 4")
    a.e("s_cbranch_scc1 L_y_nopoll")
    ph_rt(a, cfg, 38)
    flag_poll(a, PA+8, cfg)
    ph_rt(a, cfg, 37)
    a.label("L_y_nopoll")
    a.e("s_waitcnt vmcnt(0)")
    a.e("s_barrier")
    ph_stamp(a, cfg, 41)
    for y in range(4): issue(y)
    issued = 4
    for y in range(8):
        a.e(f"s_waitcnt vmcnt({4*(issued-1-y)})")
        a.e("s_barrier")
        if y >= 1 and issued < 8:
            issue(issued); issued += 1
        if y < 6: ph_stamp(a, cfg, 54+y)
    ph_stamp(a, cfg, 42)
    a.e("s_branch L_pc_end")
    a.label("L_y_cons")
    ACC1 = 20
    FS = [52, 84]
    RA = 116
    def rdB(dst, ks, addr):
        base = PC_B0 if addr < 65536 else PC_B2
        off = addr if addr < 65536 else addr - 131072
        return f"ds_read_b128 v[{dst}:{dst+3}], v{base+ks} offset:{off}"
    def rdA(pos):
        addr = WD_UNIT[pos]*U
        base = PC_A0 if addr < 65536 else PC_A1
        off = addr % 65536
        dst = RA + (pos % 6)*16
        return [f"ds_read_b128 v[{dst+4*ks}:{dst+4*ks+3}], v{base+ks} offset:{off}" for ks in range(4)]
    def reads(y):
        F = FS[y % 2]; slot = RING[y % 4]
        return [rdB(F+4*(c*4+ks), ks, slot + c*U) for c in range(2) for ks in range(4)]
    def mf(y):
        F = FS[y % 2]; m = []
        for c_ in range(2):
            ra = RA + ((2*y+c_) % 6)*16
            for ks in range(4):
                c = "0" if (y == 0 and c_ == 0 and ks == 0) else f"v[{ACC1}:{ACC1+15}]"
                b = F + 4*(c_*4+ks)
                m.append(f"v_mfma_f32_32x32x16_bf16 v[{ACC1}:{ACC1+15}], v[{ra+4*ks}:{ra+4*ks+3}], v[{b}:{b+3}], {c}")
        return m
    a.e("s_nop 1")
    for pos in range(6):
        for x in rdA(pos): a.e(x)
    srd(a, 24, 50, 51, 2048*1024*2)
    a.e("s_waitcnt lgkmcnt(0)")
    a.e("s_barrier")
    a.e("s_barrier")
    a.e("s_barrier")
    ph_stamp(a, cfg, 7)
    for x in reads(0): a.e(x)
    pendA = 0
    carry = []
    for y in range(8):
        a.e(f"s_waitcnt lgkmcnt({pendA})")
        m = mf(y)
        if y < 7:
            a.e("s_barrier")
            if cfg.ytweak:
                rb = reads(y+1)
                cur = rdA(2*(y+3)) if y + 3 < 8 else []
                gaps = [rb[0:3], rb[3:6], rb[6:8], carry[0:2], carry[2:4] , cur[0:2], cur[2:4], []]
                for k in range(8):
                    a.e(m[k])
                    for x in gaps[k]: a.e(x)
                pendA = len(carry) + len(cur)
                carry = rdA(2*(y+3)+1) if y + 3 < 8 else []
            else:
                for x in mixd(m, reads(y+1), 3): a.e(x)
                if y + 3 < 8:
                    for x in rdA(2*(y+3)) + rdA(2*(y+3)+1): a.e(x)
                    pendA = 8
                else:
                    pendA = 0
        else:
            for x in m: a.e(x)
    ph_stamp(a, cfg, 8)
    a.e("s_nop 7"); a.e("s_nop 7")
    pack_tile32(a, ACC1, 8)
    a.e("s_nop 1")
    for g in range(2):
        a.e(f"buffer_store_dwordx4 v[{8+4*g}:{8+4*g+3}], v{PC_ST}, s[24:27], 0 offen offset:{g*32}{cfg.y_st}")
    a.label("L_pc_end")

def gen(cfg):
    a = Asm()
    K = NAME + "_kernel"
    a.raw(HDR.rstrip("\n"))
    a.raw(f"; @launch grid=(256,1,1) block=(512,1,1) lds=163840")
    for l in DOC.strip("\n").split("\n"): a.raw("; " + l)
    a.raw('.amdgcn_target "amdgcn-amd-amdhsa--gfx950"')
    a.raw(".text")
    a.raw(f".globl {K}"); a.raw(".p2align 8"); a.raw(f".type {K},@function"); a.label(K)
    a.e("s_cmp_ge_u32 s2, 256")
    a.e("s_cbranch_scc1 L_exit")
    a.e("s_load_dwordx2 s[4:5], s[0:1], 0")
    a.e("s_load_dwordx2 s[6:7], s[0:1], 8")
    a.e("s_load_dwordx2 s[8:9], s[0:1], 16")
    a.e("s_load_dwordx2 s[10:11], s[0:1], 80")
    a.e("s_load_dwordx4 s[44:47], s[0:1], 24")
    a.e("s_load_dwordx4 s[48:51], s[0:1], 56")
    a.e("s_load_dwordx2 s[62:63], s[0:1], 72")
    wave_ids(a)
    ph_init(a, cfg)
    a.e("s_and_b32 s72, s2, 7")
    a.e("s_lshl_b32 s72, s72, 2")
    a.e("s_lshr_b32 s73, s2, 6")
    a.e("s_add_u32 s72, s72, s73")
    a.e("s_bfe_u32 s73, s2, 0x30003")
    a.e("s_bfe_u32 s88, s2, 0x10006")
    a.e("s_lshl_b32 s88, s88, 2")
    a.e("s_lshr_b32 s89, s2, 7")
    a.e("s_lshl_b32 s89, s89, 1")
    a.e("s_add_u32 s88, s88, s89")
    a.e("s_add_u32 s88, s88, s73")
    a.e("s_and_b32 s88, s88, 7")
    if not cfg.yrot_stag: a.e("s_mov_b32 s88, s73")
    a.e("s_mov_b32 s58, 524288")
    a.e("s_mov_b32 s59, 0x00020000")
    a.e("s_cmp_ge_u32 s2, 128")
    a.e("s_cbranch_scc1 L_partb")
    k_big(a, cfg)
    a.label("L_partb")
    k_attn(a, cfg)
    phase_c(a, cfg)
    ph_dump(a, cfg, [(0, 0), (4, 131072), (7, 65536)])
    a.label("L_exit")
    a.e("s_endpgm")
    a.raw('.section .rodata,"a"')
    for l in kdesc(K, 256):
        if l.startswith(".end_amdhsa_kernel"): a.raw("  .amdhsa_float_denorm_mode_32 3")
        a.raw(l)
    return a.text()

def mk(name, cdp=2048, op=1024, **kw):
    global CDP, OP
    CDP, OP = cdp, op
    cfg = Cfg()
    for k, v in kw.items(): setattr(cfg, k, v)
    open(name, "w").write(gen(cfg))

if __name__ == "__main__":
    mk("final.s")
```
